```python
import torch

def _softmax(x, axis=-1):
    return torch.softmax(x, dim=axis)
def _gelu(x):
    return torch.nn.functional.gelu(x, approximate="tanh")
def _silu(x):
    return torch.nn.functional.silu(x)
def _sigmoid(x):
    return torch.sigmoid(x)
def _layernorm(x, axis=-1, eps=1e-5):
    m = x.mean(dim=axis, keepdim=True)
    v = x.var(dim=axis, keepdim=True, unbiased=False)
    return (x - m) / torch.sqrt(v + eps)
def _scatter_add(tgt, idx, src, axis=0):
    return tgt.clone().index_add_(axis, idx, src)
def _segment_sum(src, seg, n):
    out = torch.zeros((n,) + src.shape[1:], dtype=src.dtype)
    return out.index_add_(0, seg, src)
def _pad(x, pw):
    flat = tuple(v for pair in reversed(pw) for v in pair)
    return torch.nn.functional.pad(x, flat)

kernel_name = 'gated_mix__grouped_kv_mqa__glu_gated_reglu__prompt'

def setup_inputs():

    _w = (lambda a: (lambda t: t.to(torch.bfloat16) if t.is_floating_point() else t)(torch.as_tensor(a)))
    def _A_setup():
        B, S, D, H = 1, 2048, 640, 32
        Dh = D // H
        return {
            "x": _w((lambda *s: torch.randn(*s, dtype=torch.bfloat16) * 0.05)(B, S, D)),
            "wq": _w((lambda *s: torch.randn(*s, dtype=torch.bfloat16) * 0.8)(D, H * Dh)),
            "wk": _w((lambda *s: torch.randn(*s, dtype=torch.bfloat16) * 0.8)(D, Dh)),
            "wv": _w((lambda *s: torch.randn(*s, dtype=torch.bfloat16) * 0.05)(D, Dh)),
            "wo": _w((lambda *s: torch.randn(*s, dtype=torch.bfloat16) * 0.05)(H * Dh, D)),
        }
    _A_in = _A_setup()

    def _B_setup():
        B, S, D, F = 1, 2048, 640, 1536
        return {
            "x": _w((lambda *s: torch.randn(*s, dtype=torch.bfloat16) * 0.05)(B, S, D)),
            "W_gate": _w((lambda *s: torch.randn(*s, dtype=torch.bfloat16) * 0.8)(D, F) * (2.0 / D) ** 0.5),
            "W_up": _w((lambda *s: torch.randn(*s, dtype=torch.bfloat16) * 0.8)(D, F) * (2.0 / D) ** 0.5),
            "W_down": _w((lambda *s: torch.randn(*s, dtype=torch.bfloat16) * 0.8)(F, D) * (1.0 / F) ** 0.5),
        }
    _B_in = _B_setup()

    return {
        "A_x": _A_in["x"],
        "A_wq": _A_in["wq"],
        "A_wk": _A_in["wk"],
        "A_wv": _A_in["wv"],
        "A_wo": _A_in["wo"],
        "B_x": _B_in["x"],
        "B_W_gate": _B_in["W_gate"],
        "B_W_up": _B_in["W_up"],
        "B_W_down": _B_in["W_down"],
        "gate_w": _w((lambda *s: torch.randn(*s, dtype=torch.bfloat16) * 0.05)(640) * 16.0),
    }

def reference(A_x, A_wq, A_wk, A_wv, A_wo, B_x, B_W_gate, B_W_up, B_W_down, gate_w):
    def _A_ref(x, wq, wk, wv, wo):
        B, S, D = x.shape
        H = 32
        Dh = D // H
        q = (lambda x, *d: x.permute(*d))((x @ wq).reshape(B, S, H, Dh), 0, 2, 1, 3)
        k = x @ wk
        v = x @ wv
        scores = torch.einsum("bhqd,bkd->bhqk", q, k) * (Dh ** -0.5)
        p = _softmax(scores, axis=-1)
        o = torch.einsum("bhqk,bkd->bhqd", p, v)
        return (lambda x, *d: x.permute(*d))(o, 0, 2, 1, 3).reshape(B, S, H * Dh) @ wo

    def _B_ref(x, W_gate, W_up, W_down):
        gate = torch.einsum("bsd,df->bsf", x, W_gate)
        up = torch.einsum("bsd,df->bsf", x, W_up)
        gate = gate * (lambda x, dt: x.to(dt))(gate > 0, gate.dtype)
        h = gate * up
        return torch.einsum("bsf,fd->bsd", h, W_down)

    x = A_x
    g = _sigmoid((x * gate_w).sum(-1, keepdims=True))
    a = _A_ref(x, A_wq, A_wk, A_wv, A_wo)
    b = _B_ref(x, B_W_gate, B_W_up, B_W_down)
    return g * a + (1 - g) * b
```

```python
QBUF = 0x0
KVBUF = 0x280000
GBUF = 0x2C0000
HBUF = 0x300000
OBUF = 0x900000
BBUF = 0xC00000
WS_END = 0x1100000
KV_TILE = 3584

class E:
    def __init__(self):
        self.l = []
    def __call__(self, s):
        self.l.append("    " + s)
    def label(self, s):
        self.l.append(s + ":")
    def c(self, s):
        self.l.append("    ; " + s)
    def text(self):
        return "\n".join(self.l) + "\n"

def vr(a, n=1):
    return f"v{a}" if n == 1 else f"v[{a}:{a+n-1}]"
def sr(a, n=1):
    return f"s{a}" if n == 1 else f"s[{a}:{a+n-1}]"

def srd(e, d, ptr, nbytes, add=None):
    if add is None:
        e(f"s_mov_b32 s{d}, s{ptr}")
        e(f"s_mov_b32 s{d+1}, s{ptr+1}")
    else:
        e(f"s_add_u32 s{d}, s{ptr}, {add}")
        e(f"s_addc_u32 s{d+1}, s{ptr+1}, 0")
    e(f"s_mov_b32 s{d+2}, {nbytes}")
    e(f"s_mov_b32 s{d+3}, 0x00020000")

def kernel_head(e, name):
    e.l.append(f".globl {name}")
    e.l.append(".p2align 8")
    e.l.append(f".type {name},@function")
    e.label(name)

def kernel_desc(name, vgpr, sgpr=100):
    acc = (vgpr + 3) // 4 * 4
    return f"""
.p2align 6
.amdhsa_kernel {name}
  .amdhsa_next_free_vgpr {vgpr}
  .amdhsa_next_free_sgpr {sgpr}
  .amdhsa_accum_offset {acc}
  .amdhsa_group_segment_fixed_size 0
  .amdhsa_kernarg_size 104
  .amdhsa_user_sgpr_count 2
  .amdhsa_user_sgpr_kernarg_segment_ptr 1
  .amdhsa_system_sgpr_workgroup_id_x 1
.end_amdhsa_kernel
"""

def interleave(e, mf, others):
    n = len(mf)
    k = len(others)
    j = 0
    for i, m in enumerate(mf):
        e(m)
        tgt = (k * (i + 1) + n - 1) // n
        while j < tgt and j < k:
            for ins in others[j]:
                e(ins)
            j += 1
    while j < k:
        for ins in others[j]:
            e(ins)
        j += 1
```

```python
from common import *
import math
QSCALE = math.log2(math.e) / math.sqrt(20.0)
import struct
def f2u(f): return struct.unpack('<I', struct.pack('<f', f))[0]

def gen_k1(e):
    name = "k1_kernel"
    kernel_head(e, name)
    e("s_cmp_ge_u32 s2, 256")
    e("s_cbranch_scc1 K1_END")
    e("s_load_dwordx4 s[4:7], s[0:1], 0")
    e("s_load_dwordx4 s[8:11], s[0:1], 16")
    e("s_load_dwordx4 s[12:15], s[0:1], 48")
    e("s_load_dwordx2 s[16:17], s[0:1], 72")
    e("s_load_dwordx2 s[18:19], s[0:1], 96")
    e("v_lshrrev_b32 v1, 6, v0")
    e("v_and_b32 v0, 63, v0")
    e("s_nop 0")
    e("v_readfirstlane_b32 s20, v1")
    e("s_and_b32 s3, s2, 7")
    e("s_lshr_b32 s21, s2, 3")
    e("s_and_b32 s22, s3, 1")
    e("s_lshl_b32 s22, s22, 3")
    e("s_and_b32 s23, s21, 7")
    e("s_add_u32 s22, s22, s23")
    e("s_lshr_b32 s23, s3, 1")
    e("s_lshl_b32 s23, s23, 2")
    e("s_lshr_b32 s21, s21, 3")
    e("s_add_u32 s23, s23, s21")
    e("s_waitcnt lgkmcnt(0)")
    srd(e, 24, 4, 2621440)
    srd(e, 28, 18, WS_END)
    e("s_cmp_eq_u32 s23, 15")
    e("s_cbranch_scc1 K1_ROLE_C")
    e("s_cmp_ge_u32 s23, 12")
    e("s_cbranch_scc1 K1_SETUP_B")
    e("s_lshl_b32 s21, s23, 8")
    e("s_sub_u32 s3, 1966080, s21")
    srd(e, 32, 12, "s3", add="s21")
    srd(e, 36, 14, "s3", add="s21")
    e("s_mov_b32 s40, 3072")
    e("s_branch K1_GEMM")
    e.label("K1_SETUP_B")
    e("s_sub_u32 s21, s23, 12")
    e("s_lshl_b32 s21, s21, 9")
    e("s_sub_u32 s3, 819200, s21")
    srd(e, 32, 6, "s3", add="s21")
    e("s_add_u32 s21, s21, 256")
    e("s_sub_u32 s3, 819200, s21")
    srd(e, 36, 6, "s3", add="s21")
    e("s_mov_b32 s40, 1280")
    e.label("K1_GEMM")
    e("s_lshl_b32 s41, s40, 2")
    e("s_lshl_b32 s42, s40, 3")
    e("s_add_u32 s43, s41, s42")
    e("s_lshl_b32 s44, s40, 6")
    e("s_lshl_b32 s45, s40, 4")
    e("s_mul_i32 s45, s45, s20")
    e("s_mul_i32 s46, s22, 163840")
    e("s_lshl_b32 s47, s20, 10")
    e("s_lshl_b32 s48, s20, 12")
    e("s_lshr_b32 s49, s20, 1")
    e("s_and_b32 s50, s20, 1")
    e("v_lshrrev_b32 v3, 3, v0")
    e("s_lshl_b32 s3, s20, 3")
    e("v_add_u32 v3, s3, v3")
    e("v_mul_u32_u24 v3, 0x500, v3")
    e("v_lshrrev_b32 v4, 4, v0")
    e("s_lshl_b32 s3, s50, 2")
    e("v_add_u32 v4, s3, v4")
    e("v_and_b32 v4, 7, v4")
    e("v_and_b32 v5, 7, v0")
    e("v_xor_b32 v4, v4, v5")
    e("v_lshl_add_u32 v2, v4, 4, v3")
    e("v_lshrrev_b32 v4, 4, v0")
    e("v_mul_lo_u32 v3, v4, s40")
    e("v_lshlrev_b32 v4, 2, v4")
    e("v_and_b32 v5, 15, v0")
    e("v_xor_b32 v4, v4, v5")
    e("v_lshl_add_u32 v1, v4, 4, v3")

    def dma(stage_k, buf):
        g = []
        base = buf * 49152
        for m in range(4):
            g.append([f"s_add_u32 m0, s47, {base + m*4096}",
                      f"s_add_u32 s3, s46, {m*40960 + stage_k*128}",
                      f"buffer_load_dwordx4 v2, s[24:27], s3 offen lds"])
        for ee in range(4):
            for u in range(2):
                so = "s45" if ee == 0 else "s3"
                pre = [] if ee == 0 else [f"s_add_u32 s3, s45, s{40+ee}"]
                g.append([f"s_add_u32 m0, s48, {base + 16384 + u*16384 + ee*1024}"] +
                         (pre if pre else ["s_nop 0"]) +
                         [f"buffer_load_dwordx4 v1, s[{32+4*u}:{35+4*u}], {so} offen lds"])
        g[-1].append("s_add_u32 s45, s45, s44")
        return g
    for st in range(3):
        for grp in dma(st, st):
            for ins in grp: e(ins)
    e("v_and_b32 v3, 31, v0")
    e("s_lshl_b32 s3, s49, 6")
    e("v_add_u32 v3, s3, v3")
    e("v_lshrrev_b32 v4, 1, v3")
    e("v_and_b32 v4, 7, v4")
    e("v_lshrrev_b32 v5, 5, v0")
    e("v_lshlrev_b32 v3, 7, v3")
    for ks in range(4):
        e(f"v_or_b32 v24, {ks*2}, v5")
        e("v_xor_b32 v24, v24, v4")
        e(f"v_lshl_add_u32 v{6+ks}, v24, 4, v3")
        e(f"v_add_u32 v{10+ks}, 49152, v{6+ks}")
        e(f"v_add_u32 v{14+ks}, 98304, v{6+ks}")
    e("v_bfe_u32 v3, v0, 2, 2")
    e("v_lshl_add_u32 v4, v5, 3, v3")
    e("v_lshlrev_b32 v4, 8, v4")
    e("v_bfe_u32 v24, v0, 4, 1")
    e("v_lshl_add_u32 v4, v24, 5, v4")
    e("v_and_b32 v24, 3, v0")
    e("v_lshl_add_u32 v4, v24, 3, v4")
    e("s_lshl_b32 s3, s50, 1")
    for n2 in range(2):
        e(f"s_add_u32 s51, s3, {n2}")
        e("v_xor_b32 v24, s51, v3")
        e(f"v_lshl_add_u32 v{18+n2}, v24, 6, v4")
        e(f"v_add_u32 v{20+n2}, 49152, v{18+n2}")
        e(f"v_add_u32 v{22+n2}, 98304, v{18+n2}")
    ACC = lambda u, n2, rt: 128 + ((u*2+n2)*2+rt)*16
    XF = lambda p, rt: 32 + p*24 + rt*4
    WF = lambda p, u, n2: 32 + p*24 + 8 + (u*2+n2)*4
    def reads(kb, ks):
        buf = kb % 3; p = ks & 1
        g = []
        for rt in range(2):
            g.append([f"ds_read_b128 {vr(XF(p,rt),4)}, v{6+buf*4+ks} offset:{rt*4096}"])
        for u in range(2):
            for n2 in range(2):
                for uu in range(2):
                    g.append([f"ds_read_b64_tr_b16 {vr(WF(p,u,n2)+uu*2,2)}, v{18+buf*2+n2} offset:{16384+u*16384+(ks*16+uu*4)*256}"])
        return g
    e("s_waitcnt vmcnt(24)")
    e("s_barrier")
    for grp in reads(0, 0):
        for ins in grp: e(ins)
    for kb in range(10):
        for ks in range(4):
            p = ks & 1
            e.c(f"kb={kb} ks={ks}")
            others = []
            if ks == 3:
                if kb < 9:
                    e(f"s_waitcnt vmcnt({12 if kb+2 <= 9 else 0}) lgkmcnt(0)")
                    e("s_barrier")
                    others = reads(kb+1, 0)
                    if kb + 3 <= 9:
                        others = others + dma(kb+3, kb % 3)
                else:
                    e("s_waitcnt lgkmcnt(0)")
            else:
                e("s_waitcnt lgkmcnt(0)")
                others = reads(kb, ks+1)
            mf = []
            for rt in range(2):
                for u in range(2):
                    for n2 in range(2):
                        a = ACC(u, n2, rt)
                        cc = "0" if (kb == 0 and ks == 0) else vr(a, 16)
                        mf.append(f"v_mfma_f32_32x32x16_bf16 {vr(a,16)}, {vr(WF(p,u,n2),4)}, {vr(XF(p,rt),4)}, {cc}")
            interleave(e, mf, others)
    e("s_nop 15")
    e("s_cmp_ge_u32 s23, 12")
    e("s_cbranch_scc1 K1_EPI_B")
    e("s_lshl_b32 s3, s22, 2")
    e("s_lshl_b32 s21, s49, 1")
    e("s_add_u32 s3, s3, s21")
    e("s_mul_i32 s3, s3, 96")
    e("s_lshl_b32 s21, s23, 3")
    e("s_add_u32 s3, s3, s21")
    e("s_lshl_b32 s21, s50, 2")
    e("s_add_u32 s3, s3, s21")
    e("s_lshl_b32 s3, s3, 10")
    e(f"s_add_u32 s3, s3, {HBUF}")
    e(f"s_add_u32 s21, s3, {96*1024}")
    e("v_lshlrev_b32 v1, 4, v0")
    for rt in range(2):
        for n2 in range(2):
            g = ACC(0, n2, rt); u_ = ACC(1, n2, rt)
            for i in range(16):
                e(f"v_max_f32 v{g+i}, 0, v{g+i}")
                e(f"v_mul_f32 v{g+i}, v{g+i}, v{u_+i}")
            d = 32 + (rt*2+n2)*8
            for i in range(8):
                e(f"v_cvt_pk_bf16_f32 v{d+i}, v{g+2*i}, v{g+2*i+1}")
            for t in range(2):
                e(f"buffer_store_dwordx4 {vr(d+4*t,4)}, v1, s[28:31], {'s3' if rt==0 else 's21'} offen offset:{(n2*2+t)*1024}")
    e("s_endpgm")
    e.label("K1_EPI_B")
    e("s_sub_u32 s3, s23, 12")
    e("s_lshl_b32 s3, s3, 6")
    e("s_lshl_b32 s21, s50, 4")
    e("s_add_u32 s3, s3, s21")
    e("s_lshl_b32 s3, s3, 14")
    e("s_lshl_b32 s21, s22, 7")
    e("s_lshl_b32 s51, s49, 6")
    e("s_add_u32 s21, s21, s51")
    e("s_lshl_b32 s21, s21, 3")
    e("s_add_u32 s3, s3, s21")
    e("v_and_b32 v1, 31, v0")
    e("v_lshlrev_b32 v1, 3, v1")
    e("v_lshrrev_b32 v2, 5, v0")
    e("v_lshl_add_u32 v1, v2, 14, v1")
    e(f"s_mov_b32 s51, 0x{f2u(QSCALE):08x}")
    for u in range(2):
        if u == 1:
            e("s_cmp_eq_u32 s23, 14")
            e("s_cbranch_scc1 K1_END")
        for n2 in range(2):
            for rt in range(2):
                a = ACC(u, n2, rt)
                for i in range(16):
                    e(f"v_mul_f32 v{a+i}, s51, v{a+i}")
                d = 32 + (n2*2+rt)*8
                for i in range(8):
                    e(f"v_cvt_pk_bf16_f32 v{d+i}, v{a+2*i}, v{a+2*i+1}")
                for g in range(4):
                    e(f"s_add_u32 s21, s3, {(u*32+n2*8+2*g)*16384}")
                    e(f"buffer_store_dwordx2 {vr(d+2*g,2)}, v1, s[28:31], s21 offen offset:{rt*256}")
    e("s_endpgm")

    e.label("K1_ROLE_C")
    srd(e, 32, 8, 25600)
    srd(e, 36, 10, 25600)
    srd(e, 40, 16, 1280)
    e("s_lshl_b32 s21, s22, 2")
    e("s_add_u32 s21, s21, s20")
    e("s_mul_i32 s3, s21, 40960")
    e("v_and_b32 v1, 31, v0")
    e("v_mul_u32_u24 v1, 0x500, v1")
    e("v_lshrrev_b32 v2, 5, v0")
    e("v_lshl_add_u32 v1, v2, 4, v1")
    for ks in range(40):
        e(f"buffer_load_dwordx4 {vr(64+ks*4,4)}, v1, s[24:27], s3 offen offset:{ks*32}")
    e("s_lshl_b32 s3, s20, 6")
    e("v_add_u32 v3, s3, v0")
    e("v_lshlrev_b32 v4, 2, v3")
    for i in range(25):
        e(f"buffer_load_dword v{8+i}, v4, s[32:35], 0 offen offset:{(i%4)*1024}")
        e(f"buffer_load_dword v{33+i}, v4, s[36:39], 0 offen offset:{(i%4)*1024}")
        if i % 4 == 3: e("v_add_u32 v4, 4096, v4")
    e("v_lshlrev_b32 v4, 1, v3")
    for i in range(3):
        e(f"buffer_load_ushort v{58+i}, v4, s[40:43], 0 offen offset:{i*512}")
    e("v_mov_b32 v224, 0"); e("v_mov_b32 v225, 0"); e("v_mov_b32 v226, 0"); e("v_mov_b32 v227, 0")
    e("v_lshlrev_b32 v4, 4, v3")
    for i in range(16):
        e(f"ds_write_b128 v4, v[224:227] offset:{i*4096}")
    e("v_add_u32 v5, 65536, v4")
    for i in range(4):
        e(f"ds_write_b128 v5, v[224:227] offset:{i*4096}")
    e("s_waitcnt lgkmcnt(0)")
    e("s_barrier")
    e("s_mov_b32 s3, 0xCCCCCCCD")
    e("s_waitcnt vmcnt(0)")
    for i in range(25):
        e(f"v_add_u32 v4, {256*i}, v3")
        e("v_mul_hi_u32 v5, v4, s3")
        e("v_lshrrev_b32 v5, 3, v5")
        e("v_mul_u32_u24 v6, 10, v5")
        e("v_sub_u32 v6, v4, v6")
        e("v_lshlrev_b32 v5, 6, v5")
        e("v_lshl_add_u32 v5, v6, 2, v5")
        e(f"ds_write_b32 v5, v{8+i}")
        e(f"ds_write_b32 v5, v{33+i} offset:40960")
    e("v_lshlrev_b32 v4, 6, v3")
    e("ds_write_b16 v4, v58 offset:44")
    e(f"ds_write_b16 v4, v59 offset:{44+16384}")
    e("v_cmp_gt_u32 vcc, 128, v3")
    e("s_and_saveexec_b64 s[44:45], vcc")
    e(f"ds_write_b16 v4, v60 offset:{44+32768}")
    e("s_mov_b64 exec, s[44:45]")
    e("s_waitcnt lgkmcnt(0)")
    e("s_barrier")
    e("v_bfe_u32 v3, v0, 2, 2")
    e("v_lshrrev_b32 v5, 5, v0")
    e("v_lshl_add_u32 v4, v5, 3, v3")
    e("v_lshlrev_b32 v4, 6, v4")
    e("v_bfe_u32 v6, v0, 4, 1")
    e("v_lshl_add_u32 v4, v6, 5, v4")
    e("v_and_b32 v6, 3, v0")
    e("v_lshl_add_u32 v4, v6, 3, v4")
    e("v_add_u32 v7, 40960, v4")
    KA, VA = 224, 240
    def rd(ks):
        p = (ks & 1) * 8
        e(f"ds_read_b64_tr_b16 {vr(8+p,2)}, v4 offset:{ks*1024}")
        e(f"ds_read_b64_tr_b16 {vr(10+p,2)}, v4 offset:{ks*1024+256}")
        e(f"ds_read_b64_tr_b16 {vr(12+p,2)}, v7 offset:{ks*1024}")
        e(f"ds_read_b64_tr_b16 {vr(14+p,2)}, v7 offset:{ks*1024+256}")
    rd(0)
    for ks in range(40):
        p = (ks & 1) * 8
        if ks < 39:
            rd(ks+1)
            e("s_waitcnt lgkmcnt(4)")
        else:
            e("s_waitcnt lgkmcnt(0)")
        ck = "0" if ks == 0 else vr(KA, 16)
        cv = "0" if ks == 0 else vr(VA, 16)
        e(f"v_mfma_f32_32x32x16_bf16 {vr(KA,16)}, {vr(8+p,4)}, {vr(64+ks*4,4)}, {ck}")
        e(f"v_mfma_f32_32x32x16_bf16 {vr(VA,16)}, {vr(64+ks*4,4)}, {vr(12+p,4)}, {cv}")
    e("s_nop 15")
    e(f"s_mul_i32 s3, s21, {KV_TILE}")
    e(f"s_add_u32 s3, s3, {KVBUF}")
    e("v_lshlrev_b32 v1, 4, v0")
    e("v_lshlrev_b32 v2, 3, v0")
    for i in range(6):
        e(f"v_cvt_pk_bf16_f32 v{8+i}, v{KA+2*i}, v{KA+2*i+1}")
    e(f"v_mul_f32 v20, 0xbfb8aa3b, v{KA+10}")
    e("v_exp_f32 v20, v20")
    e("s_nop 0")
    e("v_add_f32 v20, 1.0, v20")
    e("v_rcp_f32 v20, v20")
    e("v_cmp_le_u32 vcc, 32, v0")
    e("v_mov_b32 v21, 0x3f803f80")
    e("s_nop 0")
    e("v_cndmask_b32 v12, v12, v21, vcc")
    e("v_cndmask_b32 v13, v13, 0, vcc") if False else e("v_mov_b32 v22, 0")
    e("v_cndmask_b32 v13, v13, v22, vcc")
    e("buffer_store_dwordx4 v[8:11], v1, s[28:31], s3 offen")
    e("buffer_store_dwordx2 v[12:13], v2, s[28:31], s3 offen offset:1024")
    e("s_lshl_b32 s44, s21, 7")
    e(f"s_add_u32 s44, s44, {GBUF - 128}")
    e("v_lshlrev_b32 v23, 2, v0")
    e("s_and_saveexec_b64 s[46:47], vcc")
    e("buffer_store_dword v20, v23, s[28:31], s44 offen")
    e("s_mov_b64 exec, s[46:47]")
    e("v_and_b32 v23, 31, v0")
    e("v_cmp_eq_u32 vcc, 20, v23")
    for i in range(8):
        e(f"v_cvt_pk_bf16_f32 v{24+i}, v{VA+2*i}, v{VA+2*i+1}")
    for i in range(8):
        e(f"v_cndmask_b32 v{24+i}, v{24+i}, v21, vcc")
    e("buffer_store_dwordx4 v[24:27], v1, s[28:31], s3 offen offset:1536")
    e("buffer_store_dwordx4 v[28:31], v1, s[28:31], s3 offen offset:2560")
    e.label("K1_END")
    e("s_endpgm")
    return name, 256, 147456, 256, 256
```

```python
from common import *

RING = 4 * 14336
def div20(e, vdst_q, vdst_r, vsrc, stmp):
    e(f"s_mov_b32 {stmp}, 0xCCCCCCCD")
    e(f"v_mul_hi_u32 v{vdst_q}, v{vsrc}, {stmp}")
    e(f"v_lshrrev_b32 v{vdst_q}, 4, v{vdst_q}")
    e(f"v_mul_u32_u24 v{vdst_r}, 20, v{vdst_q}")
    e(f"v_sub_u32 v{vdst_r}, v{vsrc}, v{vdst_r}")

def splitk_gemm(e, pfx, ksteps, nslab, srdW, srdWS, s_slab, barrier_every=None, barrier_count=0):
    n = len(ksteps)
    XR = lambda k: 40 + (k % nslab) * 4
    def issue(k):
        vs, wo, xo = ksteps[k]
        slab = (k % nslab) * 5120
        e(f"s_add_u32 s62, s60, {wo}")
        for i in range(5):
            e(f"s_add_u32 m0, {s_slab}, {slab + i*1024}")
            e("s_nop 0")
            e(f"buffer_load_dwordx4 v{1+vs*5+i}, {sr(srdW,4)}, s62 offen lds")
        e(f"s_add_u32 s63, s61, {xo}")
        e(f"buffer_load_dwordx4 {vr(XR(k),4)}, v12, {sr(srdWS,4)}, s63 offen")
    pre = min(nslab - 1, n)
    for k in range(pre):
        issue(k)
    nb = 0
    for k in range(n):
        if barrier_every and k % barrier_every == 0 and nb < barrier_count:
            e("s_barrier"); nb += 1
        issued = min(n, k + nslab - 1)
        e(f"s_waitcnt vmcnt({(issued - k - 1) * 6})")
        slab = (k % nslab) * 5120
        for nt in range(5):
            for uu in range(2):
                e(f"ds_read_b64_tr_b16 {vr(16+nt*4+uu*2,2)}, v11 offset:{slab + uu*2560 + nt*64}")
        if k + nslab - 1 < n:
            issue(k + nslab - 1)
        for nt in range(5):
            e(f"s_waitcnt lgkmcnt({8 - 2*nt})")
            cc = "0" if k == 0 else vr(80+nt*16, 16)
            e(f"v_mfma_f32_32x32x16_bf16 {vr(80+nt*16,16)}, {vr(16+nt*4,4)}, {vr(XR(k),4)}, {cc}")
    return nb

def gemm_addr_setup(e, s_slab, type2=False):
    for i in range(5):
        e(f"v_add_u32 v13, {i*64}, v0")
        div20(e, 14, 15, 13, "s62")
        e("v_lshlrev_b32 v15, 4, v15")
        e(f"v_mad_u32_u24 v{1+i}, v14, s59, v15")
        if type2:
            e("v_bfe_u32 v13, v14, 2, 1")
            e("v_lshrrev_b32 v36, 3, v14")
            e("v_lshl_add_u32 v13, v13, 1, v36")
            e("v_mul_u32_u24 v13, 20, v13")
            e("v_and_b32 v36, 3, v14")
            e("v_add_u32 v13, v13, v36")
            e(f"v_mad_u32_u24 v{6+i}, v13, s59, v15")
    e("v_bfe_u32 v13, v0, 2, 2")
    e("v_lshrrev_b32 v14, 5, v0")
    e("v_lshl_add_u32 v13, v14, 2, v13")
    e("v_mul_u32_u24 v13, 320, v13")
    e("v_bfe_u32 v14, v0, 4, 1")
    e("v_lshl_add_u32 v13, v14, 5, v13")
    e("v_and_b32 v14, 3, v0")
    e("v_lshl_add_u32 v13, v14, 3, v13")
    e(f"v_add_u32 v11, {s_slab}, v13")
    e("v_lshlrev_b32 v12, 4, v0")

def reduce_write(e, s_slab):
    e("s_nop 15")
    e(f"v_add_u32 v13, {s_slab}, v12")
    for q in range(20):
        e(f"ds_write_b128 v13, {vr(80+q*4,4)} offset:{q*1024}")
    e("s_waitcnt lgkmcnt(0)")
    e("s_barrier")

def reduce_read(e, area_stride, s_base, wait="lgkmcnt(0)"):
    e(f"v_add_u32 v13, {s_base}, v12")
    e(f"v_add_u32 v14, {2*area_stride}, v13")
    for p in range(4):
        for q in range(5):
            e(f"ds_read_b128 {vr(80+(p*5+q)*4,4)}, v{13 + p//2} offset:{(p%2)*area_stride + q*1024}")
    e(f"s_waitcnt {wait}")
    for p in range(1, 4):
        for i in range(20):
            e(f"v_add_f32 v{80+i}, v{80+i}, v{80+p*20+i}")

def gen_k2(e):
    name = "k2_kernel"
    kernel_head(e, name)
    e("s_cmp_ge_u32 s2, 256")
    e("s_cbranch_scc1 K2_END")
    e("s_load_dwordx2 s[4:5], s[0:1], 64")
    e("s_load_dwordx2 s[6:7], s[0:1], 96")
    e("v_lshrrev_b32 v1, 6, v0")
    e("v_and_b32 v0, 63, v0")
    e("s_nop 0")
    e("v_readfirstlane_b32 s20, v1")
    e("s_lshr_b32 s21, s2, 2")
    e("s_and_b32 s22, s2, 3")
    e("s_waitcnt lgkmcnt(0)")
    srd(e, 28, 6, WS_END)
    e("s_cmp_ge_u32 s20, 8")
    e("s_cbranch_scc1 K2_GEMM")
    S = [16, 32]; O = 48; P = 64; Q1 = 72; Q2 = 76
    K1 = lambda p: 80 + p*8
    K2 = lambda p: 84 + p*8
    V = lambda p, t: 96 + p*8 + t*4
    e("s_lshl_b32 s23, s22, 3")
    e("s_add_u32 s23, s23, s20")
    e("s_mul_i32 s3, s23, 81920")
    e("s_lshl_b32 s24, s21, 8")
    e("s_add_u32 s3, s3, s24")
    e("v_and_b32 v1, 31, v0")
    e("v_lshlrev_b32 v1, 3, v1")
    e("v_lshrrev_b32 v2, 5, v0")
    e("v_lshl_add_u32 v2, v2, 14, v1")
    e("s_add_u32 s24, s3, 32768")
    e("s_add_u32 s25, s3, 65536")
    e(f"buffer_load_dwordx2 {vr(Q1,2)}, v2, s[28:31], s3 offen")
    e(f"buffer_load_dwordx2 {vr(Q1+2,2)}, v2, s[28:31], s24 offen")
    e(f"buffer_load_dwordx2 {vr(Q2,2)}, v1, s[28:31], s25 offen")
    e("v_lshlrev_b32 v3, 4, v0")
    e("v_lshlrev_b32 v4, 3, v0")
    e("s_lshl_b32 s26, s20, 11")
    e(f"s_add_u32 s27, s26, {KVBUF}")
    def dma(c):
        g = [f"s_cmp_eq_u32 s20, 7", f"s_cbranch_scc1 K2_SK{c}"]
        for i in range(2):
            g += [f"s_add_u32 m0, s26, {(c%4)*14336 + i*1024}",
                  f"s_add_u32 s3, s27, {c*14336 + i*1024}",
                  f"buffer_load_dwordx4 v3, s[28:31], s3 offen lds"]
        return g
    def emit_dma(c):
        for ins in dma(c): e(ins)
        e.label(f"K2_SK{c}")
    emit_dma(0); emit_dma(1)
    for r in (K2(0)+2, K2(0)+3, K2(1)+2, K2(1)+3, Q2+2, Q2+3):
        e(f"v_mov_b32 v{r}, 0")
    e("v_cmp_le_u32 s[32:33], 32, v0")
    e("s_waitcnt vmcnt(2)")
    e("s_cmp_eq_u32 s20, 7")
    e("s_cbranch_scc0 K2_W7")
    e("s_waitcnt vmcnt(0)")
    e.label("K2_W7")
    e("s_barrier")
    emit_dma(2)
    e(f"v_cndmask_b32 v{Q2}, v{Q2}, 0, s[32:33]")
    e(f"v_cndmask_b32 v{Q2+1}, v{Q2+1}, 0, s[32:33]")
    toff = lambda t: (t % 16) * KV_TILE
    def rdK(t):
        p = t & 1
        return [f"ds_read_b128 {vr(K1(p),4)}, v3 offset:{toff(t)}",
                f"ds_read_b64 {vr(K2(p),2)}, v4 offset:{toff(t)+1024}"]
    def rdV(t):
        p = t & 1
        return [f"ds_read_b128 {vr(V(p,0),4)}, v3 offset:{toff(t)+1536}",
                f"ds_read_b128 {vr(V(p,1),4)}, v3 offset:{toff(t)+2560}"]
    for ins in rdK(0) + rdK(1) + rdV(0): e(ins)
    e("s_waitcnt lgkmcnt(0)")
    def qk(t, which):
        p = t & 1; s = S[t & 1]
        if which == 0:
            return f"v_mfma_f32_32x32x16_bf16 {vr(s,16)}, {vr(K1(p),4)}, {vr(Q1,4)}, 0"
        return f"v_mfma_f32_32x32x16_bf16 {vr(s,16)}, {vr(K2(p),4)}, {vr(Q2,4)}, {vr(s,16)}"
    def set_fold(src16, running=None):
        e(f"v_max3_f32 v5, v{src16}, v{src16+1}, v{src16+2}")
        for i in range(3, 15, 2):
            e(f"v_max3_f32 v5, v5, v{src16+i}, v{src16+i+1}")
        e(f"v_max_f32 v5, v5, v{src16+15}")
    def fold_from_v5():
        e("v_mov_b32 v6, v5")
        e("s_nop 1")
        e("v_permlane32_swap_b32 v5, v6")
        e("s_nop 1")
        e("v_max_f32 v5, v5, v6")
        e("v_sub_f32 v5, 0, v5")
        e("v_cvt_pk_bf16_f32 v6, v5, v5")
        e("v_lshlrev_b32 v6, 16, v6")
        e("v_sub_f32 v6, v5, v6")
        e("v_cvt_pk_bf16_f32 v6, v5, v6")
        e(f"v_cndmask_b32 v{Q2}, v{Q2}, v6, s[32:33]")
        e("s_nop 1")
    e(qk(0, 0)); e(qk(0, 1))
    e("s_nop 15")
    set_fold(S[0])
    fold_from_v5()
    e(qk(0, 0)); e(qk(0, 1))
    e("s_nop 7")
    def pv(t, h):
        p = t & 1
        cc = "0" if (t == 0 and h == 0) else vr(O, 16)
        return f"v_mfma_f32_32x32x16_bf16 {vr(O,16)}, {vr(V(p,h),4)}, {vr(P+4*h,4)}, {cc}"
    def grp(s, q):
        for i in range(4):
            e(f"v_exp_f32 v{s+4*q+i}, v{s+4*q+i}")
        e(f"v_cvt_pk_bf16_f32 v{P+2*q}, v{s+4*q}, v{s+4*q+1}")
        e(f"v_cvt_pk_bf16_f32 v{P+2*q+1}, v{s+4*q+2}, v{s+4*q+3}")
    for i in range(64):
        s = S[i & 1]
        e.c(f"tile {i}")
        bar = (i + 2) % 4 == 0 and (i + 2) // 4 < 16
        c = (i + 2) // 4
        if bar:
            e(f"s_waitcnt vmcnt({2 if c + 1 < 16 else 0}) lgkmcnt(0)")
            e("s_barrier")
        else:
            e("s_waitcnt lgkmcnt(0)")
        if i + 2 < 64:
            for ins in rdK(i+2): e(ins)
        else:
            e("s_nop 0")
        if i > 0: e(pv(i-1, 1))
        if i + 1 < 64:
            for ins in rdV(i+1): e(ins)
        if bar and c + 2 < 16:
            emit_dma(c + 2)
        grp(s, 0)
        if i + 1 < 64: e(qk(i+1, 0))
        grp(s, 1)
        if i + 1 < 64: e(qk(i+1, 1))
        grp(s, 2)
        e(pv(i, 0))
        grp(s, 3)
    e("s_nop 1")
    e(pv(63, 1))
    e("s_nop 15")
    e(f"v_max3_f32 v5, |v{O}|, |v{O+1}|, |v{O+2}|")
    for i in range(3, 11, 2):
        e(f"v_max3_f32 v5, v5, |v{O+i}|, |v{O+i+1}|")
    e(f"v_max_f32 v5, v5, |v{O+11}|")
    e("s_mov_b32 s3, 0x7b800000")
    e("v_cmp_nlt_f32 vcc, v5, s3") if False else None
    e("v_mov_b32 v7, s3")
    e("v_cmp_nlt_f32 s[34:35], v5, v7")
    e(f"v_mov_b32 v5, v{O+8}")
    e(f"v_mov_b32 v6, v{O+8}")
    e("s_nop 1")
    e("v_permlane32_swap_b32 v5, v6")
    e("v_mov_b32 v7, 0x53800000")
    e("s_nop 0")
    e("v_cmp_nlt_f32 vcc, v6, v7")
    e("s_nop 1")
    e("s_or_b64 vcc, vcc, s[34:35]")
    e("s_cbranch_vccnz K2_FALLBACK")
    e.label("K2_NORM")
    e("v_rcp_f32 v6, v6")
    e("s_nop 0")
    for i in range(12):
        e(f"v_mul_f32 v{O+i}, v{O+i}, v6")
    for i in range(6):
        e(f"v_cvt_pk_bf16_f32 v{P+i}, v{O+2*i}, v{O+2*i+1}")
    e("s_mul_i32 s3, s21, 40")
    e("s_add_u32 s24, s3, s23")
    e("s_lshl_b32 s24, s24, 10")
    e(f"s_add_u32 s24, s24, {OBUF}")
    e(f"buffer_store_dwordx4 {vr(P,4)}, v3, s[28:31], s24 offen")
    e("s_lshr_b32 s25, s23, 2")
    e("s_add_u32 s3, s3, s25")
    e("s_add_u32 s3, s3, 32")
    e("s_lshl_b32 s3, s3, 10")
    e("s_bfe_u32 s25, s23, 0x10001")
    e("s_lshl_b32 s25, s25, 9")
    e("s_add_u32 s3, s3, s25")
    e("s_and_b32 s25, s23, 1")
    e("s_lshl_b32 s25, s25, 3")
    e("s_add_u32 s3, s3, s25")
    e(f"s_add_u32 s3, s3, {OBUF}")
    e("s_mov_b32 exec_hi, 0")
    e(f"buffer_store_dwordx2 {vr(P+4,2)}, v3, s[28:31], s3 offen")
    e("s_endpgm")
    e.label("K2_FALLBACK")
    e(f"v_cndmask_b32 v{Q2}, v{Q2}, 0, s[32:33]")
    e("v_mov_b32 v8, 0xff800000")
    e(f"s_mov_b32 s3, {KVBUF}")
    e.label("K2_FB1")
    e(f"buffer_load_dwordx4 {vr(K1(0),4)}, v3, s[28:31], s3 offen")
    e(f"buffer_load_dwordx2 {vr(K2(0),2)}, v4, s[28:31], s3 offen offset:1024")
    e("s_waitcnt vmcnt(0)")
    e(qk(0, 0)); e(qk(0, 1))
    e("s_nop 15")
    set_fold(S[0])
    e("v_max_f32 v8, v8, v5")
    e(f"s_add_u32 s3, s3, {KV_TILE}")
    e(f"s_cmp_lt_u32 s3, {KVBUF + 64*KV_TILE}")
    e("s_cbranch_scc1 K2_FB1")
    e("v_mov_b32 v5, v8")
    fold_from_v5()
    for i in range(16):
        e(f"v_mov_b32 v{O+i}, 0")
    e(f"s_mov_b32 s3, {KVBUF}")
    e.label("K2_FB2")
    e(f"buffer_load_dwordx4 {vr(K1(0),4)}, v3, s[28:31], s3 offen")
    e(f"buffer_load_dwordx2 {vr(K2(0),2)}, v4, s[28:31], s3 offen offset:1024")
    e(f"buffer_load_dwordx4 {vr(V(0,0),4)}, v3, s[28:31], s3 offen offset:1536")
    e(f"buffer_load_dwordx4 {vr(V(0,1),4)}, v3, s[28:31], s3 offen offset:2560")
    e("s_waitcnt vmcnt(0)")
    e(qk(0, 0)); e(qk(0, 1))
    e("s_nop 15")
    for q in range(4): grp(S[0], q)
    e("s_nop 1")
    e(pv(2, 0)); e(pv(2, 1))
    e(f"s_add_u32 s3, s3, {KV_TILE}")
    e(f"s_cmp_lt_u32 s3, {KVBUF + 64*KV_TILE}")
    e("s_cbranch_scc1 K2_FB2")
    e("s_nop 15")
    e(f"v_mov_b32 v5, v{O+8}")
    e(f"v_mov_b32 v6, v{O+8}")
    e("s_nop 1")
    e("v_permlane32_swap_b32 v5, v6")
    e("s_nop 1")
    e("s_branch K2_NORM")
    e.label("K2_GEMM")
    NS = 4
    srd(e, 32, 4, 1966080)
    e("s_sub_u32 s20, s20, 8")
    e(f"s_mul_i32 s58, s20, {NS*5120}")
    e(f"s_add_u32 s58, s58, {RING}")
    e("s_mov_b32 s59, 1280")
    gemm_addr_setup(e, "s58")
    e("s_mul_i32 s60, s20, 491520")
    e("s_mul_i32 s3, s22, 320")
    e("s_add_u32 s60, s60, s3")
    e("s_mul_i32 s61, s21, 96")
    e("s_mul_i32 s3, s20, 24")
    e("s_add_u32 s61, s61, s3")
    e("s_lshl_b32 s61, s61, 10")
    e(f"s_add_u32 s61, s61, {HBUF}")
    ks = [(0, k*20480, k*1024) for k in range(24)]
    nb = splitk_gemm(e, "K2", ks, NS, 32, 28, "s58", barrier_every=2, barrier_count=12)
    assert nb == 12
    reduce_write(e, "s58")
    e("s_mul_i32 s57, s20, 5120")
    e(f"s_add_u32 s57, s57, {RING}")
    reduce_read(e, NS*5120, "s57")
    e("s_mul_i32 s3, s2, 20480")
    e("s_mul_i32 s62, s20, 5120")
    e("s_add_u32 s3, s3, s62")
    e(f"s_add_u32 s3, s3, {BBUF}")
    e("s_add_u32 s62, s3, 4096")
    for q in range(5):
        if q < 4:
            e(f"buffer_store_dwordx4 {vr(80+q*4,4)}, v12, s[28:31], s3 offen offset:{q*1024}")
        else:
            e(f"buffer_store_dwordx4 {vr(80+q*4,4)}, v12, s[28:31], s62 offen")
    e.label("K2_END")
    e("s_endpgm")
    return name, 168, RING + 4*NS*5120, 256, 768

def gen_k3(e):
    name = "k3_kernel"
    kernel_head(e, name)
    e("s_cmp_ge_u32 s2, 256")
    e("s_cbranch_scc1 K3_END")
    e("s_load_dwordx2 s[4:5], s[0:1], 32")
    e("s_load_dwordx2 s[6:7], s[0:1], 96")
    e("s_load_dwordx2 s[8:9], s[0:1], 80")
    e("v_lshrrev_b32 v1, 6, v0")
    e("v_and_b32 v0, 63, v0")
    e("s_nop 0")
    e("v_readfirstlane_b32 s20, v1")
    e("s_lshr_b32 s21, s2, 2")
    e("s_and_b32 s22, s2, 3")
    e("s_waitcnt lgkmcnt(0)")
    srd(e, 28, 6, WS_END)
    srd(e, 32, 4, 819200)
    srd(e, 36, 8, 2621440)
    NS = 7
    e(f"s_mul_i32 s58, s20, {NS*5120}")
    e("s_mov_b32 s59, 1280")
    gemm_addr_setup(e, "s58", type2=True)
    e("s_mul_i32 s3, s2, 20480")
    e("s_mul_i32 s62, s20, 5120")
    e("s_add_u32 s3, s3, s62")
    e(f"s_add_u32 s3, s3, {BBUF}")
    e("s_add_u32 s62, s3, 4096")
    for q in range(5):
        if q < 4:
            e(f"buffer_load_dwordx4 {vr(160+q*4,4)}, v12, s[28:31], s3 offen offset:{q*1024}")
        else:
            e(f"buffer_load_dwordx4 {vr(160+q*4,4)}, v12, s[28:31], s62 offen")
    e("v_and_b32 v13, 31, v0")
    e("v_lshlrev_b32 v13, 2, v13")
    e("s_lshl_b32 s3, s21, 7")
    e(f"s_add_u32 s3, s3, {GBUF}")
    e("buffer_load_dword v180, v13, s[28:31], s3 offen")
    e("s_mul_i32 s60, s22, 320")
    e("s_mul_i32 s3, s20, 204800")
    e("s_add_u32 s60, s60, s3")
    e("s_mul_i32 s61, s21, 40")
    e("s_lshl_b32 s61, s61, 10")
    e(f"s_add_u32 s61, s61, {OBUF}")
    e("s_lshl_b32 s3, s20, 13")
    e("s_add_u32 s61, s61, s3")
    e("s_mul_i32 s3, s20, 6144")
    e("s_sub_u32 s56, 32768, s3")
    ks = [(0, k*20*1280, k*1024) for k in range(8)]
    ks += [(1, (k*80+16)*1280, None) for k in range(2)]
    ks2 = []
    for (a, b, c) in ks:
        ks2.append((a, b, c))
    e("s_add_u32 s55, s56, 1024")
    ks2[8] = (1, ks[8][1], "s56"); ks2[9] = (1, ks[9][1], "s55")
    splitk_gemm(e, "K3", ks2, NS, 32, 28, "s58")
    reduce_write(e, "s58")
    e("s_mul_i32 s57, s20, 5120")
    reduce_read(e, NS*5120, "s57", wait="vmcnt(0) lgkmcnt(0)")
    e("v_sub_f32 v181, 1.0, v180")
    for i in range(20):
        e(f"v_mul_f32 v{160+i}, v181, v{160+i}")
        e(f"v_fma_f32 v{80+i}, v180, v{80+i}, v{160+i}")
    for i in range(10):
        e(f"v_cvt_pk_bf16_f32 v{100+i}, v{80+2*i}, v{80+2*i+1}")
    e("v_and_b32 v13, 31, v0")
    e("v_mul_u32_u24 v13, 0x500, v13")
    e("v_lshrrev_b32 v14, 5, v0")
    e("v_lshl_add_u32 v13, v14, 3, v13")
    e("s_mul_i32 s3, s21, 40960")
    e("s_mul_i32 s62, s22, 320")
    e("s_add_u32 s3, s3, s62")
    e("s_mul_i32 s62, s20, 80")
    e("s_add_u32 s3, s3, s62")
    for q in range(5):
        e(f"buffer_store_dwordx2 {vr(100+2*q,2)}, v13, s[36:39], s3 offen offset:{q*16}")
    e.label("K3_END")
    e("s_endpgm")
    return name, 184, 4*NS*5120, 256, 256
```

```python
import sys, os
os.environ.setdefault('LOADER', '1'); os.environ.setdefault('NUP', '1'); os.environ.setdefault('VAR', 'late_tog')
from common import *
from k1 import gen_k1
from k23 import gen_k2, gen_k3
hdr = open('gated_mix__grouped_kv_mqa__glu_gated_reglu__prompt.s.ref').read().split('\n')
top = [l for l in hdr if l.startswith(';') and '@launch' not in l and 'Override launch' not in l and 'grid=ceil' not in l]
e = E()
i1 = gen_k1(e); i2 = gen_k2(e)
infos = [(i1[0], 168, i2[2], 256, 768)]
out = "\n".join(top) + "\n"
for (name, vg, lds, grid, block) in infos:
    out += (f"; @launch kernel={name} grid=({grid},1,1) block=({block},1,1) lds={lds}\n" if os.environ.get("LIST") else f"; @launch grid=({grid},1,1) block=({block},1,1) lds={lds}\n")
out += '.amdgcn_target "amdgcn-amd-amdhsa--gfx950"\n.text\n'
out += e.text()
out += '.section .rodata,"a"\n'
for (name, vg, lds, grid, block) in infos:
    out += kernel_desc(name, vg)
dst = sys.argv[1] if len(sys.argv) > 1 else 'gated_mix__grouped_kv_mqa__glu_gated_reglu__prompt.s'
open(dst, 'w').write(out)
print("written", dst, len(out))
```

```python
QBUF = 0x0
KVBUF = 0x280000
GBUF = 0x2C0000
HBUF = 0x300000
OBUF = 0x900000
BBUF = 0xC00000
WS_END = 0x1200000
STAMP = 0x1100000
import os
DO_STAMP = bool(os.environ.get('STAMP'))
KV_TILE = 3584

class E:
    def __init__(self):
        self.l = []
    def __call__(self, s):
        self.l.append("    " + s)
    def label(self, s):
        self.l.append(s + ":")
    def c(self, s):
        self.l.append("    ; " + s)
    def text(self):
        return "\n".join(self.l) + "\n"

def vr(a, n=1):
    return f"v{a}" if n == 1 else f"v[{a}:{a+n-1}]"
def sr(a, n=1):
    return f"s{a}" if n == 1 else f"s[{a}:{a+n-1}]"

def srd(e, d, ptr, nbytes, add=None):
    if add is None:
        e(f"s_mov_b32 s{d}, s{ptr}")
        e(f"s_mov_b32 s{d+1}, s{ptr+1}")
    else:
        e(f"s_add_u32 s{d}, s{ptr}, {add}")
        e(f"s_addc_u32 s{d+1}, s{ptr+1}, 0")
    e(f"s_mov_b32 s{d+2}, {nbytes}")
    e(f"s_mov_b32 s{d+3}, 0x00020000")

def kernel_head(e, name):
    e.l.append(f".globl {name}")
    e.l.append(".p2align 8")
    e.l.append(f".type {name},@function")
    e.label(name)

def kernel_desc(name, vgpr, sgpr=100):
    acc = (vgpr + 3) // 4 * 4
    return f"""
.p2align 6
.amdhsa_kernel {name}
  .amdhsa_next_free_vgpr {vgpr}
  .amdhsa_next_free_sgpr {sgpr}
  .amdhsa_accum_offset {acc}
  .amdhsa_group_segment_fixed_size 0
  .amdhsa_kernarg_size 104
  .amdhsa_user_sgpr_count 2
  .amdhsa_user_sgpr_kernarg_segment_ptr 1
  .amdhsa_system_sgpr_workgroup_id_x 1
.end_amdhsa_kernel
"""

def interleave(e, mf, others):
    n = len(mf)
    k = len(others)
    j = 0
    for i, m in enumerate(mf):
        e(m)
        tgt = (k * (i + 1) + n - 1) // n
        while j < tgt and j < k:
            for ins in others[j]:
                e(ins)
            j += 1
    while j < k:
        for ins in others[j]:
            e(ins)
        j += 1

def stamp(e, k):
    if not DO_STAMP: return
    e(f"s_memtime s[{80+2*k}:{81+2*k}]")

def stamp_flush(e, n, kern, s_wave, vtmp, srdws=28):
    if not DO_STAMP: return
    e("s_waitcnt lgkmcnt(0)")
    e("s_lshl_b32 s78, s2, 4")
    e(f"s_add_u32 s78, s78, {s_wave}")
    e("s_lshl_b32 s78, s78, 6")
    e(f"s_add_u32 s78, s78, {STAMP + kern*0x40000}")
    e("s_mov_b64 exec, 1")
    e(f"v_mov_b32 v{vtmp+1}, 0")
    for k in range(n):
        e(f"v_mov_b32 v{vtmp}, s{80+2*k}")
        e(f"buffer_store_dword v{vtmp}, v{vtmp+1}, s[{srdws}:{srdws+3}], s78 offen offset:{4*k}")
        e("s_nop 1")
```

```python
from common import *
import math
QSCALE = math.log2(math.e) / math.sqrt(20.0)
import struct
def f2u(f): return struct.unpack('<I', struct.pack('<f', f))[0]

def gen_k1(e):
    name = "k1_kernel"
    kernel_head(e, name)
    e("s_cmp_ge_u32 s2, 256")
    e("s_cbranch_scc1 K1_END")
    e("s_load_dwordx4 s[4:7], s[0:1], 0")
    e("s_load_dwordx4 s[8:11], s[0:1], 16")
    e("s_load_dwordx4 s[12:15], s[0:1], 48")
    e("s_load_dwordx2 s[16:17], s[0:1], 72")
    e("s_load_dwordx2 s[18:19], s[0:1], 96")
    e("v_lshrrev_b32 v1, 6, v0")
    e("v_and_b32 v0, 63, v0")
    e("s_nop 0")
    e("v_readfirstlane_b32 s20, v1")
    e("s_and_b32 s3, s2, 7")
    e("s_lshr_b32 s21, s2, 3")
    e("s_and_b32 s22, s3, 1")
    e("s_lshl_b32 s22, s22, 3")
    e("s_and_b32 s23, s21, 7")
    e("s_add_u32 s22, s22, s23")
    e("s_lshr_b32 s23, s3, 1")
    e("s_lshl_b32 s23, s23, 2")
    e("s_lshr_b32 s21, s21, 3")
    e("s_add_u32 s23, s23, s21")
    e("s_waitcnt lgkmcnt(0)")
    srd(e, 24, 4, 2621440)
    srd(e, 28, 18, WS_END)
    stamp(e, 0)
    e("s_cmp_eq_u32 s23, 15")
    e("s_cbranch_scc1 K1_ROLE_C")
    e("s_cmp_ge_u32 s23, 12")
    e("s_cbranch_scc1 K1_SETUP_B")
    e("s_lshl_b32 s21, s23, 8")
    e("s_sub_u32 s3, 1966080, s21")
    srd(e, 32, 12, "s3", add="s21")
    srd(e, 36, 14, "s3", add="s21")
    e("s_mov_b32 s40, 3072")
    e("s_branch K1_GEMM")
    e.label("K1_SETUP_B")
    e("s_sub_u32 s21, s23, 12")
    e("s_lshl_b32 s21, s21, 9")
    e("s_sub_u32 s3, 819200, s21")
    srd(e, 32, 6, "s3", add="s21")
    e("s_add_u32 s21, s21, 256")
    e("s_sub_u32 s3, 819200, s21")
    srd(e, 36, 6, "s3", add="s21")
    e("s_mov_b32 s40, 1280")
    e.label("K1_GEMM")
    e("s_lshl_b32 s41, s40, 2")
    e("s_lshl_b32 s44, s40, 6")
    e("s_lshl_b32 s45, s40, 3")
    e("s_mul_i32 s45, s45, s20")
    e("s_mul_i32 s46, s22, 163840")
    e("s_lshl_b32 s47, s20, 10")
    e("s_lshl_b32 s48, s20, 11")
    e("s_add_u32 s48, s48, 16384")
    e("s_lshr_b32 s49, s20, 2")
    e("s_and_b32 s50, s20, 3")
    e("s_and_b32 s51, s20, 1")
    e("v_lshrrev_b32 v3, 3, v0")
    e("s_lshl_b32 s3, s20, 3")
    e("v_add_u32 v3, s3, v3")
    e("v_mul_u32_u24 v3, 0x500, v3")
    e("v_lshrrev_b32 v4, 4, v0")
    e("s_lshl_b32 s3, s51, 2")
    e("v_add_u32 v4, s3, v4")
    e("v_and_b32 v4, 7, v4")
    e("v_and_b32 v5, 7, v0")
    e("v_xor_b32 v4, v4, v5")
    e("v_lshl_add_u32 v2, v4, 4, v3")
    e("v_lshrrev_b32 v4, 4, v0")
    e("v_mul_lo_u32 v3, v4, s40")
    e("v_lshlrev_b32 v4, 2, v4")
    e("v_and_b32 v5, 15, v0")
    e("v_xor_b32 v4, v4, v5")
    e("v_lshl_add_u32 v1, v4, 4, v3")
    e("s_mov_b32 s52, 0")
    def dma():
        g = []
        for m in range(2):
            g.append([f"s_add_u32 s53, s52, s47",
                      f"s_add_u32 m0, s53, {m*8192}",
                      f"s_add_u32 s3, s46, {m*81920}",
                      f"buffer_load_dwordx4 v2, s[24:27], s3 offen lds"])
        for ee in range(2):
            for u in range(2):
                g.append([f"s_add_u32 s53, s52, s48",
                          f"s_add_u32 m0, s53, {u*16384 + ee*1024}",
                          (f"s_add_u32 s3, s45, s41" if ee else "s_mov_b32 s3, s45"),
                          f"buffer_load_dwordx4 v1, s[{32+4*u}:{35+4*u}], s3 offen lds"])
        g[-1] += ["s_add_u32 s45, s45, s44", "s_add_u32 s46, s46, 128",
                  "s_add_u32 s52, s52, 49152", "s_cmp_ge_u32 s52, 147456", "s_cselect_b32 s3, 147456, 0", "s_sub_u32 s52, s52, s3"]
        return g
    for st in range(3):
        for grp in dma():
            for ins in grp: e(ins)
    e("v_and_b32 v3, 31, v0")
    e("s_lshl_b32 s3, s49, 6")
    e("v_add_u32 v3, s3, v3")
    e("v_lshrrev_b32 v4, 1, v3")
    e("v_and_b32 v4, 7, v4")
    e("v_lshrrev_b32 v5, 5, v0")
    e("v_lshlrev_b32 v3, 7, v3")
    for ks in range(4):
        e(f"v_or_b32 v24, {ks*2}, v5")
        e("v_xor_b32 v24, v24, v4")
        e(f"v_lshl_add_u32 v{6+ks}, v24, 4, v3")
        e(f"v_mov_b32 v{11+ks}, v{6+ks}")
    e("v_bfe_u32 v3, v0, 2, 2")
    e("v_lshl_add_u32 v4, v5, 3, v3")
    e("v_lshlrev_b32 v4, 8, v4")
    e("v_bfe_u32 v24, v0, 4, 1")
    e("v_lshl_add_u32 v4, v24, 5, v4")
    e("v_and_b32 v24, 3, v0")
    e("v_lshl_add_u32 v4, v24, 3, v4")
    e("v_xor_b32 v24, s50, v3")
    e("v_lshl_add_u32 v10, v24, 6, v4")
    e("v_mov_b32 v15, v10")
    e("v_add_u32 v16, 49152, v6")
    e("v_add_u32 v17, 49152, v10")
    e("s_mov_b32 s54, 49152")
    ACC = lambda u, rt: 128 + (u*2+rt)*16
    XF = lambda p, rt: 32 + p*16 + rt*4
    WF = lambda p, u: 32 + p*16 + 8 + u*4
    for i in range(64): e(f"v_mov_b32 v{128+i}, 0")
    def reads(ks, nxt=False):
        p = ks & 1
        vx = 16 if nxt else 11 + ks
        vw = 17 if nxt else 15
        g = []
        for rt in range(2):
            g.append([f"ds_read_b128 {vr(XF(p,rt),4)}, v{vx} offset:{rt*4096}"])
        for u in range(2):
            for uu in range(2):
                g.append([f"ds_read_b64_tr_b16 {vr(WF(p,u)+uu*2,2)}, v{vw} offset:{16384+u*16384+(ks*16+uu*4)*256}"])
        return g
    stamp(e, 1)
    e("s_waitcnt vmcnt(12)")
    e("s_barrier")
    stamp(e, 2)
    for grp in reads(0):
        for ins in grp: e(ins)
    def stage(with_dma, first_dma_part):
        d = dma() if with_dma else []
        for ks in range(4):
            p = ks & 1
            if ks == 3:
                e(f"s_waitcnt vmcnt({6 if with_dma else 0}) lgkmcnt(0)")
                e("s_barrier")
                others = reads(0, nxt=True)
                others += d[0:2]
            else:
                e("s_waitcnt lgkmcnt(0)")
                others = reads(ks+1)
            mf = []
            for rt in range(2):
                for u in range(2):
                    a = ACC(u, rt)
                    mf.append(f"v_mfma_f32_32x32x16_bf16 {vr(a,16)}, {vr(WF(p,u),4)}, {vr(XF(p,rt),4)}, {vr(a,16)}")
            interleave(e, mf, others)
            if ks == 3:
                for grp in d[2:]:
                    for ins in grp: e(ins)
        for ks in range(4):
            e(f"v_add_u32 v{11+ks}, s54, v{6+ks}")
        e("v_mov_b32 v15, v17")
        e("s_add_u32 s54, s54, 49152"); e("s_cmp_ge_u32 s54, 147456"); e("s_cselect_b32 s3, 147456, 0"); e("s_sub_u32 s54, s54, s3")
        e("v_add_u32 v16, s54, v6")
        e("v_add_u32 v17, s54, v10")
    e("s_mov_b32 s55, 0")
    e.l.append(".p2align 6")
    e.label("K1_L1")
    stage(True, 0)
    e("s_add_u32 s55, s55, 1")
    e("s_cmp_lt_u32 s55, 7")
    e("s_cbranch_scc1 K1_L1")
    e.label("K1_L2")
    stage(False, 0)
    e("s_add_u32 s55, s55, 1")
    e("s_cmp_lt_u32 s55, 10")
    e("s_cbranch_scc1 K1_L2")
    stamp(e, 3)
    e("s_nop 15")
    e("s_cmp_ge_u32 s23, 12")
    e("s_cbranch_scc1 K1_EPI_B")
    e("s_lshl_b32 s3, s22, 2")
    e("s_lshl_b32 s21, s49, 1")
    e("s_add_u32 s3, s3, s21")
    e("s_mul_i32 s3, s3, 96")
    e("s_lshl_b32 s21, s23, 3")
    e("s_add_u32 s3, s3, s21")
    e("s_lshl_b32 s21, s50, 1")
    e("s_add_u32 s3, s3, s21")
    e("s_lshl_b32 s3, s3, 10")
    e(f"s_add_u32 s3, s3, {HBUF}")
    e(f"s_add_u32 s21, s3, {96*1024}")
    e("v_lshlrev_b32 v1, 4, v0")
    for rt in range(2):
        g = ACC(0, rt); u_ = ACC(1, rt)
        for i in range(16):
            e(f"v_max_f32 v{g+i}, 0, v{g+i}")
            e(f"v_mul_f32 v{g+i}, v{g+i}, v{u_+i}")
        d = 64 + rt*8
        for i in range(8):
            e(f"v_cvt_pk_bf16_f32 v{d+i}, v{g+2*i}, v{g+2*i+1}")
        for t in range(2):
            e(f"buffer_store_dwordx4 {vr(d+4*t,4)}, v1, s[28:31], {'s3' if rt==0 else 's21'} offen offset:{t*1024}")
    stamp(e, 4)
    stamp_flush(e, 5, 0, "s20", 2)
    e("s_endpgm")
    e.label("K1_EPI_B")
    e("s_sub_u32 s3, s23, 12")
    e("s_lshl_b32 s3, s3, 6")
    e("s_lshl_b32 s21, s50, 3")
    e("s_add_u32 s3, s3, s21")
    e("s_lshl_b32 s3, s3, 14")
    e("s_lshl_b32 s21, s22, 7")
    e("s_lshl_b32 s51, s49, 6")
    e("s_add_u32 s21, s21, s51")
    e("s_lshl_b32 s21, s21, 3")
    e("s_add_u32 s3, s3, s21")
    e("v_and_b32 v1, 31, v0")
    e("v_lshlrev_b32 v1, 3, v1")
    e("v_lshrrev_b32 v2, 5, v0")
    e("v_lshl_add_u32 v1, v2, 14, v1")
    e(f"s_mov_b32 s51, 0x{f2u(QSCALE):08x}")
    for u in range(2):
        if u == 1:
            e("s_cmp_eq_u32 s23, 14")
            e("s_cbranch_scc1 K1_END")
        for rt in range(2):
            a = ACC(u, rt)
            for i in range(16):
                e(f"v_mul_f32 v{a+i}, s51, v{a+i}")
            d = 64 + (u*2+rt)*8
            for i in range(8):
                e(f"v_cvt_pk_bf16_f32 v{d+i}, v{a+2*i}, v{a+2*i+1}")
            for g in range(4):
                e(f"s_add_u32 s21, s3, {(u*32+2*g)*16384}")
                e(f"buffer_store_dwordx2 {vr(d+2*g,2)}, v1, s[28:31], s21 offen offset:{rt*256}")
    e("s_endpgm")

    e.label("K1_ROLE_C")
    srd(e, 32, 8, 25600)
    srd(e, 36, 10, 25600)
    srd(e, 40, 16, 1280)
    e("s_and_b32 s3, s20, 3")
    e("s_lshl_b32 s21, s22, 2")
    e("s_add_u32 s21, s21, s3")
    e("s_lshl_b32 s44, s20, 6")
    e("v_add_u32 v3, s44, v0")
    e("v_lshlrev_b32 v4, 2, v3")
    for i in range(13):
        e(f"buffer_load_dword v{8+i}, v4, s[32:35], 0 offen offset:{(i%2)*2048}")
        e(f"buffer_load_dword v{33+i}, v4, s[36:39], 0 offen offset:{(i%2)*2048}")
        if i % 2 == 1: e("v_add_u32 v4, 4096, v4")
    e("v_lshlrev_b32 v4, 1, v3")
    for i in range(2):
        e(f"buffer_load_ushort v{58+i}, v4, s[40:43], 0 offen offset:{i*1024}")
    e("s_and_b32 s51, s20, 1")
    e("v_lshrrev_b32 v5, 3, v0")
    e("s_lshl_b32 s3, s20, 3")
    e("v_add_u32 v5, s3, v5")
    e("v_mul_u32_u24 v5, 0x500, v5")
    e("v_lshrrev_b32 v6, 4, v0")
    e("s_lshl_b32 s3, s51, 2")
    e("v_add_u32 v6, s3, v6")
    e("v_and_b32 v6, 7, v6")
    e("v_and_b32 v7, 7, v0")
    e("v_xor_b32 v6, v6, v7")
    e("v_lshl_add_u32 v62, v6, 4, v5")
    e("s_mul_i32 s46, s22, 163840")
    e("s_lshl_b32 s47, s20, 10")
    def cdma(kb):
        for m in range(2):
            e(f"s_add_u32 m0, s47, {81920 + (kb%4)*16384 + m*8192}")
            e(f"s_add_u32 s3, s46, {m*81920 + kb*128}")
            e("buffer_load_dwordx4 v62, s[24:27], s3 offen lds")
    for kb in range(3): cdma(kb)
    e("v_mov_b32 v224, 0"); e("v_mov_b32 v225, 0"); e("v_mov_b32 v226, 0"); e("v_mov_b32 v227, 0")
    e("v_lshlrev_b32 v4, 4, v3")
    for i in range(8):
        e(f"ds_write_b128 v4, v[224:227] offset:{i*8192}")
    e("v_add_u32 v5, 65536, v4")
    for i in range(2):
        e(f"ds_write_b128 v5, v[224:227] offset:{i*8192}")
    e("s_waitcnt lgkmcnt(0)")
    e("s_barrier")
    e("s_mov_b32 s3, 0xCCCCCCCD")
    e("s_waitcnt vmcnt(6)")
    for i in range(13):
        e(f"v_add_u32 v4, {512*i}, v3")
        e("v_mul_hi_u32 v5, v4, s3")
        e("v_lshrrev_b32 v5, 3, v5")
        e("v_mul_u32_u24 v6, 10, v5")
        e("v_sub_u32 v6, v4, v6")
        e("v_lshlrev_b32 v5, 6, v5")
        e("v_lshl_add_u32 v5, v6, 2, v5")
        if i == 12:
            e("v_cmp_gt_u32 vcc, 256, v3")
            e("s_and_saveexec_b64 s[44:45], vcc")
        e(f"ds_write_b32 v5, v{8+i}")
        e(f"ds_write_b32 v5, v{33+i} offset:40960")
        if i == 12:
            e("s_mov_b64 exec, s[44:45]")
    e("v_lshlrev_b32 v4, 6, v3")
    e("ds_write_b16 v4, v58 offset:44")
    e("v_cmp_gt_u32 vcc, 128, v3")
    e("s_and_saveexec_b64 s[44:45], vcc")
    e(f"ds_write_b16 v4, v59 offset:{44+32768}")
    e("s_mov_b64 exec, s[44:45]")
    e("s_waitcnt lgkmcnt(0)")
    e("s_barrier")
    e("v_bfe_u32 v3, v0, 2, 2")
    e("v_lshrrev_b32 v5, 5, v0")
    e("v_lshl_add_u32 v4, v5, 3, v3")
    e("v_lshlrev_b32 v4, 6, v4")
    e("v_bfe_u32 v6, v0, 4, 1")
    e("v_lshl_add_u32 v4, v6, 5, v4")
    e("v_and_b32 v6, 3, v0")
    e("v_lshl_add_u32 v4, v6, 3, v4")
    e(f"s_mul_i32 s48, s21, {KV_TILE}")
    e(f"s_add_u32 s48, s48, {KVBUF}")
    e("v_lshlrev_b32 v1, 4, v0")
    e("v_lshlrev_b32 v2, 3, v0")
    e("v_mov_b32 v60, 0x3f803f80")
    e("v_mov_b32 v61, 0")
    KA = 224
    e("v_and_b32 v5, 31, v0")
    e("s_and_b32 s44, s20, 3")
    e("s_lshl_b32 s44, s44, 5")
    e("v_add_u32 v5, s44, v5")
    e("v_lshrrev_b32 v6, 1, v5")
    e("v_and_b32 v6, 7, v6")
    e("v_lshrrev_b32 v7, 5, v0")
    e("v_lshlrev_b32 v5, 7, v5")
    e("v_add_u32 v5, 81920, v5")
    for ks in range(4):
        e(f"v_or_b32 v24, {ks*2}, v7")
        e("v_xor_b32 v24, v24, v6")
        e(f"v_lshl_add_u32 v{64+ks}, v24, 4, v5")
    e("s_cmp_ge_u32 s20, 4")
    e("s_cbranch_scc1 K1_C_V")
    def body(isV):
        for kb in range(10):
            e(f"s_waitcnt vmcnt({2*min(2, 9-kb)})")
            e("s_barrier")
            if kb + 3 < 10: cdma(kb+3)
            for ks in range(4):
                k = kb*4 + ks
                e(f"ds_read_b128 {vr(72+ks*4,4)}, v{64+ks} offset:{(kb%4)*16384}")
                e(f"ds_read_b64_tr_b16 {vr(8+ks*4,2)}, v4 offset:{k*1024}")
                e(f"ds_read_b64_tr_b16 {vr(10+ks*4,2)}, v4 offset:{k*1024+256}")
            for ks in range(4):
                e(f"s_waitcnt lgkmcnt({9-3*ks})")
                ck = "0" if (kb == 0 and ks == 0) else vr(KA, 16)
                if isV: e(f"v_mfma_f32_32x32x16_bf16 {vr(KA,16)}, {vr(72+ks*4,4)}, {vr(8+ks*4,4)}, {ck}")
                else:   e(f"v_mfma_f32_32x32x16_bf16 {vr(KA,16)}, {vr(8+ks*4,4)}, {vr(72+ks*4,4)}, {ck}")
        e("s_nop 15")
    body(False)
    for i in range(6):
        e(f"v_cvt_pk_bf16_f32 v{8+i}, v{KA+2*i}, v{KA+2*i+1}")
    e(f"v_mul_f32 v20, 0xbfb8aa3b, v{KA+10}")
    e("v_exp_f32 v20, v20")
    e("s_nop 0")
    e("v_add_f32 v20, 1.0, v20")
    e("v_rcp_f32 v20, v20")
    e("v_cmp_le_u32 vcc, 32, v0")
    e("s_nop 1")
    e("v_cndmask_b32 v12, v12, v60, vcc")
    e("v_cndmask_b32 v13, v13, v61, vcc")
    e("buffer_store_dwordx4 v[8:11], v1, s[28:31], s48 offen")
    e("buffer_store_dwordx2 v[12:13], v2, s[28:31], s48 offen offset:1024")
    e("s_lshl_b32 s44, s21, 7")
    e(f"s_add_u32 s44, s44, {GBUF - 128}")
    e("v_lshlrev_b32 v23, 2, v0")
    e("s_and_saveexec_b64 s[46:47], vcc")
    e("buffer_store_dword v20, v23, s[28:31], s44 offen")
    e("s_endpgm")
    e.label("K1_C_V")
    e("v_add_u32 v4, 40960, v4")
    body(True)
    e("v_and_b32 v23, 31, v0")
    e("v_cmp_eq_u32 vcc, 20, v23")
    for i in range(8):
        e(f"v_cvt_pk_bf16_f32 v{24+i}, v{KA+2*i}, v{KA+2*i+1}")
    for i in range(8):
        e(f"v_cndmask_b32 v{24+i}, v{24+i}, v60, vcc")
    e("buffer_store_dwordx4 v[24:27], v1, s[28:31], s48 offen offset:1536")
    e("buffer_store_dwordx4 v[28:31], v1, s[28:31], s48 offen offset:2560")
    stamp(e, 4)
    stamp_flush(e, 5, 0, "s20", 2)
    e.label("K1_END")
    e("s_endpgm")
    return name, 240, 147456, 256, 512
```

```python
from common import *

RING = 4 * 14336
def div20(e, vdst_q, vdst_r, vsrc, stmp):
    e(f"s_mov_b32 {stmp}, 0xCCCCCCCD")
    e(f"v_mul_hi_u32 v{vdst_q}, v{vsrc}, {stmp}")
    e(f"v_lshrrev_b32 v{vdst_q}, 4, v{vdst_q}")
    e(f"v_mul_u32_u24 v{vdst_r}, 20, v{vdst_q}")
    e(f"v_sub_u32 v{vdst_r}, v{vsrc}, v{vdst_r}")

def splitk_gemm(e, pfx, ksteps, nslab, srdW, srdWS, s_slab, barrier_every=None, barrier_count=0):
    n = len(ksteps)
    XR = lambda k: 40 + (k % nslab) * 4
    def issue(k):
        vs, wo, xo = ksteps[k]
        slab = (k % nslab) * 5120
        e(f"s_add_u32 s62, s60, {wo}")
        for i in range(5):
            e(f"s_add_u32 m0, {s_slab}, {slab + i*1024}")
            e("s_nop 0")
            e(f"buffer_load_dwordx4 v{1+vs*5+i}, {sr(srdW,4)}, s62 offen lds")
        e(f"s_add_u32 s63, s61, {xo}")
        e(f"buffer_load_dwordx4 {vr(XR(k),4)}, v12, {sr(srdWS,4)}, s63 offen")
    pre = min(nslab - 1, n)
    for k in range(pre):
        issue(k)
    nb = 0
    for k in range(n):
        if barrier_every and k % barrier_every == 0 and nb < barrier_count:
            e("s_barrier"); nb += 1
        issued = min(n, k + nslab - 1)
        e(f"s_waitcnt vmcnt({(issued - k - 1) * 6})")
        slab = (k % nslab) * 5120
        for nt in range(5):
            for uu in range(2):
                e(f"ds_read_b64_tr_b16 {vr(16+nt*4+uu*2,2)}, v11 offset:{slab + uu*2560 + nt*64}")
        if k + nslab - 1 < n:
            issue(k + nslab - 1)
        for nt in range(5):
            e(f"s_waitcnt lgkmcnt({8 - 2*nt})")
            cc = "0" if k == 0 else vr(80+nt*16, 16)
            e(f"v_mfma_f32_32x32x16_bf16 {vr(80+nt*16,16)}, {vr(16+nt*4,4)}, {vr(XR(k),4)}, {cc}")
    return nb

def gemm_addr_setup(e, s_slab, type2=False):
    for i in range(5):
        e(f"v_add_u32 v13, {i*64}, v0")
        div20(e, 14, 15, 13, "s62")
        e("v_lshlrev_b32 v15, 4, v15")
        e(f"v_mad_u32_u24 v{1+i}, v14, s59, v15")
        if type2:
            e("v_bfe_u32 v13, v14, 2, 1")
            e("v_lshrrev_b32 v36, 3, v14")
            e("v_lshl_add_u32 v13, v13, 1, v36")
            e("v_mul_u32_u24 v13, 20, v13")
            e("v_and_b32 v36, 3, v14")
            e("v_add_u32 v13, v13, v36")
            e(f"v_mad_u32_u24 v{6+i}, v13, s59, v15")
    e("v_bfe_u32 v13, v0, 2, 2")
    e("v_lshrrev_b32 v14, 5, v0")
    e("v_lshl_add_u32 v13, v14, 2, v13")
    e("v_mul_u32_u24 v13, 320, v13")
    e("v_bfe_u32 v14, v0, 4, 1")
    e("v_lshl_add_u32 v13, v14, 5, v13")
    e("v_and_b32 v14, 3, v0")
    e("v_lshl_add_u32 v13, v14, 3, v13")
    e(f"v_add_u32 v11, {s_slab}, v13")
    e("v_lshlrev_b32 v12, 4, v0")

def reduce_write(e, s_slab):
    e("s_nop 15")
    e(f"v_add_u32 v13, {s_slab}, v12")
    for q in range(20):
        e(f"ds_write_b128 v13, {vr(80+q*4,4)} offset:{q*1024}")
    e("s_waitcnt lgkmcnt(0)")
    e("s_barrier")

def reduce_read(e, area_stride, s_base, wait="lgkmcnt(0)"):
    e(f"v_add_u32 v13, {s_base}, v12")
    e(f"v_add_u32 v14, {2*area_stride}, v13")
    for p in range(4):
        for q in range(5):
            e(f"ds_read_b128 {vr(80+(p*5+q)*4,4)}, v{13 + p//2} offset:{(p%2)*area_stride + q*1024}")
    e(f"s_waitcnt {wait}")
    for p in range(1, 4):
        for i in range(20):
            e(f"v_add_f32 v{80+i}, v{80+i}, v{80+p*20+i}")

def gen_k2(e):
    name = "k2_kernel"
    kernel_head(e, name)
    e("s_cmp_ge_u32 s2, 256")
    e("s_cbranch_scc1 K2_END")
    e("s_load_dwordx2 s[4:5], s[0:1], 64")
    e("s_load_dwordx2 s[6:7], s[0:1], 96")
    e("v_lshrrev_b32 v1, 6, v0")
    e("v_and_b32 v0, 63, v0")
    e("s_nop 0")
    e("v_readfirstlane_b32 s20, v1")
    e("s_lshr_b32 s21, s2, 2")
    e("s_and_b32 s22, s2, 3")
    e("s_waitcnt lgkmcnt(0)")
    srd(e, 28, 6, WS_END)
    stamp(e, 0)
    if DO_STAMP: e("s_memrealtime s[90:91]")
    e("s_mov_b32 s79, s20")
    e("s_cmp_ge_u32 s20, 8")
    e("s_cbranch_scc1 K2_GEMM")
    import os
    if os.environ.get("NOATTN"): e("s_endpgm")
    S = [16, 32]; O = 48; P = 64; Q1 = 72; Q2 = 76
    K1 = lambda p: 80 + p*8
    K2 = lambda p: 84 + p*8
    V = lambda p, t: 96 + p*8 + t*4
    e("s_lshl_b32 s23, s22, 3")
    e("s_add_u32 s23, s23, s20")
    e("s_mul_i32 s3, s23, 81920")
    e("s_lshl_b32 s24, s21, 8")
    e("s_add_u32 s3, s3, s24")
    e("v_and_b32 v1, 31, v0")
    e("v_lshlrev_b32 v1, 3, v1")
    e("v_lshrrev_b32 v2, 5, v0")
    e("v_lshl_add_u32 v2, v2, 14, v1")
    e("s_add_u32 s24, s3, 32768")
    e("s_add_u32 s25, s3, 65536")
    e(f"buffer_load_dwordx2 {vr(Q1,2)}, v2, s[28:31], s3 offen")
    e(f"buffer_load_dwordx2 {vr(Q1+2,2)}, v2, s[28:31], s24 offen")
    e(f"buffer_load_dwordx2 {vr(Q2,2)}, v1, s[28:31], s25 offen")
    e("v_lshlrev_b32 v3, 4, v0")
    e("v_lshlrev_b32 v4, 3, v0")
    e("s_lshl_b32 s26, s20, 11")
    e(f"s_add_u32 s27, s26, {KVBUF}")
    def emit_dma(tag):
        e("s_cmp_eq_u32 s20, 7")
        e(f"s_cbranch_scc1 K2_SK{tag}")
        e("s_mov_b32 m0, s36")
        e("s_add_u32 s3, s37, 1024")
        e("buffer_load_dwordx4 v3, s[28:31], s37 offen lds")
        e("s_add_u32 m0, s36, 1024")
        e("s_nop 0")
        e("buffer_load_dwordx4 v3, s[28:31], s3 offen lds")
        e.label(f"K2_SK{tag}")
        e("s_add_u32 s37, s37, 14336")
        e("s_add_u32 s36, s36, 14336")
        e(f"s_cmp_ge_u32 s36, {RING}")
        e(f"s_cselect_b32 s3, {RING}, 0")
        e("s_sub_u32 s36, s36, s3")
    e("s_mov_b32 s36, s26")
    e("s_mov_b32 s37, s27")
    emit_dma("a"); emit_dma("b")
    for r in (K2(0)+2, K2(0)+3, K2(1)+2, K2(1)+3, Q2+2, Q2+3, P+4, P+5, P+6, P+7, V(1,1), V(1,1)+1, V(1,1)+2, V(1,1)+3):
        e(f"v_mov_b32 v{r}, 0")
    for i in range(16):
        e(f"v_mov_b32 v{O+i}, 0")
    e("v_cmp_le_u32 s[32:33], 32, v0")
    e("v_mov_b32 v8, v3"); e("v_mov_b32 v9, v4")
    e("v_add_u32 v10, 14336, v3"); e("v_add_u32 v11, 14336, v4")
    e("s_mov_b32 s38, 28672")
    e("s_waitcnt vmcnt(2)")
    e("s_cmp_eq_u32 s20, 7")
    e("s_cbranch_scc0 K2_W7")
    e("s_waitcnt vmcnt(0)")
    e.label("K2_W7")
    e("s_barrier")
    stamp(e, 1)
    emit_dma("c")
    e(f"v_cndmask_b32 v{Q2}, v{Q2}, 0, s[32:33]")
    e(f"v_cndmask_b32 v{Q2+1}, v{Q2+1}, 0, s[32:33]")
    def rdK(t):
        p = t & 1; a16 = 8 if t < 4 else 10; off = (t % 4) * KV_TILE
        return [f"ds_read_b128 {vr(K1(p),4)}, v{a16} offset:{off}",
                f"ds_read_b64 {vr(K2(p),2)}, v{a16+1} offset:{off+1024}"]
    def rdV(t):
        p = t & 1; a16 = 8 if t < 4 else 10; off = (t % 4) * KV_TILE
        return [f"ds_read_b128 {vr(V(p,0),4)}, v{a16} offset:{off+1536}",
                f"ds_read_b128 {vr(V(p,1),4)}, v{a16} offset:{off+2560}"]
    for ins in rdK(0) + rdK(1) + rdV(0): e(ins)
    e("s_waitcnt lgkmcnt(0)")
    def qk(t, which):
        p = t & 1; s = S[t & 1]
        if which == 0:
            return f"v_mfma_f32_32x32x16_bf16 {vr(s,16)}, {vr(K1(p),4)}, {vr(Q1,4)}, 0"
        return f"v_mfma_f32_32x32x16_bf16 {vr(s,16)}, {vr(K2(p),4)}, {vr(Q2,4)}, {vr(s,16)}"
    def set_fold(src16, running=None):
        e(f"v_max3_f32 v5, v{src16}, v{src16+1}, v{src16+2}")
        for i in range(3, 15, 2):
            e(f"v_max3_f32 v5, v5, v{src16+i}, v{src16+i+1}")
        e(f"v_max_f32 v5, v5, v{src16+15}")
    def fold_from_v5():
        e("v_mov_b32 v6, v5")
        e("s_nop 1")
        e("v_permlane32_swap_b32 v5, v6")
        e("s_nop 1")
        e("v_max_f32 v5, v5, v6")
        e("v_sub_f32 v5, 0, v5")
        e("v_cvt_pk_bf16_f32 v6, v5, v5")
        e("v_lshlrev_b32 v6, 16, v6")
        e("v_sub_f32 v6, v5, v6")
        e("v_cvt_pk_bf16_f32 v6, v5, v6")
        e(f"v_cndmask_b32 v{Q2}, v{Q2}, v6, s[32:33]")
        e("s_nop 1")
    e(qk(0, 0)); e(qk(0, 1))
    e("s_nop 15")
    set_fold(S[0])
    fold_from_v5()
    e(qk(0, 0)); e(qk(0, 1))
    e("s_mov_b32 s39, 0")
    e("s_nop 7")
    def pv(t, h):
        p = t & 1
        return f"v_mfma_f32_32x32x16_bf16 {vr(O,16)}, {vr(V(p,h),4)}, {vr(P+4*h,4)}, {vr(O,16)}"
    def grp(s, q):
        for i in range(4):
            e(f"v_exp_f32 v{s+4*q+i}, v{s+4*q+i}")
        e(f"v_cvt_pk_bf16_f32 v{P+2*q}, v{s+4*q}, v{s+4*q+1}")
        e(f"v_cvt_pk_bf16_f32 v{P+2*q+1}, v{s+4*q+2}, v{s+4*q+3}")
    stamp(e, 2)
    if "prio" in os.environ.get("VAR", ""):
        e("s_cmp_ge_u32 s20, 4")
        e("s_cbranch_scc0 K2_NP")
        e("s_setprio 1")
        e.label("K2_NP")
    if "late" in os.environ.get("VAR", ""):
        for r in range(12, 16): e(f"v_mov_b32 v{S[1]+r}, 0")
    e.l.append(".p2align 6")
    e.label("K2_LOOP")
    VAR = os.environ.get("VAR", "")
    def ex(s, q):
        for i in range(4):
            e(f"v_exp_f32 v{s+4*q+i}, v{s+4*q+i}")
    def cv(s, q):
        e(f"v_cvt_pk_bf16_f32 v{P+2*q}, v{s+4*q}, v{s+4*q+1}")
        e(f"v_cvt_pk_bf16_f32 v{P+2*q+1}, v{s+4*q+2}, v{s+4*q+3}")
    for i in range(4):
        s = S[i & 1]; sp = S[(i+1) & 1]
        def upd():
            e("v_mov_b32 v8, v10"); e("v_mov_b32 v9, v11")
            e("v_add_u32 v10, s38, v3"); e("v_add_u32 v11, s38, v4")
            e("s_add_u32 s38, s38, 14336")
            e(f"s_cmp_ge_u32 s38, {RING}")
            e(f"s_cselect_b32 s3, {RING}, 0")
            e("s_sub_u32 s38, s38, s3")
            e("s_add_u32 s39, s39, 1")
        def head():
            if "tog" in VAR: e(f"s_setprio {(3 - ((i+2)%4)) if 'tog3' not in VAR else (2 - ((i+2)%4)*2//3)}")
            if i == 2 and "nobar" not in VAR:
                e("s_waitcnt vmcnt(2) lgkmcnt(0)")
                e("s_barrier")
            else:
                e("s_waitcnt lgkmcnt(0)")
        if "late" in VAR:
            head()
            for ins in rdK(i+2): e(ins if "nords" not in VAR else "s_nop 0")
            ex(s, 0)
            cv(sp, 3)
            e(qk(i+1, 0)) if False else None
            if i == 2 and "nobar" not in VAR: emit_dma("d")
            else: e("s_nop 0")
            e(pv(i+1, 1))
            for ins in rdV(i+1): e(ins if ("nords" not in VAR and "norv" not in VAR) else "s_nop 0")
            ex(s, 1); cv(s, 0)
            e(qk(i+1, 0))
            if i == 3: upd()
            ex(s, 2); cv(s, 1)
            e(qk(i+1, 1))
            ex(s, 3); cv(s, 2)
            e(pv(i, 0))
        else:
            head()
            for ins in rdK(i+2): e(ins)
            e(pv(i+1, 1))
            for ins in rdV(i+1): e(ins)
            if i == 2 and "nobar" not in VAR:
                emit_dma("d")
            grp(s, 0)
            e(qk(i+1, 0))
            grp(s, 1)
            e(qk(i+1, 1))
            if i == 3: upd()
            grp(s, 2)
            e(pv(i, 0))
            grp(s, 3)
    e("s_cmp_lt_u32 s39, 16")
    e("s_cbranch_scc1 K2_LOOP")
    stamp(e, 3)
    if "late" in VAR: cv(S[1], 3)
    e("s_nop 1")
    e(pv(63, 1))
    e("s_nop 15")
    e(f"v_max3_f32 v5, |v{O}|, |v{O+1}|, |v{O+2}|")
    for i in range(3, 11, 2):
        e(f"v_max3_f32 v5, v5, |v{O+i}|, |v{O+i+1}|")
    e(f"v_max_f32 v5, v5, |v{O+11}|")
    e("s_mov_b32 s3, 0x7b800000")
    e("v_cmp_nlt_f32 vcc, v5, s3") if False else None
    e("v_mov_b32 v7, s3")
    e("v_cmp_nlt_f32 s[34:35], v5, v7")
    e(f"v_mov_b32 v5, v{O+8}")
    e(f"v_mov_b32 v6, v{O+8}")
    e("s_nop 1")
    e("v_permlane32_swap_b32 v5, v6")
    e("v_mov_b32 v7, 0x53800000")
    e("s_nop 0")
    e("v_cmp_nlt_f32 vcc, v6, v7")
    e("s_nop 1")
    e("s_or_b64 vcc, vcc, s[34:35]")
    e("s_cbranch_vccnz K2_FALLBACK")
    e.label("K2_NORM")
    e("v_rcp_f32 v6, v6")
    e("s_nop 0")
    for i in range(12):
        e(f"v_mul_f32 v{O+i}, v{O+i}, v6")
    for i in range(6):
        e(f"v_cvt_pk_bf16_f32 v{P+i}, v{O+2*i}, v{O+2*i+1}")
    e("s_mul_i32 s3, s21, 40")
    e("s_add_u32 s24, s3, s23")
    e("s_lshl_b32 s24, s24, 10")
    e(f"s_add_u32 s24, s24, {OBUF}")
    e(f"buffer_store_dwordx4 {vr(P,4)}, v3, s[28:31], s24 offen")
    e("s_lshr_b32 s25, s23, 2")
    e("s_add_u32 s3, s3, s25")
    e("s_add_u32 s3, s3, 32")
    e("s_lshl_b32 s3, s3, 10")
    e("s_bfe_u32 s25, s23, 0x10001")
    e("s_lshl_b32 s25, s25, 9")
    e("s_add_u32 s3, s3, s25")
    e("s_and_b32 s25, s23, 1")
    e("s_lshl_b32 s25, s25, 3")
    e("s_add_u32 s3, s3, s25")
    e(f"s_add_u32 s3, s3, {OBUF}")
    e("s_mov_b32 exec_hi, 0")
    e(f"buffer_store_dwordx2 {vr(P+4,2)}, v3, s[28:31], s3 offen")
    stamp(e, 4)
    if DO_STAMP: e("s_memrealtime s[92:93]")
    stamp_flush(e, 7, 1, "s79", 5)
    e("s_endpgm")
    e.label("K2_FALLBACK")
    e(f"v_cndmask_b32 v{Q2}, v{Q2}, 0, s[32:33]")
    e("v_mov_b32 v12, 0xff800000")
    e(f"s_mov_b32 s3, {KVBUF}")
    e.label("K2_FB1")
    e(f"buffer_load_dwordx4 {vr(K1(0),4)}, v3, s[28:31], s3 offen")
    e(f"buffer_load_dwordx2 {vr(K2(0),2)}, v4, s[28:31], s3 offen offset:1024")
    e("s_waitcnt vmcnt(0)")
    e(qk(0, 0)); e(qk(0, 1))
    e("s_nop 15")
    set_fold(S[0])
    e("v_max_f32 v12, v12, v5")
    e(f"s_add_u32 s3, s3, {KV_TILE}")
    e(f"s_cmp_lt_u32 s3, {KVBUF + 64*KV_TILE}")
    e("s_cbranch_scc1 K2_FB1")
    e("v_mov_b32 v5, v12")
    fold_from_v5()
    for i in range(16):
        e(f"v_mov_b32 v{O+i}, 0")
    e(f"s_mov_b32 s3, {KVBUF}")
    e.label("K2_FB2")
    e(f"buffer_load_dwordx4 {vr(K1(0),4)}, v3, s[28:31], s3 offen")
    e(f"buffer_load_dwordx2 {vr(K2(0),2)}, v4, s[28:31], s3 offen offset:1024")
    e(f"buffer_load_dwordx4 {vr(V(0,0),4)}, v3, s[28:31], s3 offen offset:1536")
    e(f"buffer_load_dwordx4 {vr(V(0,1),4)}, v3, s[28:31], s3 offen offset:2560")
    e("s_waitcnt vmcnt(0)")
    e(qk(0, 0)); e(qk(0, 1))
    e("s_nop 15")
    for q in range(4): grp(S[0], q)
    e("s_nop 1")
    e(pv(2, 0)); e(pv(2, 1))
    e(f"s_add_u32 s3, s3, {KV_TILE}")
    e(f"s_cmp_lt_u32 s3, {KVBUF + 64*KV_TILE}")
    e("s_cbranch_scc1 K2_FB2")
    e("s_nop 15")
    e(f"v_mov_b32 v5, v{O+8}")
    e(f"v_mov_b32 v6, v{O+8}")
    e("s_nop 1")
    e("v_permlane32_swap_b32 v5, v6")
    e("s_nop 1")
    e("s_branch K2_NORM")
    e.label("K2_GEMM")
    import os
    if os.environ.get("NOGEMM"): e("s_endpgm")
    NS = 4
    if "gp3" in os.environ.get("VAR", ""): e("s_setprio 3")
    srd(e, 32, 4, 1966080)
    e("s_sub_u32 s20, s20, 8")
    e(f"s_mul_i32 s58, s20, {NS*5120}")
    e(f"s_add_u32 s58, s58, {RING}")
    e("s_mov_b32 s59, 1280")
    gemm_addr_setup(e, "s58")
    e("s_mul_i32 s60, s20, 491520")
    e("s_mul_i32 s3, s22, 320")
    e("s_add_u32 s60, s60, s3")
    e("s_mul_i32 s61, s21, 96")
    e("s_mul_i32 s3, s20, 24")
    e("s_add_u32 s61, s61, s3")
    e("s_lshl_b32 s61, s61, 10")
    e(f"s_add_u32 s61, s61, {HBUF}")
    ks = [(0, k*20480, k*1024) for k in range(24)]
    nb = splitk_gemm(e, "K2", ks, NS, 32, 28, "s58", barrier_every=2, barrier_count=12)
    assert nb == 12
    stamp(e, 1)
    reduce_write(e, "s58")
    stamp(e, 2)
    e("s_mul_i32 s57, s20, 5120")
    e(f"s_add_u32 s57, s57, {RING}")
    reduce_read(e, NS*5120, "s57")
    e("s_mul_i32 s3, s2, 20480")
    e("s_mul_i32 s62, s20, 5120")
    e("s_add_u32 s3, s3, s62")
    e(f"s_add_u32 s3, s3, {BBUF}")
    e("s_add_u32 s62, s3, 4096")
    for q in range(5):
        if q < 4:
            e(f"buffer_store_dwordx4 {vr(80+q*4,4)}, v12, s[28:31], s3 offen offset:{q*1024}")
        else:
            e(f"buffer_store_dwordx4 {vr(80+q*4,4)}, v12, s[28:31], s62 offen")
    stamp(e, 3)
    stamp_flush(e, 4, 1, "s79", 13)
    e.label("K2_END")
    e("s_endpgm")
    return name, 168, RING + 4*NS*5120, 256, 768

def gen_k3(e):
    name = "k3_kernel"
    kernel_head(e, name)
    e("s_cmp_ge_u32 s2, 256")
    e("s_cbranch_scc1 K3_END")
    e("s_load_dwordx2 s[4:5], s[0:1], 32")
    e("s_load_dwordx2 s[6:7], s[0:1], 96")
    e("s_load_dwordx2 s[8:9], s[0:1], 80")
    e("v_lshrrev_b32 v1, 6, v0")
    e("v_and_b32 v0, 63, v0")
    e("s_nop 0")
    e("v_readfirstlane_b32 s20, v1")
    e("s_lshr_b32 s21, s2, 2")
    e("s_and_b32 s22, s2, 3")
    e("s_waitcnt lgkmcnt(0)")
    srd(e, 28, 6, WS_END)
    srd(e, 32, 4, 819200)
    srd(e, 36, 8, 2621440)
    stamp(e, 0)
    NS = 7
    e(f"s_mul_i32 s58, s20, {NS*5120}")
    e("s_mov_b32 s59, 1280")
    gemm_addr_setup(e, "s58", type2=True)
    e("s_mul_i32 s3, s2, 20480")
    e("s_mul_i32 s62, s20, 5120")
    e("s_add_u32 s3, s3, s62")
    e(f"s_add_u32 s3, s3, {BBUF}")
    e("s_add_u32 s62, s3, 4096")
    for q in range(5):
        if q < 4:
            e(f"buffer_load_dwordx4 {vr(160+q*4,4)}, v12, s[28:31], s3 offen offset:{q*1024}")
        else:
            e(f"buffer_load_dwordx4 {vr(160+q*4,4)}, v12, s[28:31], s62 offen")
    e("v_and_b32 v13, 31, v0")
    e("v_lshlrev_b32 v13, 2, v13")
    e("s_lshl_b32 s3, s21, 7")
    e(f"s_add_u32 s3, s3, {GBUF}")
    e("buffer_load_dword v180, v13, s[28:31], s3 offen")
    e("s_mul_i32 s60, s22, 320")
    e("s_mul_i32 s3, s20, 204800")
    e("s_add_u32 s60, s60, s3")
    e("s_mul_i32 s61, s21, 40")
    e("s_lshl_b32 s61, s61, 10")
    e(f"s_add_u32 s61, s61, {OBUF}")
    e("s_lshl_b32 s3, s20, 13")
    e("s_add_u32 s61, s61, s3")
    e("s_mul_i32 s3, s20, 6144")
    e("s_sub_u32 s56, 32768, s3")
    ks = [(0, k*20*1280, k*1024) for k in range(8)]
    ks += [(1, (k*80+16)*1280, None) for k in range(2)]
    ks2 = []
    for (a, b, c) in ks:
        ks2.append((a, b, c))
    e("s_add_u32 s55, s56, 1024")
    ks2[8] = (1, ks[8][1], "s56"); ks2[9] = (1, ks[9][1], "s55")
    stamp(e, 1)
    splitk_gemm(e, "K3", ks2, NS, 32, 28, "s58")
    stamp(e, 2)
    reduce_write(e, "s58")
    stamp(e, 3)
    e("s_mul_i32 s57, s20, 5120")
    reduce_read(e, NS*5120, "s57", wait="vmcnt(0) lgkmcnt(0)")
    e("v_sub_f32 v181, 1.0, v180")
    for i in range(20):
        e(f"v_mul_f32 v{160+i}, v181, v{160+i}")
        e(f"v_fma_f32 v{80+i}, v180, v{80+i}, v{160+i}")
    for i in range(10):
        e(f"v_cvt_pk_bf16_f32 v{100+i}, v{80+2*i}, v{80+2*i+1}")
    e("v_and_b32 v13, 31, v0")
    e("v_mul_u32_u24 v13, 0x500, v13")
    e("v_lshrrev_b32 v14, 5, v0")
    e("v_lshl_add_u32 v13, v14, 3, v13")
    e("s_mul_i32 s3, s21, 40960")
    e("s_mul_i32 s62, s22, 320")
    e("s_add_u32 s3, s3, s62")
    e("s_mul_i32 s62, s20, 80")
    e("s_add_u32 s3, s3, s62")
    for q in range(5):
        e(f"buffer_store_dwordx2 {vr(100+2*q,2)}, v13, s[36:39], s3 offen offset:{q*16}")
    stamp(e, 4)
    stamp_flush(e, 5, 2, "s20", 13)
    e.label("K3_END")
    e("s_endpgm")
    return name, 184, 4*NS*5120, 256, 256
```

```python
QBUF = 0x0
KVBUF = 0x280000
GBUF = 0x2C0000
FLAG = 0x2D0000
FLAG1 = 0x2E0000
HBUF = 0x300000
OBUF = 0x900000
BBUF = 0xC00000
WS_END = 0x1200000
STAMP = 0x1100000
import os
DO_STAMP = bool(os.environ.get('STAMP'))
KV_TILE = 3584

class E:
    def __init__(self):
        self.l = []
    def __call__(self, s):
        self.l.append("    " + s)
    def label(self, s):
        self.l.append(s + ":")
    def c(self, s):
        self.l.append("    ; " + s)
    def text(self):
        return "\n".join(self.l) + "\n"

def vr(a, n=1):
    return f"v{a}" if n == 1 else f"v[{a}:{a+n-1}]"
def sr(a, n=1):
    return f"s{a}" if n == 1 else f"s[{a}:{a+n-1}]"

def srd(e, d, ptr, nbytes, add=None):
    if add is None:
        e(f"s_mov_b32 s{d}, s{ptr}")
        e(f"s_mov_b32 s{d+1}, s{ptr+1}")
    else:
        e(f"s_add_u32 s{d}, s{ptr}, {add}")
        e(f"s_addc_u32 s{d+1}, s{ptr+1}, 0")
    e(f"s_mov_b32 s{d+2}, {nbytes}")
    e(f"s_mov_b32 s{d+3}, 0x00020000")

def kernel_head(e, name):
    e.l.append(f".globl {name}")
    e.l.append(".p2align 8")
    e.l.append(f".type {name},@function")
    e.label(name)

def kernel_desc(name, vgpr, sgpr=100):
    acc = (vgpr + 3) // 4 * 4
    return f"""
.p2align 6
.amdhsa_kernel {name}
  .amdhsa_next_free_vgpr {vgpr}
  .amdhsa_next_free_sgpr {sgpr}
  .amdhsa_accum_offset {acc}
  .amdhsa_group_segment_fixed_size 0
  .amdhsa_kernarg_size 104
  .amdhsa_user_sgpr_count 2
  .amdhsa_user_sgpr_kernarg_segment_ptr 1
  .amdhsa_system_sgpr_workgroup_id_x 1
.end_amdhsa_kernel
"""

def interleave(e, mf, others):
    n = len(mf)
    k = len(others)
    j = 0
    for i, m in enumerate(mf):
        e(m)
        tgt = (k * (i + 1) + n - 1) // n
        while j < tgt and j < k:
            for ins in others[j]:
                e(ins)
            j += 1
    while j < k:
        for ins in others[j]:
            e(ins)
        j += 1

def stamp(e, k):
    if not DO_STAMP: return
    e(f"s_memtime s[{80+2*k}:{81+2*k}]")
    if k == 0: e("s_memrealtime s[90:91]")

def stamp_flush(e, n, kern, s_wave, vtmp, srdws=28):
    if not DO_STAMP: return
    n = 10
    e("s_memrealtime s[92:93]")
    e("s_waitcnt lgkmcnt(0)")
    e("s_lshl_b32 s78, s2, 4")
    e(f"s_add_u32 s78, s78, {s_wave}")
    e("s_lshl_b32 s78, s78, 6")
    e(f"s_add_u32 s78, s78, {STAMP + kern*0x40000}")
    e("s_mov_b64 exec, 1")
    e(f"v_mov_b32 v{vtmp+1}, 0")
    for k in range(n):
        e(f"v_mov_b32 v{vtmp}, s{80+2*k}")
        e(f"buffer_store_dword v{vtmp}, v{vtmp+1}, s[{srdws}:{srdws+3}], s78 offen offset:{4*k}")
        e("s_nop 1")
```

```python
from common import *
import math
QSCALE = math.log2(math.e) / math.sqrt(20.0)
import struct
def f2u(f): return struct.unpack('<I', struct.pack('<f', f))[0]

def gen_k1(e):
    name = "k1_kernel"
    kernel_head(e, name)
    e("s_cmp_ge_u32 s2, 256")
    e("s_cbranch_scc1 K1_END")
    e("s_load_dwordx4 s[4:7], s[0:1], 0")
    e("s_load_dwordx4 s[8:11], s[0:1], 16")
    e("s_load_dwordx4 s[12:15], s[0:1], 48")
    e("s_load_dwordx2 s[16:17], s[0:1], 72")
    e("s_load_dwordx2 s[18:19], s[0:1], 96")
    e("v_lshrrev_b32 v1, 6, v0")
    e("v_and_b32 v0, 63, v0")
    e("s_nop 0")
    e("v_readfirstlane_b32 s20, v1")
    e("s_and_b32 s3, s2, 7")
    e("s_lshr_b32 s21, s2, 3")
    e("s_and_b32 s22, s3, 1")
    e("s_lshl_b32 s22, s22, 3")
    e("s_and_b32 s23, s21, 7")
    e("s_add_u32 s22, s22, s23")
    e("s_lshr_b32 s23, s3, 1")
    e("s_lshl_b32 s23, s23, 2")
    e("s_lshr_b32 s21, s21, 3")
    e("s_add_u32 s23, s23, s21")
    e("s_waitcnt lgkmcnt(0)")
    srd(e, 24, 4, 2621440)
    srd(e, 28, 18, WS_END)
    stamp(e, 0)
    e("s_lshl_b32 s3, s2, 7")
    e(f"s_add_u32 s3, s3, {FLAG}")
    e("v_mov_b32 v1, 0")
    e("v_lshlrev_b32 v2, 2, v0")
    e("v_cmp_gt_u32 vcc, 32, v0")
    e("s_and_saveexec_b64 s[44:45], vcc")
    e("buffer_store_dword v1, v2, s[28:31], s3 offen")
    e("s_mov_b64 exec, s[44:45]")
    e("s_cmp_eq_u32 s23, 15")
    e("s_cbranch_scc1 K1_ROLE_C")
    e("s_cmp_ge_u32 s23, 12")
    e("s_cbranch_scc1 K1_SETUP_B")
    e("s_lshl_b32 s21, s23, 8")
    e("s_sub_u32 s3, 1966080, s21")
    srd(e, 32, 12, "s3", add="s21")
    srd(e, 36, 14, "s3", add="s21")
    e("s_mov_b32 s40, 3072")
    e("s_branch K1_GEMM")
    e.label("K1_SETUP_B")
    e("s_sub_u32 s21, s23, 12")
    e("s_lshl_b32 s21, s21, 9")
    e("s_sub_u32 s3, 819200, s21")
    srd(e, 32, 6, "s3", add="s21")
    e("s_add_u32 s21, s21, 256")
    e("s_sub_u32 s3, 819200, s21")
    srd(e, 36, 6, "s3", add="s21")
    e("s_mov_b32 s40, 1280")
    e.label("K1_GEMM")
    e("s_lshl_b32 s41, s40, 2")
    e("s_lshl_b32 s44, s40, 6")
    e("s_lshl_b32 s45, s40, 3")
    e("s_mul_i32 s45, s45, s20")
    e("s_mul_i32 s46, s22, 163840")
    e("s_lshl_b32 s47, s20, 10")
    e("s_lshl_b32 s48, s20, 11")
    e("s_add_u32 s48, s48, 16384")
    e("s_lshr_b32 s49, s20, 2")
    e("s_and_b32 s50, s20, 3")
    e("s_and_b32 s51, s20, 1")
    e("v_lshrrev_b32 v3, 3, v0")
    e("s_lshl_b32 s3, s20, 3")
    e("v_add_u32 v3, s3, v3")
    e("v_mul_u32_u24 v3, 0x500, v3")
    e("v_lshrrev_b32 v4, 4, v0")
    e("s_lshl_b32 s3, s51, 2")
    e("v_add_u32 v4, s3, v4")
    e("v_and_b32 v4, 7, v4")
    e("v_and_b32 v5, 7, v0")
    e("v_xor_b32 v4, v4, v5")
    e("v_lshl_add_u32 v2, v4, 4, v3")
    e("v_lshrrev_b32 v4, 4, v0")
    e("v_mul_lo_u32 v3, v4, s40")
    e("v_lshlrev_b32 v4, 2, v4")
    e("v_and_b32 v5, 15, v0")
    e("v_xor_b32 v4, v4, v5")
    e("v_lshl_add_u32 v1, v4, 4, v3")
    e("s_mov_b32 s52, 0")
    def dma():
        g = []
        for m in range(2):
            g.append([f"s_add_u32 s53, s52, s47",
                      f"s_add_u32 m0, s53, {m*8192}",
                      f"s_add_u32 s3, s46, {m*81920}",
                      f"buffer_load_dwordx4 v2, s[24:27], s3 offen lds"])
        for ee in range(2):
            for u in range(2):
                g.append([f"s_add_u32 s53, s52, s48",
                          f"s_add_u32 m0, s53, {u*16384 + ee*1024}",
                          (f"s_add_u32 s3, s45, s41" if ee else "s_mov_b32 s3, s45"),
                          f"buffer_load_dwordx4 v1, s[{32+4*u}:{35+4*u}], s3 offen lds"])
        g[-1] += ["s_add_u32 s45, s45, s44", "s_add_u32 s46, s46, 128",
                  "s_add_u32 s52, s52, 49152", "s_cmp_ge_u32 s52, 147456", "s_cselect_b32 s3, 147456, 0", "s_sub_u32 s52, s52, s3"]
        return g
    for st in range(3):
        for grp in dma():
            for ins in grp: e(ins)
    e("v_and_b32 v3, 31, v0")
    e("s_lshl_b32 s3, s49, 6")
    e("v_add_u32 v3, s3, v3")
    e("v_lshrrev_b32 v4, 1, v3")
    e("v_and_b32 v4, 7, v4")
    e("v_lshrrev_b32 v5, 5, v0")
    e("v_lshlrev_b32 v3, 7, v3")
    for ks in range(4):
        e(f"v_or_b32 v24, {ks*2}, v5")
        e("v_xor_b32 v24, v24, v4")
        e(f"v_lshl_add_u32 v{6+ks}, v24, 4, v3")
        e(f"v_mov_b32 v{11+ks}, v{6+ks}")
    e("v_bfe_u32 v3, v0, 2, 2")
    e("v_lshl_add_u32 v4, v5, 3, v3")
    e("v_lshlrev_b32 v4, 8, v4")
    e("v_bfe_u32 v24, v0, 4, 1")
    e("v_lshl_add_u32 v4, v24, 5, v4")
    e("v_and_b32 v24, 3, v0")
    e("v_lshl_add_u32 v4, v24, 3, v4")
    e("v_xor_b32 v24, s50, v3")
    e("v_lshl_add_u32 v10, v24, 6, v4")
    e("v_mov_b32 v15, v10")
    e("v_add_u32 v16, 49152, v6")
    e("v_add_u32 v17, 49152, v10")
    e("s_mov_b32 s54, 49152")
    ACC = lambda u, rt: 128 + (u*2+rt)*16
    XF = lambda p, rt: 32 + p*16 + rt*4
    WF = lambda p, u: 32 + p*16 + 8 + u*4
    for i in range(64): e(f"v_mov_b32 v{128+i}, 0")
    def reads(ks, nxt=False):
        p = ks & 1
        vx = 16 if nxt else 11 + ks
        vw = 17 if nxt else 15
        g = []
        for rt in range(2):
            g.append([f"ds_read_b128 {vr(XF(p,rt),4)}, v{vx} offset:{rt*4096}"])
        for u in range(2):
            for uu in range(2):
                g.append([f"ds_read_b64_tr_b16 {vr(WF(p,u)+uu*2,2)}, v{vw} offset:{16384+u*16384+(ks*16+uu*4)*256}"])
        return g
    stamp(e, 1)
    e("s_waitcnt vmcnt(12)")
    e("s_barrier")
    stamp(e, 2)
    for grp in reads(0):
        for ins in grp: e(ins)
    def stage(with_dma, first_dma_part):
        d = dma() if with_dma else []
        for ks in range(4):
            p = ks & 1
            if ks == 3:
                e(f"s_waitcnt vmcnt({6 if with_dma else 0}) lgkmcnt(0)")
                e("s_barrier")
                others = reads(0, nxt=True)
                others += d[0:2]
            else:
                e("s_waitcnt lgkmcnt(0)")
                others = reads(ks+1)
            mf = []
            for rt in range(2):
                for u in range(2):
                    a = ACC(u, rt)
                    mf.append(f"v_mfma_f32_32x32x16_bf16 {vr(a,16)}, {vr(WF(p,u),4)}, {vr(XF(p,rt),4)}, {vr(a,16)}")
            interleave(e, mf, others)
            if ks == 3:
                for grp in d[2:]:
                    for ins in grp: e(ins)
        for ks in range(4):
            e(f"v_add_u32 v{11+ks}, s54, v{6+ks}")
        e("v_mov_b32 v15, v17")
        e("s_add_u32 s54, s54, 49152"); e("s_cmp_ge_u32 s54, 147456"); e("s_cselect_b32 s3, 147456, 0"); e("s_sub_u32 s54, s54, s3")
        e("v_add_u32 v16, s54, v6")
        e("v_add_u32 v17, s54, v10")
    e("s_mov_b32 s55, 0")
    e.l.append(".p2align 6")
    e.label("K1_L1")
    stage(True, 0)
    e("s_add_u32 s55, s55, 1")
    e("s_cmp_lt_u32 s55, 7")
    e("s_cbranch_scc1 K1_L1")
    e.label("K1_L2")
    stage(False, 0)
    e("s_add_u32 s55, s55, 1")
    e("s_cmp_lt_u32 s55, 10")
    e("s_cbranch_scc1 K1_L2")
    stamp(e, 3)
    e("s_nop 15")
    e("s_cmp_ge_u32 s23, 12")
    e("s_cbranch_scc1 K1_EPI_B")
    e("s_lshl_b32 s3, s22, 2")
    e("s_lshl_b32 s21, s49, 1")
    e("s_add_u32 s3, s3, s21")
    e("s_mul_i32 s3, s3, 96")
    e("s_lshl_b32 s21, s23, 3")
    e("s_add_u32 s3, s3, s21")
    e("s_lshl_b32 s21, s50, 1")
    e("s_add_u32 s3, s3, s21")
    e("s_lshl_b32 s3, s3, 10")
    e(f"s_add_u32 s3, s3, {HBUF}")
    e(f"s_add_u32 s21, s3, {96*1024}")
    e("v_lshlrev_b32 v1, 4, v0")
    for rt in range(2):
        g = ACC(0, rt); u_ = ACC(1, rt)
        for i in range(16):
            e(f"v_max_f32 v{g+i}, 0, v{g+i}")
            e(f"v_mul_f32 v{g+i}, v{g+i}, v{u_+i}")
        d = 64 + rt*8
        for i in range(8):
            e(f"v_cvt_pk_bf16_f32 v{d+i}, v{g+2*i}, v{g+2*i+1}")
        for t in range(2):
            e(f"buffer_store_dwordx4 {vr(d+4*t,4)}, v1, s[28:31], {'s3' if rt==0 else 's21'} offen offset:{t*1024}")
    stamp(e, 4)
    stamp_flush(e, 5, 0, "s20", 2)
    e("s_endpgm")
    e.label("K1_EPI_B")
    e("s_sub_u32 s3, s23, 12")
    e("s_lshl_b32 s3, s3, 6")
    e("s_lshl_b32 s21, s50, 3")
    e("s_add_u32 s3, s3, s21")
    e("s_lshl_b32 s3, s3, 14")
    e("s_lshl_b32 s21, s22, 7")
    e("s_lshl_b32 s51, s49, 6")
    e("s_add_u32 s21, s21, s51")
    e("s_lshl_b32 s21, s21, 3")
    e("s_add_u32 s3, s3, s21")
    e("v_and_b32 v1, 31, v0")
    e("v_lshlrev_b32 v1, 3, v1")
    e("v_lshrrev_b32 v2, 5, v0")
    e("v_lshl_add_u32 v1, v2, 14, v1")
    e(f"s_mov_b32 s51, 0x{f2u(QSCALE):08x}")
    for u in range(2):
        if u == 1:
            e("s_cmp_eq_u32 s23, 14")
            e("s_cbranch_scc1 K1_END")
        for rt in range(2):
            a = ACC(u, rt)
            for i in range(16):
                e(f"v_mul_f32 v{a+i}, s51, v{a+i}")
            d = 64 + (u*2+rt)*8
            for i in range(8):
                e(f"v_cvt_pk_bf16_f32 v{d+i}, v{a+2*i}, v{a+2*i+1}")
            for g in range(4):
                e(f"s_add_u32 s21, s3, {(u*32+2*g)*16384}")
                e(f"buffer_store_dwordx2 {vr(d+2*g,2)}, v1, s[28:31], s21 offen offset:{rt*256}")
    e("s_endpgm")

    e.label("K1_ROLE_C")
    srd(e, 32, 8, 25600)
    srd(e, 36, 10, 25600)
    srd(e, 40, 16, 1280)
    e("s_and_b32 s3, s20, 3")
    e("s_lshl_b32 s21, s22, 2")
    e("s_add_u32 s21, s21, s3")
    e("s_lshl_b32 s44, s20, 6")
    e("v_add_u32 v3, s44, v0")
    e("v_lshlrev_b32 v4, 2, v3")
    for i in range(13):
        e(f"buffer_load_dword v{8+i}, v4, s[32:35], 0 offen offset:{(i%2)*2048}")
        e(f"buffer_load_dword v{33+i}, v4, s[36:39], 0 offen offset:{(i%2)*2048}")
        if i % 2 == 1: e("v_add_u32 v4, 4096, v4")
    e("v_lshlrev_b32 v4, 1, v3")
    for i in range(2):
        e(f"buffer_load_ushort v{58+i}, v4, s[40:43], 0 offen offset:{i*1024}")
    e("s_and_b32 s51, s20, 1")
    e("v_lshrrev_b32 v5, 3, v0")
    e("s_lshl_b32 s3, s20, 3")
    e("v_add_u32 v5, s3, v5")
    e("v_mul_u32_u24 v5, 0x500, v5")
    e("v_lshrrev_b32 v6, 4, v0")
    e("s_lshl_b32 s3, s51, 2")
    e("v_add_u32 v6, s3, v6")
    e("v_and_b32 v6, 7, v6")
    e("v_and_b32 v7, 7, v0")
    e("v_xor_b32 v6, v6, v7")
    e("v_lshl_add_u32 v62, v6, 4, v5")
    e("s_mul_i32 s46, s22, 163840")
    e("s_lshl_b32 s47, s20, 10")
    def cdma(kb):
        for m in range(2):
            e(f"s_add_u32 m0, s47, {81920 + (kb%4)*16384 + m*8192}")
            e(f"s_add_u32 s3, s46, {m*81920 + kb*128}")
            e("buffer_load_dwordx4 v62, s[24:27], s3 offen lds")
    for kb in range(3): cdma(kb)
    e("v_mov_b32 v224, 0"); e("v_mov_b32 v225, 0"); e("v_mov_b32 v226, 0"); e("v_mov_b32 v227, 0")
    e("v_lshlrev_b32 v4, 4, v3")
    for i in range(8):
        e(f"ds_write_b128 v4, v[224:227] offset:{i*8192}")
    e("v_add_u32 v5, 65536, v4")
    for i in range(2):
        e(f"ds_write_b128 v5, v[224:227] offset:{i*8192}")
    e("s_waitcnt lgkmcnt(0)")
    e("s_barrier")
    e("s_mov_b32 s3, 0xCCCCCCCD")
    e("s_waitcnt vmcnt(6)")
    for i in range(13):
        e(f"v_add_u32 v4, {512*i}, v3")
        e("v_mul_hi_u32 v5, v4, s3")
        e("v_lshrrev_b32 v5, 3, v5")
        e("v_mul_u32_u24 v6, 10, v5")
        e("v_sub_u32 v6, v4, v6")
        e("v_lshlrev_b32 v5, 6, v5")
        e("v_lshl_add_u32 v5, v6, 2, v5")
        if i == 12:
            e("v_cmp_gt_u32 vcc, 256, v3")
            e("s_and_saveexec_b64 s[44:45], vcc")
        e(f"ds_write_b32 v5, v{8+i}")
        e(f"ds_write_b32 v5, v{33+i} offset:40960")
        if i == 12:
            e("s_mov_b64 exec, s[44:45]")
    e("v_lshlrev_b32 v4, 6, v3")
    e("ds_write_b16 v4, v58 offset:44")
    e("v_cmp_gt_u32 vcc, 128, v3")
    e("s_and_saveexec_b64 s[44:45], vcc")
    e(f"ds_write_b16 v4, v59 offset:{44+32768}")
    e("s_mov_b64 exec, s[44:45]")
    e("s_waitcnt lgkmcnt(0)")
    e("s_barrier")
    e("v_bfe_u32 v3, v0, 2, 2")
    e("v_lshrrev_b32 v5, 5, v0")
    e("v_lshl_add_u32 v4, v5, 3, v3")
    e("v_lshlrev_b32 v4, 6, v4")
    e("v_bfe_u32 v6, v0, 4, 1")
    e("v_lshl_add_u32 v4, v6, 5, v4")
    e("v_and_b32 v6, 3, v0")
    e("v_lshl_add_u32 v4, v6, 3, v4")
    e(f"s_mul_i32 s48, s21, {KV_TILE}")
    e(f"s_add_u32 s48, s48, {KVBUF}")
    e("v_lshlrev_b32 v1, 4, v0")
    e("v_lshlrev_b32 v2, 3, v0")
    e("v_mov_b32 v60, 0x3f803f80")
    e("v_mov_b32 v61, 0")
    KA = 224
    e("v_and_b32 v5, 31, v0")
    e("s_and_b32 s44, s20, 3")
    e("s_lshl_b32 s44, s44, 5")
    e("v_add_u32 v5, s44, v5")
    e("v_lshrrev_b32 v6, 1, v5")
    e("v_and_b32 v6, 7, v6")
    e("v_lshrrev_b32 v7, 5, v0")
    e("v_lshlrev_b32 v5, 7, v5")
    e("v_add_u32 v5, 81920, v5")
    for ks in range(4):
        e(f"v_or_b32 v24, {ks*2}, v7")
        e("v_xor_b32 v24, v24, v6")
        e(f"v_lshl_add_u32 v{64+ks}, v24, 4, v5")
    e("s_cmp_ge_u32 s20, 4")
    e("s_cbranch_scc1 K1_C_V")
    def body(isV):
        for kb in range(10):
            e(f"s_waitcnt vmcnt({2*min(2, 9-kb)})")
            e("s_barrier")
            if kb + 3 < 10: cdma(kb+3)
            for ks in range(4):
                k = kb*4 + ks
                e(f"ds_read_b128 {vr(72+ks*4,4)}, v{64+ks} offset:{(kb%4)*16384}")
                e(f"ds_read_b64_tr_b16 {vr(8+ks*4,2)}, v4 offset:{k*1024}")
                e(f"ds_read_b64_tr_b16 {vr(10+ks*4,2)}, v4 offset:{k*1024+256}")
            for ks in range(4):
                e(f"s_waitcnt lgkmcnt({9-3*ks})")
                ck = "0" if (kb == 0 and ks == 0) else vr(KA, 16)
                if isV: e(f"v_mfma_f32_32x32x16_bf16 {vr(KA,16)}, {vr(72+ks*4,4)}, {vr(8+ks*4,4)}, {ck}")
                else:   e(f"v_mfma_f32_32x32x16_bf16 {vr(KA,16)}, {vr(8+ks*4,4)}, {vr(72+ks*4,4)}, {ck}")
        e("s_nop 15")
    body(False)
    for i in range(6):
        e(f"v_cvt_pk_bf16_f32 v{8+i}, v{KA+2*i}, v{KA+2*i+1}")
    e(f"v_mul_f32 v20, 0xbfb8aa3b, v{KA+10}")
    e("v_exp_f32 v20, v20")
    e("s_nop 0")
    e("v_add_f32 v20, 1.0, v20")
    e("v_rcp_f32 v20, v20")
    e("v_cmp_le_u32 vcc, 32, v0")
    e("s_nop 1")
    e("v_cndmask_b32 v12, v12, v60, vcc")
    e("v_cndmask_b32 v13, v13, v61, vcc")
    e("buffer_store_dwordx4 v[8:11], v1, s[28:31], s48 offen")
    e("buffer_store_dwordx2 v[12:13], v2, s[28:31], s48 offen offset:1024")
    e("s_lshl_b32 s44, s21, 7")
    e(f"s_add_u32 s44, s44, {GBUF - 128}")
    e("v_lshlrev_b32 v23, 2, v0")
    e("s_and_saveexec_b64 s[46:47], vcc")
    e("buffer_store_dword v20, v23, s[28:31], s44 offen")
    e("s_endpgm")
    e.label("K1_C_V")
    e("v_add_u32 v4, 40960, v4")
    body(True)
    e("v_and_b32 v23, 31, v0")
    e("v_cmp_eq_u32 vcc, 20, v23")
    for i in range(8):
        e(f"v_cvt_pk_bf16_f32 v{24+i}, v{KA+2*i}, v{KA+2*i+1}")
    for i in range(8):
        e(f"v_cndmask_b32 v{24+i}, v{24+i}, v60, vcc")
    e("buffer_store_dwordx4 v[24:27], v1, s[28:31], s48 offen offset:1536")
    e("buffer_store_dwordx4 v[28:31], v1, s[28:31], s48 offen offset:2560")
    stamp(e, 4)
    stamp_flush(e, 5, 0, "s20", 2)
    e.label("K1_END")
    e("s_endpgm")
    return name, 240, 147456, 256, 512
```

```python
from common import *

RING = 4 * 14336
def div20(e, vdst_q, vdst_r, vsrc, stmp):
    e(f"s_mov_b32 {stmp}, 0xCCCCCCCD")
    e(f"v_mul_hi_u32 v{vdst_q}, v{vsrc}, {stmp}")
    e(f"v_lshrrev_b32 v{vdst_q}, 4, v{vdst_q}")
    e(f"v_mul_u32_u24 v{vdst_r}, 20, v{vdst_q}")
    e(f"v_sub_u32 v{vdst_r}, v{vsrc}, v{vdst_r}")

def splitk_gemm(e, pfx, ksteps, nslab, srdW, srdWS, s_slab, barrier_every=None, barrier_count=0):
    n = len(ksteps)
    XR = lambda k: 40 + (k % nslab) * 4
    def issue(k):
        vs, wo, xo = ksteps[k]
        slab = (k % nslab) * 5120
        e(f"s_add_u32 s62, s60, {wo}")
        for i in range(5):
            e(f"s_add_u32 m0, {s_slab}, {slab + i*1024}")
            e("s_nop 0")
            e(f"buffer_load_dwordx4 v{1+vs*5+i}, {sr(srdW,4)}, s62 offen lds")
        e(f"s_add_u32 s63, s61, {xo}")
        e(f"buffer_load_dwordx4 {vr(XR(k),4)}, v12, {sr(srdWS,4)}, s63 offen")
    pre = min(nslab - 1, n)
    for k in range(pre):
        issue(k)
    nb = 0
    for k in range(n):
        if barrier_every and k % barrier_every == 0 and nb < barrier_count:
            e("s_barrier"); nb += 1
        issued = min(n, k + nslab - 1)
        e(f"s_waitcnt vmcnt({(issued - k - 1) * 6})")
        slab = (k % nslab) * 5120
        for nt in range(5):
            for uu in range(2):
                e(f"ds_read_b64_tr_b16 {vr(16+nt*4+uu*2,2)}, v11 offset:{slab + uu*2560 + nt*64}")
        if k + nslab - 1 < n:
            issue(k + nslab - 1)
        for nt in range(5):
            e(f"s_waitcnt lgkmcnt({8 - 2*nt})")
            cc = "0" if k == 0 else vr(80+nt*16, 16)
            e(f"v_mfma_f32_32x32x16_bf16 {vr(80+nt*16,16)}, {vr(16+nt*4,4)}, {vr(XR(k),4)}, {cc}")
    return nb

def gemm_addr_setup(e, s_slab, type2=False):
    for i in range(5):
        e(f"v_add_u32 v13, {i*64}, v0")
        div20(e, 14, 15, 13, "s62")
        e("v_lshlrev_b32 v15, 4, v15")
        e(f"v_mad_u32_u24 v{1+i}, v14, s59, v15")
        if type2:
            e("v_bfe_u32 v13, v14, 2, 1")
            e("v_lshrrev_b32 v36, 3, v14")
            e("v_lshl_add_u32 v13, v13, 1, v36")
            e("v_mul_u32_u24 v13, 20, v13")
            e("v_and_b32 v36, 3, v14")
            e("v_add_u32 v13, v13, v36")
            e(f"v_mad_u32_u24 v{6+i}, v13, s59, v15")
    e("v_bfe_u32 v13, v0, 2, 2")
    e("v_lshrrev_b32 v14, 5, v0")
    e("v_lshl_add_u32 v13, v14, 2, v13")
    e("v_mul_u32_u24 v13, 320, v13")
    e("v_bfe_u32 v14, v0, 4, 1")
    e("v_lshl_add_u32 v13, v14, 5, v13")
    e("v_and_b32 v14, 3, v0")
    e("v_lshl_add_u32 v13, v14, 3, v13")
    e(f"v_add_u32 v11, {s_slab}, v13")
    e("v_lshlrev_b32 v12, 4, v0")

def reduce_write(e, s_slab):
    e("s_nop 15")
    e(f"v_add_u32 v13, {s_slab}, v12")
    for q in range(20):
        e(f"ds_write_b128 v13, {vr(80+q*4,4)} offset:{q*1024}")
    e("s_waitcnt lgkmcnt(0)")
    e("s_barrier")

def reduce_read(e, area_stride, s_base, wait="lgkmcnt(0)"):
    e(f"v_add_u32 v13, {s_base}, v12")
    e(f"v_add_u32 v14, {2*area_stride}, v13")
    for p in range(4):
        for q in range(5):
            e(f"ds_read_b128 {vr(80+(p*5+q)*4,4)}, v{13 + p//2} offset:{(p%2)*area_stride + q*1024}")
    e(f"s_waitcnt {wait}")
    for p in range(1, 4):
        for i in range(20):
            e(f"v_add_f32 v{80+i}, v{80+i}, v{80+p*20+i}")

def gen_k2(e):
    name = "k2_kernel"
    kernel_head(e, name)
    e("s_cmp_ge_u32 s2, 256")
    e("s_cbranch_scc1 K2_END")
    e("s_load_dwordx2 s[4:5], s[0:1], 64")
    e("s_load_dwordx2 s[6:7], s[0:1], 96")
    e("s_load_dwordx2 s[8:9], s[0:1], 32")
    e("s_load_dwordx4 s[12:15], s[0:1], 80")
    e("v_lshrrev_b32 v1, 6, v0")
    e("v_and_b32 v0, 63, v0")
    e("s_nop 0")
    e("v_readfirstlane_b32 s20, v1")
    e("s_lshr_b32 s21, s2, 2")
    e("s_and_b32 s22, s2, 3")
    e("s_waitcnt lgkmcnt(0)")
    srd(e, 28, 6, WS_END)
    stamp(e, 0)
    e("s_mov_b32 s79, s20")
    e("s_cmp_ge_u32 s20, 8")
    e("s_cbranch_scc1 K2_GEMM")
    import os
    if os.environ.get("NOATTN"): e("s_endpgm")
    S = [16, 32]; O = 48; P = 64; Q1 = 72; Q2 = 76
    K1 = lambda p: 80 + p*8
    K2 = lambda p: 84 + p*8
    V = lambda p, t: 96 + p*8 + t*4
    e("s_lshl_b32 s23, s22, 3")
    e("s_add_u32 s23, s23, s20")
    e("s_mul_i32 s3, s23, 81920")
    e("s_lshl_b32 s24, s21, 8")
    e("s_add_u32 s3, s3, s24")
    e("v_and_b32 v1, 31, v0")
    e("v_lshlrev_b32 v1, 3, v1")
    e("v_lshrrev_b32 v2, 5, v0")
    e("v_lshl_add_u32 v2, v2, 14, v1")
    e("s_add_u32 s24, s3, 32768")
    e("s_add_u32 s25, s3, 65536")
    e(f"buffer_load_dwordx2 {vr(Q1,2)}, v2, s[28:31], s3 offen")
    e(f"buffer_load_dwordx2 {vr(Q1+2,2)}, v2, s[28:31], s24 offen")
    e(f"buffer_load_dwordx2 {vr(Q2,2)}, v1, s[28:31], s25 offen")
    e("v_lshrrev_b32 v13, 1, v1")
    e("s_lshl_b32 s24, s21, 7")
    e(f"s_add_u32 s24, s24, {GBUF}")
    e("buffer_load_dword v13, v13, s[28:31], s24 offen")
    e("v_lshlrev_b32 v3, 4, v0")
    e("v_lshlrev_b32 v4, 3, v0")
    e("s_lshl_b32 s26, s20, 11")
    e(f"s_add_u32 s27, s26, {KVBUF}")
    def emit_dma(tag):
        e("s_cmp_eq_u32 s20, 7")
        e(f"s_cbranch_scc1 K2_SK{tag}")
        e("s_mov_b32 m0, s36")
        e("s_add_u32 s3, s37, 1024")
        e("buffer_load_dwordx4 v3, s[28:31], s37 offen lds")
        e("s_add_u32 m0, s36, 1024")
        e("s_nop 0")
        e("buffer_load_dwordx4 v3, s[28:31], s3 offen lds")
        e.label(f"K2_SK{tag}")
        e("s_add_u32 s37, s37, 14336")
        e("s_add_u32 s36, s36, 14336")
        e(f"s_cmp_ge_u32 s36, {RING}")
        e(f"s_cselect_b32 s3, {RING}, 0")
        e("s_sub_u32 s36, s36, s3")
    e("s_mov_b32 s36, s26")
    e("s_mov_b32 s37, s27")
    emit_dma("a"); emit_dma("b")
    for r in (K2(0)+2, K2(0)+3, K2(1)+2, K2(1)+3, Q2+2, Q2+3, P+4, P+5, P+6, P+7, V(1,1), V(1,1)+1, V(1,1)+2, V(1,1)+3):
        e(f"v_mov_b32 v{r}, 0")
    for i in range(16):
        e(f"v_mov_b32 v{O+i}, 0")
    e("v_cmp_le_u32 s[32:33], 32, v0")
    e("v_mov_b32 v8, v3"); e("v_mov_b32 v9, v4")
    e("v_add_u32 v10, 14336, v3"); e("v_add_u32 v11, 14336, v4")
    e("s_mov_b32 s38, 28672")
    e("s_waitcnt vmcnt(2)")
    e("s_cmp_eq_u32 s20, 7")
    e("s_cbranch_scc0 K2_W7")
    e("s_waitcnt vmcnt(0)")
    e.label("K2_W7")
    e("s_barrier")
    stamp(e, 1)
    emit_dma("c")
    e(f"v_cndmask_b32 v{Q2}, v{Q2}, 0, s[32:33]")
    e(f"v_cndmask_b32 v{Q2+1}, v{Q2+1}, 0, s[32:33]")
    def rdK(t):
        p = t & 1; a16 = 8 if t < 4 else 10; off = (t % 4) * KV_TILE
        return [f"ds_read_b128 {vr(K1(p),4)}, v{a16} offset:{off}",
                f"ds_read_b64 {vr(K2(p),2)}, v{a16+1} offset:{off+1024}"]
    def rdV(t):
        p = t & 1; a16 = 8 if t < 4 else 10; off = (t % 4) * KV_TILE
        return [f"ds_read_b128 {vr(V(p,0),4)}, v{a16} offset:{off+1536}",
                f"ds_read_b128 {vr(V(p,1),4)}, v{a16} offset:{off+2560}"]
    for ins in rdK(0) + rdK(1) + rdV(0): e(ins)
    e("s_waitcnt lgkmcnt(0)")
    def qk(t, which):
        p = t & 1; s = S[t & 1]
        if which == 0:
            return f"v_mfma_f32_32x32x16_bf16 {vr(s,16)}, {vr(K1(p),4)}, {vr(Q1,4)}, 0"
        return f"v_mfma_f32_32x32x16_bf16 {vr(s,16)}, {vr(K2(p),4)}, {vr(Q2,4)}, {vr(s,16)}"
    def set_fold(src16, running=None):
        e(f"v_max3_f32 v5, v{src16}, v{src16+1}, v{src16+2}")
        for i in range(3, 15, 2):
            e(f"v_max3_f32 v5, v5, v{src16+i}, v{src16+i+1}")
        e(f"v_max_f32 v5, v5, v{src16+15}")
    def fold_from_v5():
        e("v_mov_b32 v6, v5")
        e("s_nop 1")
        e("v_permlane32_swap_b32 v5, v6")
        e("s_nop 1")
        e("v_max_f32 v5, v5, v6")
        e("v_sub_f32 v5, 0, v5")
        e("v_cvt_pk_bf16_f32 v6, v5, v5")
        e("v_lshlrev_b32 v6, 16, v6")
        e("v_sub_f32 v6, v5, v6")
        e("v_cvt_pk_bf16_f32 v6, v5, v6")
        e(f"v_cndmask_b32 v{Q2}, v{Q2}, v6, s[32:33]")
        e("s_nop 1")
    e(qk(0, 0)); e(qk(0, 1))
    e("s_nop 15")
    set_fold(S[0])
    fold_from_v5()
    e(qk(0, 0)); e(qk(0, 1))
    e("s_mov_b32 s39, 0")
    e("s_nop 7")
    def pv(t, h):
        p = t & 1
        return f"v_mfma_f32_32x32x16_bf16 {vr(O,16)}, {vr(V(p,h),4)}, {vr(P+4*h,4)}, {vr(O,16)}"
    def grp(s, q):
        for i in range(4):
            e(f"v_exp_f32 v{s+4*q+i}, v{s+4*q+i}")
        e(f"v_cvt_pk_bf16_f32 v{P+2*q}, v{s+4*q}, v{s+4*q+1}")
        e(f"v_cvt_pk_bf16_f32 v{P+2*q+1}, v{s+4*q+2}, v{s+4*q+3}")
    stamp(e, 2)
    if "prio" in os.environ.get("VAR", ""):
        e("s_cmp_ge_u32 s20, 4")
        e("s_cbranch_scc0 K2_NP")
        e("s_setprio 1")
        e.label("K2_NP")
    if "late" in os.environ.get("VAR", ""):
        for r in range(12, 16): e(f"v_mov_b32 v{S[1]+r}, 0")
    e.l.append(".p2align 6")
    e.label("K2_LOOP")
    VAR = os.environ.get("VAR", "")
    def ex(s, q):
        for i in range(4):
            e(f"v_exp_f32 v{s+4*q+i}, v{s+4*q+i}")
    def cv(s, q):
        e(f"v_cvt_pk_bf16_f32 v{P+2*q}, v{s+4*q}, v{s+4*q+1}")
        e(f"v_cvt_pk_bf16_f32 v{P+2*q+1}, v{s+4*q+2}, v{s+4*q+3}")
    for i in range(4):
        s = S[i & 1]; sp = S[(i+1) & 1]
        def upd():
            e("v_mov_b32 v8, v10"); e("v_mov_b32 v9, v11")
            e("v_add_u32 v10, s38, v3"); e("v_add_u32 v11, s38, v4")
            e("s_add_u32 s38, s38, 14336")
            e(f"s_cmp_ge_u32 s38, {RING}")
            e(f"s_cselect_b32 s3, {RING}, 0")
            e("s_sub_u32 s38, s38, s3")
            e("s_add_u32 s39, s39, 1")
        def head():
            if "tog" in VAR: e(f"s_setprio {(3 - ((i+2)%4)) if 'tog3' not in VAR else (2 - ((i+2)%4)*2//3)}")
            if i == 2 and "nobar" not in VAR:
                e("s_waitcnt vmcnt(2) lgkmcnt(0)")
                e("s_barrier")
            else:
                e("s_waitcnt lgkmcnt(0)")
        if "late" in VAR:
            head()
            for ins in rdK(i+2): e(ins if "nords" not in VAR else "s_nop 0")
            ex(s, 0)
            cv(sp, 3)
            e(qk(i+1, 0)) if False else None
            if i == 2 and "nobar" not in VAR: emit_dma("d")
            else: e("s_nop 0")
            e(pv(i+1, 1))
            for ins in rdV(i+1): e(ins if ("nords" not in VAR and "norv" not in VAR) else "s_nop 0")
            ex(s, 1); cv(s, 0)
            e(qk(i+1, 0))
            if i == 3: upd()
            ex(s, 2); cv(s, 1)
            e(qk(i+1, 1))
            ex(s, 3); cv(s, 2)
            e(pv(i, 0))
        else:
            head()
            for ins in rdK(i+2): e(ins)
            e(pv(i+1, 1))
            for ins in rdV(i+1): e(ins)
            if i == 2 and "nobar" not in VAR:
                emit_dma("d")
            grp(s, 0)
            e(qk(i+1, 0))
            grp(s, 1)
            e(qk(i+1, 1))
            if i == 3: upd()
            grp(s, 2)
            e(pv(i, 0))
            grp(s, 3)
    e("s_cmp_lt_u32 s39, 16")
    e("s_cbranch_scc1 K2_LOOP")
    stamp(e, 3)
    if "late" in VAR: cv(S[1], 3)
    e("s_nop 1")
    e(pv(63, 1))
    e("s_nop 15")
    e(f"v_max3_f32 v5, |v{O}|, |v{O+1}|, |v{O+2}|")
    for i in range(3, 11, 2):
        e(f"v_max3_f32 v5, v5, |v{O+i}|, |v{O+i+1}|")
    e(f"v_max_f32 v5, v5, |v{O+11}|")
    e("s_mov_b32 s3, 0x7b800000")
    e("v_cmp_nlt_f32 vcc, v5, s3") if False else None
    e("v_mov_b32 v7, s3")
    e("v_cmp_nlt_f32 s[34:35], v5, v7")
    e(f"v_mov_b32 v5, v{O+8}")
    e(f"v_mov_b32 v6, v{O+8}")
    e("s_nop 1")
    e("v_permlane32_swap_b32 v5, v6")
    e("v_mov_b32 v7, 0x53800000")
    e("s_nop 0")
    e("v_cmp_nlt_f32 vcc, v6, v7")
    e("s_nop 1")
    e("s_or_b64 vcc, vcc, s[34:35]")
    e("s_cbranch_vccnz K2_FALLBACK")
    e.label("K2_NORM")
    e("v_rcp_f32 v6, v6")
    e("s_nop 0")
    e("v_mul_f32 v6, v6, v13")
    for i in range(12):
        e(f"v_mul_f32 v{O+i}, v{O+i}, v6")
    for i in range(6):
        e(f"v_cvt_pk_bf16_f32 v{P+i}, v{O+2*i}, v{O+2*i+1}")
    e("s_mul_i32 s3, s21, 40")
    e("s_add_u32 s24, s3, s23")
    e("s_lshl_b32 s24, s24, 10")
    e(f"s_add_u32 s24, s24, {OBUF}")
    e(f"buffer_store_dwordx4 {vr(P,4)}, v3, s[28:31], s24 offen sc1")
    e("s_lshr_b32 s25, s23, 2")
    e("s_add_u32 s3, s3, s25")
    e("s_add_u32 s3, s3, 32")
    e("s_lshl_b32 s3, s3, 10")
    e("s_bfe_u32 s25, s23, 0x10001")
    e("s_lshl_b32 s25, s25, 9")
    e("s_add_u32 s3, s3, s25")
    e("s_and_b32 s25, s23, 1")
    e("s_lshl_b32 s25, s25, 3")
    e("s_add_u32 s3, s3, s25")
    e(f"s_add_u32 s3, s3, {OBUF}")
    e("s_mov_b32 exec_hi, 0")
    e(f"buffer_store_dwordx2 {vr(P+4,2)}, v3, s[28:31], s3 offen sc1")
    e("s_waitcnt vmcnt(0)")
    e("s_barrier")
    stamp(e, 4)
    stamp_flush(e, 7, 1, "s79", 5)
    e("s_endpgm")
    e.label("K2_FALLBACK")
    e(f"v_cndmask_b32 v{Q2}, v{Q2}, 0, s[32:33]")
    e("v_mov_b32 v12, 0xff800000")
    e(f"s_mov_b32 s3, {KVBUF}")
    e.label("K2_FB1")
    e(f"buffer_load_dwordx4 {vr(K1(0),4)}, v3, s[28:31], s3 offen")
    e(f"buffer_load_dwordx2 {vr(K2(0),2)}, v4, s[28:31], s3 offen offset:1024")
    e("s_waitcnt vmcnt(0)")
    e(qk(0, 0)); e(qk(0, 1))
    e("s_nop 15")
    set_fold(S[0])
    e("v_max_f32 v12, v12, v5")
    e(f"s_add_u32 s3, s3, {KV_TILE}")
    e(f"s_cmp_lt_u32 s3, {KVBUF + 64*KV_TILE}")
    e("s_cbranch_scc1 K2_FB1")
    e("v_mov_b32 v5, v12")
    fold_from_v5()
    for i in range(16):
        e(f"v_mov_b32 v{O+i}, 0")
    e(f"s_mov_b32 s3, {KVBUF}")
    e.label("K2_FB2")
    e(f"buffer_load_dwordx4 {vr(K1(0),4)}, v3, s[28:31], s3 offen")
    e(f"buffer_load_dwordx2 {vr(K2(0),2)}, v4, s[28:31], s3 offen offset:1024")
    e(f"buffer_load_dwordx4 {vr(V(0,0),4)}, v3, s[28:31], s3 offen offset:1536")
    e(f"buffer_load_dwordx4 {vr(V(0,1),4)}, v3, s[28:31], s3 offen offset:2560")
    e("s_waitcnt vmcnt(0)")
    e(qk(0, 0)); e(qk(0, 1))
    e("s_nop 15")
    for q in range(4): grp(S[0], q)
    e("s_nop 1")
    e(pv(2, 0)); e(pv(2, 1))
    e(f"s_add_u32 s3, s3, {KV_TILE}")
    e(f"s_cmp_lt_u32 s3, {KVBUF + 64*KV_TILE}")
    e("s_cbranch_scc1 K2_FB2")
    e("s_nop 15")
    e(f"v_mov_b32 v5, v{O+8}")
    e(f"v_mov_b32 v6, v{O+8}")
    e("s_nop 1")
    e("v_permlane32_swap_b32 v5, v6")
    e("s_nop 1")
    e("s_branch K2_NORM")
    e.label("K2_GEMM")
    import os
    if os.environ.get("NOGEMM"): e("s_endpgm")
    NS = 5
    srd(e, 32, 4, 1966080)
    srd(e, 36, 8, 819200)
    srd(e, 40, 12, 2621440)
    srd(e, 44, 14, 256)
    e("s_sub_u32 s20, s20, 8")
    e(f"s_mul_i32 s58, s20, {NS*5120}")
    e(f"s_add_u32 s58, s58, {RING}")
    e("s_mov_b32 s59, 1280")
    gemm_addr_setup(e, "s58", type2=True)
    e("v_and_b32 v13, 31, v0")
    e("v_lshlrev_b32 v13, 2, v13")
    e("s_lshl_b32 s3, s21, 7")
    e(f"s_add_u32 s3, s3, {GBUF}")
    e("buffer_load_dword v160, v13, s[28:31], s3 offen")
    e("s_mul_i32 s60, s20, 491520")
    e("s_mul_i32 s3, s22, 320")
    e("s_add_u32 s60, s60, s3")
    e("s_mul_i32 s61, s21, 96")
    e("s_mul_i32 s3, s20, 24")
    e("s_add_u32 s61, s61, s3")
    e("s_lshl_b32 s61, s61, 10")
    e(f"s_add_u32 s61, s61, {HBUF}")
    ks = [(0, k*20480, k*1024) for k in range(24)]
    nb = splitk_gemm(e, "K2", ks, NS, 32, 28, "s58", barrier_every=2, barrier_count=12)
    assert nb == 12
    stamp(e, 1)
    e("s_mul_i32 s60, s22, 320")
    e("s_mul_i32 s3, s20, 204800")
    e("s_add_u32 s60, s60, s3")
    wk = [(0, k*20*1280) for k in range(8)] + [(1, (k*80+16)*1280) for k in range(2)]
    def wslab(k):
        vs, wo_ = wk[k]
        e(f"s_add_u32 s62, s60, {wo_}")
        for i in range(5):
            e(f"s_add_u32 m0, s58, {(k % NS)*5120 + i*1024}")
            e("s_nop 0")
            e(f"buffer_load_dwordx4 v{1+vs*5+i}, s[36:39], s62 offen lds")
    e("s_barrier")
    for k in range(NS): wslab(k)
    e("s_barrier")
    for k in range(NS, 10):
        vs, wo_ = wk[k]
        e(f"s_add_u32 s62, s60, {wo_}")
        for i in range(5):
            e(f"buffer_load_dwordx4 v[40:43], v{1+vs*5+i}, s[36:39], s62 offen")
    e("s_barrier")
    e("v_sub_f32 v160, 1.0, v160")
    e("s_nop 7")
    for i in range(80):
        e(f"v_mul_f32 v{80+i}, v{80+i}, v160")
    def rdw(k):
        base = 16 if k % 2 == 0 else 60
        slab = (k % NS) * 5120
        for nt in range(5):
            for uu in range(2):
                e(f"ds_read_b64_tr_b16 {vr(base+nt*4+uu*2,2)}, v11 offset:{slab + uu*2560 + nt*64}")
    for i in range(2): e("s_barrier")
    e("s_waitcnt vmcnt(0)")
    rdw(0)
    e("s_barrier")
    stamp(e, 2)
    e("v_mov_b32 v13, 0")
    e("s_cmp_lg_u32 s20, 0")
    e("s_cbranch_scc1 K2_POLL0")
    e("s_lshl_b32 s62, s2, 7")
    e(f"s_add_u32 s62, s62, {FLAG}")
    e("v_mov_b32 v14, 1")
    e("s_mov_b64 exec, 1")
    e("buffer_store_dword v14, v13, s[28:31], s62 offen sc1")
    e("s_mov_b64 exec, -1")
    e.label("K2_POLL0")
    e("s_lshl_b32 s62, s21, 2")
    e("s_add_u32 s62, s62, s20")
    e("s_lshl_b32 s62, s62, 7")
    e(f"s_add_u32 s62, s62, {FLAG}")
    e("s_mov_b32 s63, 0")
    e("s_cmp_eq_u32 s20, s22")
    e("s_cbranch_scc1 K2_GO")
    e.label("K2_POLL")
    e("buffer_load_dword v14, v13, s[28:31], s62 offen sc1")
    e("s_waitcnt vmcnt(0)")
    e("v_readfirstlane_b32 s3, v14")
    e("s_cmp_eq_u32 s3, 1")
    e("s_cbranch_scc1 K2_GO")
    e("s_sleep 2")
    e("s_add_u32 s63, s63, 1")
    e("s_cmp_lt_u32 s63, 0x100000")
    e("s_cbranch_scc1 K2_POLL")
    e.label("K2_GO")
    stamp(e, 3)
    e("s_mul_i32 s61, s21, 40")
    e("s_lshl_b32 s61, s61, 10")
    e(f"s_add_u32 s61, s61, {OBUF}")
    e("s_lshl_b32 s3, s20, 11")
    e("s_add_u32 s63, s61, s3")
    e("s_add_u32 s63, s63, 32768")
    e("s_lshl_b32 s3, s20, 13")
    e("s_add_u32 s61, s61, s3")
    e("s_add_u32 s56, s61, 4096")
    XO = lambda k: 40 + (k % 5) * 4
    WS_ = lambda k: 16 if k % 2 == 0 else 60
    def xld(k):
        if k < 8: e(f"buffer_load_dwordx4 {vr(XO(k),4)}, v12, s[28:31], {'s61' if k < 4 else 's56'} offen offset:{(k%4)*1024} sc1")
        else:     e(f"buffer_load_dwordx4 {vr(XO(k),4)}, v12, s[28:31], s63 offen offset:{(k-8)*1024} sc1")
    for k in range(5): xld(k)
    for k in range(10):
        if k + 1 < 10:
            if k + 1 >= NS: e(f"s_waitcnt vmcnt({(min(9,k+4)-(k+1))*6 + 1})")
            rdw(k + 1)
        if k == 0:
            e("s_waitcnt vmcnt(0)")
            stamp(e, 7)
        elif k >= 5: e(f"s_waitcnt vmcnt({(9-k)*6})")
        e(f"s_waitcnt lgkmcnt({10 if k + 1 < 10 else 0})")
        for nt in range(5):
            e(f"v_mfma_f32_32x32x16_bf16 {vr(80+nt*16,16)}, {vr(WS_(k)+nt*4,4)}, {vr(XO(k),4)}, {vr(80+nt*16,16)}")
        if k + NS < 10:
            wslab(k + NS); xld(k + 5)
    stamp(e, 8)
    reduce_write(e, "s58")
    stamp(e, 9)
    e("s_mul_i32 s57, s20, 5120")
    e(f"s_add_u32 s57, s57, {RING}")
    reduce_read(e, NS*5120, "s57")
    for i in range(10):
        e(f"v_cvt_pk_bf16_f32 v{100+i}, v{80+2*i}, v{80+2*i+1}")
    e("v_and_b32 v13, 31, v0")
    e("v_mul_u32_u24 v13, 0x500, v13")
    e("v_lshrrev_b32 v14, 5, v0")
    e("v_lshl_add_u32 v13, v14, 3, v13")
    e("s_mul_i32 s3, s21, 40960")
    e("s_mul_i32 s62, s22, 320")
    e("s_add_u32 s3, s3, s62")
    e("s_mul_i32 s62, s20, 80")
    e("s_add_u32 s3, s3, s62")
    for q in range(5):
        e(f"buffer_store_dwordx2 {vr(100+2*q,2)}, v13, s[40:43], s3 offen offset:{q*16}")
    stamp(e, 4)
    stamp_flush(e, 5, 1, "s79", 13)
    e.label("K2_END")
    e("s_endpgm")
    return name, 168, RING + 4*NS*5120, 256, 768

def gen_k3(e):
    name = "k3_kernel"
    kernel_head(e, name)
    e("s_cmp_ge_u32 s2, 256")
    e("s_cbranch_scc1 K3_END")
    e("s_load_dwordx2 s[4:5], s[0:1], 32")
    e("s_load_dwordx2 s[6:7], s[0:1], 96")
    e("s_load_dwordx2 s[8:9], s[0:1], 80")
    e("v_lshrrev_b32 v1, 6, v0")
    e("v_and_b32 v0, 63, v0")
    e("s_nop 0")
    e("v_readfirstlane_b32 s20, v1")
    e("s_lshr_b32 s21, s2, 2")
    e("s_and_b32 s22, s2, 3")
    e("s_waitcnt lgkmcnt(0)")
    srd(e, 28, 6, WS_END)
    srd(e, 32, 4, 819200)
    srd(e, 36, 8, 2621440)
    stamp(e, 0)
    NS = 7
    e(f"s_mul_i32 s58, s20, {NS*5120}")
    e("s_mov_b32 s59, 1280")
    gemm_addr_setup(e, "s58", type2=True)
    e("s_mul_i32 s3, s2, 20480")
    e("s_mul_i32 s62, s20, 5120")
    e("s_add_u32 s3, s3, s62")
    e(f"s_add_u32 s3, s3, {BBUF}")
    e("s_add_u32 s62, s3, 4096")
    for q in range(5):
        if q < 4:
            e(f"buffer_load_dwordx4 {vr(160+q*4,4)}, v12, s[28:31], s3 offen offset:{q*1024}")
        else:
            e(f"buffer_load_dwordx4 {vr(160+q*4,4)}, v12, s[28:31], s62 offen")
    e("v_and_b32 v13, 31, v0")
    e("v_lshlrev_b32 v13, 2, v13")
    e("s_lshl_b32 s3, s21, 7")
    e(f"s_add_u32 s3, s3, {GBUF}")
    e("buffer_load_dword v180, v13, s[28:31], s3 offen")
    e("s_mul_i32 s60, s22, 320")
    e("s_mul_i32 s3, s20, 204800")
    e("s_add_u32 s60, s60, s3")
    e("s_mul_i32 s61, s21, 40")
    e("s_lshl_b32 s61, s61, 10")
    e(f"s_add_u32 s61, s61, {OBUF}")
    e("s_lshl_b32 s3, s20, 13")
    e("s_add_u32 s61, s61, s3")
    e("s_mul_i32 s3, s20, 6144")
    e("s_sub_u32 s56, 32768, s3")
    ks = [(0, k*20*1280, k*1024) for k in range(8)]
    ks += [(1, (k*80+16)*1280, None) for k in range(2)]
    ks2 = []
    for (a, b, c) in ks:
        ks2.append((a, b, c))
    e("s_add_u32 s55, s56, 1024")
    ks2[8] = (1, ks[8][1], "s56"); ks2[9] = (1, ks[9][1], "s55")
    stamp(e, 1)
    splitk_gemm(e, "K3", ks2, NS, 32, 28, "s58")
    stamp(e, 2)
    reduce_write(e, "s58")
    stamp(e, 3)
    e("s_mul_i32 s57, s20, 5120")
    reduce_read(e, NS*5120, "s57", wait="vmcnt(0) lgkmcnt(0)")
    e("v_sub_f32 v181, 1.0, v180")
    for i in range(20):
        e(f"v_mul_f32 v{160+i}, v181, v{160+i}")
        e(f"v_fma_f32 v{80+i}, v180, v{80+i}, v{160+i}")
    for i in range(10):
        e(f"v_cvt_pk_bf16_f32 v{100+i}, v{80+2*i}, v{80+2*i+1}")
    e("v_and_b32 v13, 31, v0")
    e("v_mul_u32_u24 v13, 0x500, v13")
    e("v_lshrrev_b32 v14, 5, v0")
    e("v_lshl_add_u32 v13, v14, 3, v13")
    e("s_mul_i32 s3, s21, 40960")
    e("s_mul_i32 s62, s22, 320")
    e("s_add_u32 s3, s3, s62")
    e("s_mul_i32 s62, s20, 80")
    e("s_add_u32 s3, s3, s62")
    for q in range(5):
        e(f"buffer_store_dwordx2 {vr(100+2*q,2)}, v13, s[36:39], s3 offen offset:{q*16}")
    stamp(e, 4)
    stamp_flush(e, 5, 2, "s20", 13)
    e.label("K3_END")
    e("s_endpgm")
    return name, 184, 4*NS*5120, 256, 256
```

```python
from common import *
import math
QSCALE = math.log2(math.e) / math.sqrt(20.0)
import struct
def f2u(f): return struct.unpack('<I', struct.pack('<f', f))[0]

def gen_k1(e):
    name = "k1_kernel"
    kernel_head(e, name)
    e("s_cmp_ge_u32 s2, 256")
    e("s_cbranch_scc1 K1_END")
    e("s_load_dwordx4 s[4:7], s[0:1], 0")
    e("s_load_dwordx4 s[8:11], s[0:1], 16")
    e("s_load_dwordx4 s[12:15], s[0:1], 48")
    e("s_load_dwordx2 s[16:17], s[0:1], 72")
    e("s_load_dwordx2 s[18:19], s[0:1], 96")
    e("s_load_dwordx2 s[60:61], s[0:1], 32")
    e("s_load_dwordx2 s[62:63], s[0:1], 64")
    e("v_lshrrev_b32 v1, 6, v0")
    e("v_and_b32 v0, 63, v0")
    e("s_nop 0")
    e("v_readfirstlane_b32 s20, v1")
    e("s_and_b32 s3, s2, 7")
    e("s_lshr_b32 s21, s2, 3")
    e("s_and_b32 s22, s3, 1")
    e("s_lshl_b32 s22, s22, 3")
    e("s_and_b32 s23, s21, 7")
    e("s_add_u32 s22, s22, s23")
    e("s_lshr_b32 s23, s3, 1")
    e("s_lshl_b32 s23, s23, 2")
    e("s_lshr_b32 s21, s21, 3")
    e("s_add_u32 s23, s23, s21")
    e("s_waitcnt lgkmcnt(0)")
    srd(e, 24, 4, 2621440)
    srd(e, 28, 18, WS_END)
    stamp(e, 0)
    e("s_lshl_b32 s3, s2, 7")
    e(f"s_add_u32 s3, s3, {FLAG}")
    e("v_mov_b32 v1, 0")
    e("v_lshlrev_b32 v2, 2, v0")
    e("v_cmp_gt_u32 vcc, 32, v0")
    e("s_and_saveexec_b64 s[44:45], vcc")
    e("buffer_store_dword v1, v2, s[28:31], s3 offen")
    e("s_mov_b64 exec, s[44:45]")
    e("s_cmp_eq_u32 s23, 15")
    e("s_cbranch_scc1 K1_ROLE_C")
    e("s_cmp_ge_u32 s23, 12")
    e("s_cbranch_scc1 K1_SETUP_B")
    e("s_lshl_b32 s21, s23, 8")
    e("s_sub_u32 s3, 1966080, s21")
    srd(e, 32, 12, "s3", add="s21")
    srd(e, 36, 14, "s3", add="s21")
    e("s_mov_b32 s40, 3072")
    e("s_branch K1_GEMM")
    e.label("K1_SETUP_B")
    e("s_sub_u32 s21, s23, 12")
    e("s_lshl_b32 s21, s21, 9")
    e("s_sub_u32 s3, 819200, s21")
    srd(e, 32, 6, "s3", add="s21")
    e("s_add_u32 s21, s21, 256")
    e("s_sub_u32 s3, 819200, s21")
    srd(e, 36, 6, "s3", add="s21")
    e("s_mov_b32 s40, 1280")
    e.label("K1_GEMM")
    e("s_mov_b32 s56, 1")
    e("s_cmp_ge_u32 s20, 8")
    e("s_cbranch_scc1 K1_HELP")
    e("s_lshl_b32 s41, s40, 2")
    e("s_lshl_b32 s44, s40, 6")
    e("s_lshl_b32 s45, s40, 3")
    e("s_mul_i32 s45, s45, s20")
    e("s_mul_i32 s46, s22, 163840")
    e("s_lshl_b32 s47, s20, 10")
    e("s_lshl_b32 s48, s20, 11")
    e("s_add_u32 s48, s48, 16384")
    e("s_lshr_b32 s49, s20, 2")
    e("s_and_b32 s50, s20, 3")
    e("s_and_b32 s51, s20, 1")
    e("v_lshrrev_b32 v3, 3, v0")
    e("s_lshl_b32 s3, s20, 3")
    e("v_add_u32 v3, s3, v3")
    e("v_mul_u32_u24 v3, 0x500, v3")
    e("v_lshrrev_b32 v4, 4, v0")
    e("s_lshl_b32 s3, s51, 2")
    e("v_add_u32 v4, s3, v4")
    e("v_and_b32 v4, 7, v4")
    e("v_and_b32 v5, 7, v0")
    e("v_xor_b32 v4, v4, v5")
    e("v_lshl_add_u32 v2, v4, 4, v3")
    e("v_lshrrev_b32 v4, 4, v0")
    e("v_mul_lo_u32 v3, v4, s40")
    e("v_lshlrev_b32 v4, 2, v4")
    e("v_and_b32 v5, 15, v0")
    e("v_xor_b32 v4, v4, v5")
    e("v_lshl_add_u32 v1, v4, 4, v3")
    e("s_mov_b32 s52, 0")
    def dma():
        g = []
        for m in range(2):
            g.append([f"s_add_u32 s53, s52, s47",
                      f"s_add_u32 m0, s53, {m*8192}",
                      f"s_add_u32 s3, s46, {m*81920}",
                      f"buffer_load_dwordx4 v2, s[24:27], s3 offen lds"])
        for ee in range(2):
            for u in range(2):
                g.append([f"s_add_u32 s53, s52, s48",
                          f"s_add_u32 m0, s53, {u*16384 + ee*1024}",
                          (f"s_add_u32 s3, s45, s41" if ee else "s_mov_b32 s3, s45"),
                          f"buffer_load_dwordx4 v1, s[{32+4*u}:{35+4*u}], s3 offen lds"])
        g[-1] += ["s_add_u32 s45, s45, s44", "s_add_u32 s46, s46, 128",
                  "s_add_u32 s52, s52, 49152", "s_cmp_ge_u32 s52, 147456", "s_cselect_b32 s3, 147456, 0", "s_sub_u32 s52, s52, s3"]
        return g
    for st in range(3):
        for grp in dma():
            for ins in grp: e(ins)
    e("v_and_b32 v3, 31, v0")
    e("s_lshl_b32 s3, s49, 6")
    e("v_add_u32 v3, s3, v3")
    e("v_lshrrev_b32 v4, 1, v3")
    e("v_and_b32 v4, 7, v4")
    e("v_lshrrev_b32 v5, 5, v0")
    e("v_lshlrev_b32 v3, 7, v3")
    for ks in range(4):
        e(f"v_or_b32 v24, {ks*2}, v5")
        e("v_xor_b32 v24, v24, v4")
        e(f"v_lshl_add_u32 v{6+ks}, v24, 4, v3")
        e(f"v_mov_b32 v{11+ks}, v{6+ks}")
    e("v_bfe_u32 v3, v0, 2, 2")
    e("v_lshl_add_u32 v4, v5, 3, v3")
    e("v_lshlrev_b32 v4, 8, v4")
    e("v_bfe_u32 v24, v0, 4, 1")
    e("v_lshl_add_u32 v4, v24, 5, v4")
    e("v_and_b32 v24, 3, v0")
    e("v_lshl_add_u32 v4, v24, 3, v4")
    e("v_xor_b32 v24, s50, v3")
    e("v_lshl_add_u32 v10, v24, 6, v4")
    e("v_mov_b32 v15, v10")
    e("v_add_u32 v16, 49152, v6")
    e("v_add_u32 v17, 49152, v10")
    e("s_mov_b32 s54, 49152")
    ACC = lambda u, rt: 96 + (u*2+rt)*16
    XF = lambda p, rt: 32 + p*16 + rt*4
    WF = lambda p, u: 32 + p*16 + 8 + u*4
    for i in range(64): e(f"v_mov_b32 v{96+i}, 0")
    def reads(ks, nxt=False):
        p = ks & 1
        vx = 16 if nxt else 11 + ks
        vw = 17 if nxt else 15
        g = []
        for rt in range(2):
            g.append([f"ds_read_b128 {vr(XF(p,rt),4)}, v{vx} offset:{rt*4096}"])
        for u in range(2):
            for uu in range(2):
                g.append([f"ds_read_b64_tr_b16 {vr(WF(p,u)+uu*2,2)}, v{vw} offset:{16384+u*16384+(ks*16+uu*4)*256}"])
        return g
    stamp(e, 1)
    e("s_waitcnt vmcnt(12)")
    e("s_barrier")
    stamp(e, 2)
    for grp in reads(0):
        for ins in grp: e(ins)
    def stage(with_dma, first_dma_part):
        d = dma() if with_dma else []
        for ks in range(4):
            p = ks & 1
            if ks == 3:
                e(f"s_waitcnt vmcnt({6 if with_dma else 0}) lgkmcnt(0)")
                e("s_barrier")
                others = reads(0, nxt=True)
                others += d[0:2]
            else:
                e("s_waitcnt lgkmcnt(0)")
                others = reads(ks+1)
            mf = []
            for rt in range(2):
                for u in range(2):
                    a = ACC(u, rt)
                    mf.append(f"v_mfma_f32_32x32x16_bf16 {vr(a,16)}, {vr(WF(p,u),4)}, {vr(XF(p,rt),4)}, {vr(a,16)}")
            interleave(e, mf, others)
            if ks == 3:
                for grp in d[2:]:
                    for ins in grp: e(ins)
        for ks in range(4):
            e(f"v_add_u32 v{11+ks}, s54, v{6+ks}")
        e("v_mov_b32 v15, v17")
        e("s_add_u32 s54, s54, 49152"); e("s_cmp_ge_u32 s54, 147456"); e("s_cselect_b32 s3, 147456, 0"); e("s_sub_u32 s54, s54, s3")
        e("v_add_u32 v16, s54, v6")
        e("v_add_u32 v17, s54, v10")
    e("s_mov_b32 s55, 0")
    e.l.append(".p2align 6")
    e.label("K1_L1")
    stage(True, 0)
    e("s_add_u32 s55, s55, 1")
    e("s_cmp_lt_u32 s55, 7")
    e("s_cbranch_scc1 K1_L1")
    e.label("K1_L2")
    stage(False, 0)
    e("s_add_u32 s55, s55, 1")
    e("s_cmp_lt_u32 s55, 10")
    e("s_cbranch_scc1 K1_L2")
    stamp(e, 3)
    e("s_nop 15")
    e("s_cmp_ge_u32 s23, 12")
    e("s_cbranch_scc1 K1_EPI_B")
    e("s_lshl_b32 s3, s22, 2")
    e("s_lshl_b32 s21, s49, 1")
    e("s_add_u32 s3, s3, s21")
    e("s_mul_i32 s3, s3, 96")
    e("s_lshl_b32 s21, s23, 3")
    e("s_add_u32 s3, s3, s21")
    e("s_lshl_b32 s21, s50, 1")
    e("s_add_u32 s3, s3, s21")
    e("s_lshl_b32 s3, s3, 10")
    e(f"s_add_u32 s3, s3, {HBUF}")
    e(f"s_add_u32 s21, s3, {96*1024}")
    e("v_lshlrev_b32 v1, 4, v0")
    for rt in range(2):
        g = ACC(0, rt); u_ = ACC(1, rt)
        for i in range(16):
            e(f"v_max_f32 v{g+i}, 0, v{g+i}")
            e(f"v_mul_f32 v{g+i}, v{g+i}, v{u_+i}")
        d = 64 + rt*8
        for i in range(8):
            e(f"v_cvt_pk_bf16_f32 v{d+i}, v{g+2*i}, v{g+2*i+1}")
        for t in range(2):
            e(f"buffer_store_dwordx4 {vr(d+4*t,4)}, v1, s[28:31], {'s3' if rt==0 else 's21'} offen offset:{t*1024}")
    stamp(e, 4)
    stamp_flush(e, 5, 0, "s20", 2)
    e("s_endpgm")
    e.label("K1_EPI_B")
    e("s_sub_u32 s3, s23, 12")
    e("s_lshl_b32 s3, s3, 6")
    e("s_lshl_b32 s21, s50, 3")
    e("s_add_u32 s3, s3, s21")
    e("s_lshl_b32 s3, s3, 14")
    e("s_lshl_b32 s21, s22, 7")
    e("s_lshl_b32 s51, s49, 6")
    e("s_add_u32 s21, s21, s51")
    e("s_lshl_b32 s21, s21, 3")
    e("s_add_u32 s3, s3, s21")
    e("v_and_b32 v1, 31, v0")
    e("v_lshlrev_b32 v1, 3, v1")
    e("v_lshrrev_b32 v2, 5, v0")
    e("v_lshl_add_u32 v1, v2, 14, v1")
    e(f"s_mov_b32 s51, 0x{f2u(QSCALE):08x}")
    for u in range(2):
        if u == 1:
            e("s_cmp_eq_u32 s23, 14")
            e("s_cbranch_scc1 K1_END")
        for rt in range(2):
            a = ACC(u, rt)
            for i in range(16):
                e(f"v_mul_f32 v{a+i}, s51, v{a+i}")
            d = 64 + (u*2+rt)*8
            for i in range(8):
                e(f"v_cvt_pk_bf16_f32 v{d+i}, v{a+2*i}, v{a+2*i+1}")
            for g in range(4):
                e(f"s_add_u32 s21, s3, {(u*32+2*g)*16384}")
                e(f"buffer_store_dwordx2 {vr(d+2*g,2)}, v1, s[28:31], s21 offen offset:{rt*256}")
    e("s_endpgm")

    e.label("K1_ROLE_C")
    e("s_mov_b32 s56, 0")
    e("s_cmp_ge_u32 s20, 8")
    e("s_cbranch_scc1 K1_HELP")
    srd(e, 32, 8, 25600)
    srd(e, 36, 10, 25600)
    srd(e, 40, 16, 1280)
    e("s_and_b32 s3, s20, 3")
    e("s_lshl_b32 s21, s22, 2")
    e("s_add_u32 s21, s21, s3")
    e("s_lshl_b32 s44, s20, 6")
    e("v_add_u32 v3, s44, v0")
    e("v_lshlrev_b32 v4, 2, v3")
    for i in range(13):
        e(f"buffer_load_dword v{8+i}, v4, s[32:35], 0 offen offset:{(i%2)*2048}")
        e(f"buffer_load_dword v{33+i}, v4, s[36:39], 0 offen offset:{(i%2)*2048}")
        if i % 2 == 1: e("v_add_u32 v4, 4096, v4")
    e("v_lshlrev_b32 v4, 1, v3")
    for i in range(2):
        e(f"buffer_load_ushort v{58+i}, v4, s[40:43], 0 offen offset:{i*1024}")
    e("s_and_b32 s51, s20, 1")
    e("v_lshrrev_b32 v5, 3, v0")
    e("s_lshl_b32 s3, s20, 3")
    e("v_add_u32 v5, s3, v5")
    e("v_mul_u32_u24 v5, 0x500, v5")
    e("v_lshrrev_b32 v6, 4, v0")
    e("s_lshl_b32 s3, s51, 2")
    e("v_add_u32 v6, s3, v6")
    e("v_and_b32 v6, 7, v6")
    e("v_and_b32 v7, 7, v0")
    e("v_xor_b32 v6, v6, v7")
    e("v_lshl_add_u32 v62, v6, 4, v5")
    e("s_mul_i32 s46, s22, 163840")
    e("s_lshl_b32 s47, s20, 10")
    def cdma(kb):
        for m in range(2):
            e(f"s_add_u32 m0, s47, {81920 + (kb%4)*16384 + m*8192}")
            e(f"s_add_u32 s3, s46, {m*81920 + kb*128}")
            e("buffer_load_dwordx4 v62, s[24:27], s3 offen lds")
    for kb in range(3): cdma(kb)
    e("v_mov_b32 v144, 0"); e("v_mov_b32 v145, 0"); e("v_mov_b32 v146, 0"); e("v_mov_b32 v147, 0")
    e("v_lshlrev_b32 v4, 4, v3")
    for i in range(8):
        e(f"ds_write_b128 v4, v[144:147] offset:{i*8192}")
    e("v_add_u32 v5, 65536, v4")
    for i in range(2):
        e(f"ds_write_b128 v5, v[144:147] offset:{i*8192}")
    e("s_waitcnt lgkmcnt(0)")
    e("s_barrier")
    e("s_mov_b32 s3, 0xCCCCCCCD")
    e("s_waitcnt vmcnt(6)")
    for i in range(13):
        e(f"v_add_u32 v4, {512*i}, v3")
        e("v_mul_hi_u32 v5, v4, s3")
        e("v_lshrrev_b32 v5, 3, v5")
        e("v_mul_u32_u24 v6, 10, v5")
        e("v_sub_u32 v6, v4, v6")
        e("v_lshlrev_b32 v5, 6, v5")
        e("v_lshl_add_u32 v5, v6, 2, v5")
        if i == 12:
            e("v_cmp_gt_u32 vcc, 256, v3")
            e("s_and_saveexec_b64 s[44:45], vcc")
        e(f"ds_write_b32 v5, v{8+i}")
        e(f"ds_write_b32 v5, v{33+i} offset:40960")
        if i == 12:
            e("s_mov_b64 exec, s[44:45]")
    e("v_lshlrev_b32 v4, 6, v3")
    e("ds_write_b16 v4, v58 offset:44")
    e("v_cmp_gt_u32 vcc, 128, v3")
    e("s_and_saveexec_b64 s[44:45], vcc")
    e(f"ds_write_b16 v4, v59 offset:{44+32768}")
    e("s_mov_b64 exec, s[44:45]")
    e("s_waitcnt lgkmcnt(0)")
    e("s_barrier")
    e("v_bfe_u32 v3, v0, 2, 2")
    e("v_lshrrev_b32 v5, 5, v0")
    e("v_lshl_add_u32 v4, v5, 3, v3")
    e("v_lshlrev_b32 v4, 6, v4")
    e("v_bfe_u32 v6, v0, 4, 1")
    e("v_lshl_add_u32 v4, v6, 5, v4")
    e("v_and_b32 v6, 3, v0")
    e("v_lshl_add_u32 v4, v6, 3, v4")
    e(f"s_mul_i32 s48, s21, {KV_TILE}")
    e(f"s_add_u32 s48, s48, {KVBUF}")
    e("v_lshlrev_b32 v1, 4, v0")
    e("v_lshlrev_b32 v2, 3, v0")
    e("v_mov_b32 v60, 0x3f803f80")
    e("v_mov_b32 v61, 0")
    KA = 144
    e("v_and_b32 v5, 31, v0")
    e("s_and_b32 s44, s20, 3")
    e("s_lshl_b32 s44, s44, 5")
    e("v_add_u32 v5, s44, v5")
    e("v_lshrrev_b32 v6, 1, v5")
    e("v_and_b32 v6, 7, v6")
    e("v_lshrrev_b32 v7, 5, v0")
    e("v_lshlrev_b32 v5, 7, v5")
    e("v_add_u32 v5, 81920, v5")
    for ks in range(4):
        e(f"v_or_b32 v24, {ks*2}, v7")
        e("v_xor_b32 v24, v24, v6")
        e(f"v_lshl_add_u32 v{64+ks}, v24, 4, v5")
    e("s_cmp_ge_u32 s20, 4")
    e("s_cbranch_scc1 K1_C_V")
    def body(isV):
        for kb in range(10):
            e(f"s_waitcnt vmcnt({2*min(2, 9-kb)})")
            e("s_barrier")
            if kb + 3 < 10: cdma(kb+3)
            for ks in range(4):
                k = kb*4 + ks
                e(f"ds_read_b128 {vr(72+ks*4,4)}, v{64+ks} offset:{(kb%4)*16384}")
                e(f"ds_read_b64_tr_b16 {vr(8+ks*4,2)}, v4 offset:{k*1024}")
                e(f"ds_read_b64_tr_b16 {vr(10+ks*4,2)}, v4 offset:{k*1024+256}")
            for ks in range(4):
                e(f"s_waitcnt lgkmcnt({9-3*ks})")
                ck = "0" if (kb == 0 and ks == 0) else vr(KA, 16)
                if isV: e(f"v_mfma_f32_32x32x16_bf16 {vr(KA,16)}, {vr(72+ks*4,4)}, {vr(8+ks*4,4)}, {ck}")
                else:   e(f"v_mfma_f32_32x32x16_bf16 {vr(KA,16)}, {vr(8+ks*4,4)}, {vr(72+ks*4,4)}, {ck}")
        e("s_nop 15")
    body(False)
    for i in range(6):
        e(f"v_cvt_pk_bf16_f32 v{8+i}, v{KA+2*i}, v{KA+2*i+1}")
    e(f"v_mul_f32 v20, 0xbfb8aa3b, v{KA+10}")
    e("v_exp_f32 v20, v20")
    e("s_nop 0")
    e("v_add_f32 v20, 1.0, v20")
    e("v_rcp_f32 v20, v20")
    e("v_cmp_le_u32 vcc, 32, v0")
    e("s_nop 1")
    e("v_cndmask_b32 v12, v12, v60, vcc")
    e("v_cndmask_b32 v13, v13, v61, vcc")
    e("buffer_store_dwordx4 v[8:11], v1, s[28:31], s48 offen")
    e("buffer_store_dwordx2 v[12:13], v2, s[28:31], s48 offen offset:1024")
    e("s_lshl_b32 s44, s21, 7")
    e(f"s_add_u32 s44, s44, {GBUF - 128}")
    e("v_lshlrev_b32 v23, 2, v0")
    e("s_and_saveexec_b64 s[46:47], vcc")
    e("buffer_store_dword v20, v23, s[28:31], s44 offen")
    e("s_endpgm")
    e.label("K1_C_V")
    e("v_add_u32 v4, 40960, v4")
    body(True)
    e("v_and_b32 v23, 31, v0")
    e("v_cmp_eq_u32 vcc, 20, v23")
    for i in range(8):
        e(f"v_cvt_pk_bf16_f32 v{24+i}, v{KA+2*i}, v{KA+2*i+1}")
    for i in range(8):
        e(f"v_cndmask_b32 v{24+i}, v{24+i}, v60, vcc")
    e("buffer_store_dwordx4 v[24:27], v1, s[28:31], s48 offen offset:1536")
    e("buffer_store_dwordx4 v[28:31], v1, s[28:31], s48 offen offset:2560")
    stamp(e, 4)
    stamp_flush(e, 5, 0, "s20", 2)
    e("s_endpgm")
    e.label("K1_HELP")
    e("s_sub_u32 s20, s20, 8")
    e("v_lshrrev_b32 v1, 3, v0")
    e("v_mul_u32_u24 v1, 0x500, v1")
    e("v_and_b32 v2, 7, v0")
    e("v_lshl_add_u32 v1, v2, 4, v1")
    e("s_and_b32 s3, s23, 3")
    e("s_lshl_b32 s3, s3, 5")
    e("s_lshl_b32 s44, s20, 3")
    e("s_add_u32 s3, s3, s44")
    e("s_lshl_b32 s44, s22, 7")
    e("s_add_u32 s3, s3, s44")
    e("s_mul_i32 s46, s3, 1280")
    e("s_cmp_eq_u32 s56, 0")
    e("s_cbranch_scc1 K1_HELP_X")
    e("v_lshrrev_b32 v2, 4, v0")
    e("v_mul_lo_u32 v2, v2, s40")
    e("v_and_b32 v3, 15, v0")
    e("v_lshl_add_u32 v2, v3, 4, v2")
    e("s_and_b32 s3, s22, 7")
    e("s_lshl_b32 s3, s3, 3")
    e("s_and_b32 s44, s20, 1")
    e("s_lshl_b32 s44, s44, 2")
    e("s_add_u32 s3, s3, s44")
    e("s_mul_i32 s45, s3, s40")
    e("s_lshl_b32 s44, s40, 6")
    e("s_cmp_ge_u32 s20, 2")
    e("s_cbranch_scc0 K1_HELP_U0")
    for r in range(4): e(f"s_mov_b32 s{32+r}, s{36+r}")
    e.label("K1_HELP_U0")
    for kb in range(10):
        e(f"buffer_load_dwordx4 v[4:7], v1, s[24:27], s46 offen offset:{kb*128}")
        e(f"buffer_load_dwordx4 v[8:11], v2, s[32:35], s45 offen")
        e("s_add_u32 s45, s45, s44")
    e("s_branch K1_HELP_W")
    e.label("K1_HELP_X")
    for kb in range(10):
        e(f"buffer_load_dwordx4 v[4:7], v1, s[24:27], s46 offen offset:{kb*128}")
    e.label("K1_HELP_W")
    srd(e, 48, 60, 819200)
    srd(e, 52, 62, 1966080)
    e("s_lshl_b32 s3, s2, 2")
    e("s_add_u32 s3, s3, s20")
    e("s_lshl_b32 s3, s3, 10")
    e("s_add_u32 s44, s3, 0x100000")
    e("v_lshlrev_b32 v1, 4, v0")
    e("buffer_load_dwordx4 v[4:7], v1, s[52:55], s3 offen")
    e("buffer_load_dwordx4 v[8:11], v1, s[52:55], s44 offen")
    e("buffer_load_dwordx4 v[12:15], v1, s[48:51], s3 offen")
    for i in range(11): e("s_barrier")
    e.label("K1_END")
    e("s_endpgm")
    return name, 168, 147456, 256, 768
```

```python
from common import *

RING = 4 * 14336
CNT = RING + 4*5*5120
def div20(e, vdst_q, vdst_r, vsrc, stmp):
    e(f"s_mov_b32 {stmp}, 0xCCCCCCCD")
    e(f"v_mul_hi_u32 v{vdst_q}, v{vsrc}, {stmp}")
    e(f"v_lshrrev_b32 v{vdst_q}, 4, v{vdst_q}")
    e(f"v_mul_u32_u24 v{vdst_r}, 20, v{vdst_q}")
    e(f"v_sub_u32 v{vdst_r}, v{vsrc}, v{vdst_r}")

def splitk_gemm(e, pfx, ksteps, nslab, srdW, srdWS, s_slab, barrier_every=None, barrier_count=0):
    n = len(ksteps)
    XR = lambda k: 40 + (k % nslab) * 4
    def issue(k):
        vs, wo, xo = ksteps[k]
        slab = (k % nslab) * 5120
        e(f"s_add_u32 s62, s60, {wo}")
        for i in range(5):
            e(f"s_add_u32 m0, {s_slab}, {slab + i*1024}")
            e("s_nop 0")
            e(f"buffer_load_dwordx4 v{1+vs*5+i}, {sr(srdW,4)}, s62 offen lds")
        e(f"s_add_u32 s63, s61, {xo}")
        e(f"buffer_load_dwordx4 {vr(XR(k),4)}, v12, {sr(srdWS,4)}, s63 offen")
    pre = min(nslab - 1, n)
    for k in range(pre):
        issue(k)
    nb = 0
    for k in range(n):
        if barrier_every and k % barrier_every == 0 and nb < barrier_count:
            e("s_barrier"); nb += 1
        issued = min(n, k + nslab - 1)
        e(f"s_waitcnt vmcnt({(issued - k - 1) * 6})")
        slab = (k % nslab) * 5120
        for nt in range(5):
            for uu in range(2):
                e(f"ds_read_b64_tr_b16 {vr(16+nt*4+uu*2,2)}, v11 offset:{slab + uu*2560 + nt*64}")
        if k + nslab - 1 < n:
            issue(k + nslab - 1)
        for nt in range(5):
            e(f"s_waitcnt lgkmcnt({8 - 2*nt})")
            cc = "0" if k == 0 else vr(80+nt*16, 16)
            e(f"v_mfma_f32_32x32x16_bf16 {vr(80+nt*16,16)}, {vr(16+nt*4,4)}, {vr(XR(k),4)}, {cc}")
    return nb

def gemm_addr_setup(e, s_slab, type2=False):
    for i in range(5):
        e(f"v_add_u32 v13, {i*64}, v0")
        div20(e, 14, 15, 13, "s62")
        e("v_lshlrev_b32 v15, 4, v15")
        e(f"v_mad_u32_u24 v{1+i}, v14, s59, v15")
        if type2:
            e("v_bfe_u32 v13, v14, 2, 1")
            e("v_lshrrev_b32 v36, 3, v14")
            e("v_lshl_add_u32 v13, v13, 1, v36")
            e("v_mul_u32_u24 v13, 20, v13")
            e("v_and_b32 v36, 3, v14")
            e("v_add_u32 v13, v13, v36")
            e(f"v_mad_u32_u24 v{6+i}, v13, s59, v15")
    e("v_bfe_u32 v13, v0, 2, 2")
    e("v_lshrrev_b32 v14, 5, v0")
    e("v_lshl_add_u32 v13, v14, 2, v13")
    e("v_mul_u32_u24 v13, 320, v13")
    e("v_bfe_u32 v14, v0, 4, 1")
    e("v_lshl_add_u32 v13, v14, 5, v13")
    e("v_and_b32 v14, 3, v0")
    e("v_lshl_add_u32 v13, v14, 3, v13")
    e(f"v_add_u32 v11, {s_slab}, v13")
    e("v_lshlrev_b32 v12, 4, v0")

def reduce_write(e, s_slab):
    e("s_nop 15")
    e(f"v_add_u32 v13, {s_slab}, v12")
    for q in range(20):
        e(f"ds_write_b128 v13, {vr(80+q*4,4)} offset:{q*1024}")
    e("s_waitcnt lgkmcnt(0)")
    e("s_barrier")

def reduce_read(e, area_stride, s_base, wait="lgkmcnt(0)"):
    e(f"v_add_u32 v13, {s_base}, v12")
    e(f"v_add_u32 v14, {2*area_stride}, v13")
    for p in range(4):
        for q in range(5):
            e(f"ds_read_b128 {vr(80+(p*5+q)*4,4)}, v{13 + p//2} offset:{(p%2)*area_stride + q*1024}")
    e(f"s_waitcnt {wait}")
    for p in range(1, 4):
        for i in range(20):
            e(f"v_add_f32 v{80+i}, v{80+i}, v{80+p*20+i}")

def gen_k2(e):
    name = "k2_kernel"
    kernel_head(e, name)
    e("s_cmp_ge_u32 s2, 256")
    e("s_cbranch_scc1 K2_END")
    e("s_load_dwordx2 s[4:5], s[0:1], 64")
    e("s_load_dwordx2 s[6:7], s[0:1], 96")
    e("s_load_dwordx2 s[8:9], s[0:1], 32")
    e("s_load_dwordx4 s[12:15], s[0:1], 80")
    e("v_lshrrev_b32 v1, 6, v0")
    e("v_and_b32 v0, 63, v0")
    e("s_nop 0")
    e("v_readfirstlane_b32 s20, v1")
    e("s_lshr_b32 s21, s2, 2")
    e("s_and_b32 s22, s2, 3")
    e("s_waitcnt lgkmcnt(0)")
    srd(e, 28, 6, WS_END)
    stamp(e, 0)
    e("s_mov_b32 s79, s20")
    e("s_cmp_ge_u32 s20, 8")
    e("s_cbranch_scc1 K2_GEMM")
    import os
    if os.environ.get("NOATTN"): e("s_endpgm")
    S = [16, 32]; O = 48; P = 64; Q1 = 72; Q2 = 76
    K1 = lambda p: 80 + p*8
    K2 = lambda p: 84 + p*8
    V = lambda p, t: 96 + p*8 + t*4
    e("s_lshl_b32 s23, s22, 3")
    e("s_add_u32 s23, s23, s20")
    e("s_mul_i32 s3, s23, 81920")
    e("s_lshl_b32 s24, s21, 8")
    e("s_add_u32 s3, s3, s24")
    e("v_and_b32 v1, 31, v0")
    e("v_lshlrev_b32 v1, 3, v1")
    e("v_lshrrev_b32 v2, 5, v0")
    e("v_lshl_add_u32 v2, v2, 14, v1")
    e("s_add_u32 s24, s3, 32768")
    e("s_add_u32 s25, s3, 65536")
    e(f"buffer_load_dwordx2 {vr(Q1,2)}, v2, s[28:31], s3 offen")
    e(f"buffer_load_dwordx2 {vr(Q1+2,2)}, v2, s[28:31], s24 offen")
    e(f"buffer_load_dwordx2 {vr(Q2,2)}, v1, s[28:31], s25 offen")
    e("v_lshrrev_b32 v13, 1, v1")
    e("s_lshl_b32 s24, s21, 7")
    e(f"s_add_u32 s24, s24, {GBUF}")
    e("buffer_load_dword v13, v13, s[28:31], s24 offen")
    e("v_lshlrev_b32 v3, 4, v0")
    e("v_lshlrev_b32 v4, 3, v0")
    e("s_lshl_b32 s26, s20, 11")
    e(f"s_add_u32 s27, s26, {KVBUF}")
    def emit_dma(tag):
        e("s_cmp_eq_u32 s20, 7")
        e(f"s_cbranch_scc1 K2_SK{tag}")
        e("s_mov_b32 m0, s36")
        e("s_add_u32 s3, s37, 1024")
        e("buffer_load_dwordx4 v3, s[28:31], s37 offen lds")
        e("s_add_u32 m0, s36, 1024")
        e("s_nop 0")
        e("buffer_load_dwordx4 v3, s[28:31], s3 offen lds")
        e.label(f"K2_SK{tag}")
        e("s_add_u32 s37, s37, 14336")
        e("s_add_u32 s36, s36, 14336")
        e(f"s_cmp_ge_u32 s36, {RING}")
        e(f"s_cselect_b32 s3, {RING}, 0")
        e("s_sub_u32 s36, s36, s3")
    e("s_mov_b32 s36, s26")
    e("s_mov_b32 s37, s27")
    emit_dma("a"); emit_dma("b")
    for r in (K2(0)+2, K2(0)+3, K2(1)+2, K2(1)+3, Q2+2, Q2+3, P+4, P+5, P+6, P+7, V(1,1), V(1,1)+1, V(1,1)+2, V(1,1)+3):
        e(f"v_mov_b32 v{r}, 0")
    for i in range(16):
        e(f"v_mov_b32 v{O+i}, 0")
    e("v_cmp_le_u32 s[32:33], 32, v0")
    e("v_mov_b32 v8, v3"); e("v_mov_b32 v9, v4")
    e("v_add_u32 v10, 14336, v3"); e("v_add_u32 v11, 14336, v4")
    e("s_mov_b32 s38, 28672")
    e(f"v_mov_b32 v14, {CNT}")
    e("v_mov_b32 v15, 1")
    e("v_mov_b32 v6, 0"); e("v_mov_b32 v7, 0")
    e("ds_write_b64 v14, v[6:7]")
    e("s_mov_b32 s40, 8")
    e("s_waitcnt lgkmcnt(0)")
    e("s_waitcnt vmcnt(2)")
    e("s_cmp_eq_u32 s20, 7")
    e("s_cbranch_scc0 K2_W7")
    e("s_waitcnt vmcnt(0)")
    e.label("K2_W7")
    e("s_barrier")
    stamp(e, 1)
    emit_dma("c")
    e(f"v_cndmask_b32 v{Q2}, v{Q2}, 0, s[32:33]")
    e(f"v_cndmask_b32 v{Q2+1}, v{Q2+1}, 0, s[32:33]")
    def rdK(t):
        p = t & 1; a16 = 8 if t < 4 else 10; off = (t % 4) * KV_TILE
        return [f"ds_read_b128 {vr(K1(p),4)}, v{a16} offset:{off}",
                f"ds_read_b64 {vr(K2(p),2)}, v{a16+1} offset:{off+1024}"]
    def rdV(t):
        p = t & 1; a16 = 8 if t < 4 else 10; off = (t % 4) * KV_TILE
        return [f"ds_read_b128 {vr(V(p,0),4)}, v{a16} offset:{off+1536}",
                f"ds_read_b128 {vr(V(p,1),4)}, v{a16} offset:{off+2560}"]
    for ins in rdK(0) + rdK(1) + rdV(0): e(ins)
    e("s_waitcnt lgkmcnt(0)")
    def qk(t, which):
        p = t & 1; s = S[t & 1]
        if which == 0:
            return f"v_mfma_f32_32x32x16_bf16 {vr(s,16)}, {vr(K1(p),4)}, {vr(Q1,4)}, 0"
        return f"v_mfma_f32_32x32x16_bf16 {vr(s,16)}, {vr(K2(p),4)}, {vr(Q2,4)}, {vr(s,16)}"
    def set_fold(src16, running=None):
        e(f"v_max3_f32 v5, v{src16}, v{src16+1}, v{src16+2}")
        for i in range(3, 15, 2):
            e(f"v_max3_f32 v5, v5, v{src16+i}, v{src16+i+1}")
        e(f"v_max_f32 v5, v5, v{src16+15}")
    def fold_from_v5():
        e("v_mov_b32 v6, v5")
        e("s_nop 1")
        e("v_permlane32_swap_b32 v5, v6")
        e("s_nop 1")
        e("v_max_f32 v5, v5, v6")
        e("v_sub_f32 v5, 0, v5")
        e("v_cvt_pk_bf16_f32 v6, v5, v5")
        e("v_lshlrev_b32 v6, 16, v6")
        e("v_sub_f32 v6, v5, v6")
        e("v_cvt_pk_bf16_f32 v6, v5, v6")
        e(f"v_cndmask_b32 v{Q2}, v{Q2}, v6, s[32:33]")
        e("s_nop 1")
    e(qk(0, 0)); e(qk(0, 1))
    e("s_nop 15")
    set_fold(S[0])
    fold_from_v5()
    e(qk(0, 0)); e(qk(0, 1))
    e("s_mov_b32 s39, 0")
    e("s_nop 7")
    def pv(t, h):
        p = t & 1
        return f"v_mfma_f32_32x32x16_bf16 {vr(O,16)}, {vr(V(p,h),4)}, {vr(P+4*h,4)}, {vr(O,16)}"
    def grp(s, q):
        for i in range(4):
            e(f"v_exp_f32 v{s+4*q+i}, v{s+4*q+i}")
        e(f"v_cvt_pk_bf16_f32 v{P+2*q}, v{s+4*q}, v{s+4*q+1}")
        e(f"v_cvt_pk_bf16_f32 v{P+2*q+1}, v{s+4*q+2}, v{s+4*q+3}")
    stamp(e, 2)
    if "prio" in os.environ.get("VAR", ""):
        e("s_cmp_ge_u32 s20, 4")
        e("s_cbranch_scc0 K2_NP")
        e("s_setprio 1")
        e.label("K2_NP")
    if "late" in os.environ.get("VAR", ""):
        for r in range(12, 16): e(f"v_mov_b32 v{S[1]+r}, 0")
    e.l.append(".p2align 6")
    e.label("K2_LOOP")
    VAR = os.environ.get("VAR", "")
    def ex(s, q):
        for i in range(4):
            e(f"v_exp_f32 v{s+4*q+i}, v{s+4*q+i}")
    def cv(s, q):
        e(f"v_cvt_pk_bf16_f32 v{P+2*q}, v{s+4*q}, v{s+4*q+1}")
        e(f"v_cvt_pk_bf16_f32 v{P+2*q+1}, v{s+4*q+2}, v{s+4*q+3}")
    for i in range(4):
        s = S[i & 1]; sp = S[(i+1) & 1]
        def upd():
            e("v_mov_b32 v8, v10"); e("v_mov_b32 v9, v11")
            e("v_add_u32 v10, s38, v3"); e("v_add_u32 v11, s38, v4")
            e("s_add_u32 s38, s38, 14336")
            e(f"s_cmp_ge_u32 s38, {RING}")
            e(f"s_cselect_b32 s3, {RING}, 0")
            e("s_sub_u32 s38, s38, s3")
            e("s_add_u32 s39, s39, 1")
        def head():
            if "tog" in VAR: e(f"s_setprio {(3 - ((i+2)%4))}")
            if i == 0:
                e("s_waitcnt vmcnt(2) lgkmcnt(0)")
                e("s_mov_b64 exec, 1")
                e("ds_add_u32 v14, v15")
                e("s_mov_b64 exec, -1")
            elif i == 1:
                e("s_waitcnt lgkmcnt(0)")
                e("ds_read_b32 v7, v14")
            elif i == 2:
                e.label("K2_CHK")
                e("s_waitcnt lgkmcnt(0)")
                e("v_readfirstlane_b32 s3, v7")
                e("s_cmp_ge_u32 s3, s40")
                e("s_cbranch_scc0 K2_SLOW")
                e("s_add_u32 s40, s40, 8")
            else:
                e("s_waitcnt lgkmcnt(0)")
        if "late" in VAR:
            head()
            for ins in rdK(i+2): e(ins if "nords" not in VAR else "s_nop 0")
            ex(s, 0)
            cv(sp, 3)
            e(qk(i+1, 0)) if False else None
            if i == 2 and "nobar" not in VAR: emit_dma("d")
            else: e("s_nop 0")
            e(pv(i+1, 1))
            for ins in rdV(i+1): e(ins if ("nords" not in VAR and "norv" not in VAR) else "s_nop 0")
            ex(s, 1); cv(s, 0)
            e(qk(i+1, 0))
            if i == 3: upd()
            ex(s, 2); cv(s, 1)
            e(qk(i+1, 1))
            ex(s, 3); cv(s, 2)
            e(pv(i, 0))
        else:
            head()
            for ins in rdK(i+2): e(ins)
            e(pv(i+1, 1))
            for ins in rdV(i+1): e(ins)
            if i == 2 and "nobar" not in VAR:
                emit_dma("d")
            grp(s, 0)
            e(qk(i+1, 0))
            grp(s, 1)
            e(qk(i+1, 1))
            if i == 3: upd()
            grp(s, 2)
            e(pv(i, 0))
            grp(s, 3)
    e("s_cmp_lt_u32 s39, 16")
    e("s_cbranch_scc1 K2_LOOP")
    stamp(e, 3)
    if "late" in VAR: cv(S[1], 3)
    e("s_nop 1")
    e(pv(63, 1))
    e("s_nop 15")
    e(f"v_max3_f32 v5, |v{O}|, |v{O+1}|, |v{O+2}|")
    for i in range(3, 11, 2):
        e(f"v_max3_f32 v5, v5, |v{O+i}|, |v{O+i+1}|")
    e(f"v_max_f32 v5, v5, |v{O+11}|")
    e("s_mov_b32 s3, 0x7b800000")
    e("v_cmp_nlt_f32 vcc, v5, s3") if False else None
    e("v_mov_b32 v7, s3")
    e("v_cmp_nlt_f32 s[34:35], v5, v7")
    e(f"v_mov_b32 v5, v{O+8}")
    e(f"v_mov_b32 v6, v{O+8}")
    e("s_nop 1")
    e("v_permlane32_swap_b32 v5, v6")
    e("v_mov_b32 v7, 0x53800000")
    e("s_nop 0")
    e("v_cmp_nlt_f32 vcc, v6, v7")
    e("s_nop 1")
    e("s_or_b64 vcc, vcc, s[34:35]")
    e("s_cbranch_vccnz K2_FALLBACK")
    e.label("K2_NORM")
    e("v_rcp_f32 v6, v6")
    e("s_nop 0")
    e("v_mul_f32 v6, v6, v13")
    for i in range(12):
        e(f"v_mul_f32 v{O+i}, v{O+i}, v6")
    for i in range(6):
        e(f"v_cvt_pk_bf16_f32 v{P+i}, v{O+2*i}, v{O+2*i+1}")
    e("s_mul_i32 s3, s21, 40")
    e("s_add_u32 s24, s3, s23")
    e("s_lshl_b32 s24, s24, 10")
    e(f"s_add_u32 s24, s24, {OBUF}")
    e(f"buffer_store_dwordx4 {vr(P,4)}, v3, s[28:31], s24 offen sc1")
    e("s_lshr_b32 s25, s23, 2")
    e("s_add_u32 s3, s3, s25")
    e("s_add_u32 s3, s3, 32")
    e("s_lshl_b32 s3, s3, 10")
    e("s_bfe_u32 s25, s23, 0x10001")
    e("s_lshl_b32 s25, s25, 9")
    e("s_add_u32 s3, s3, s25")
    e("s_and_b32 s25, s23, 1")
    e("s_lshl_b32 s25, s25, 3")
    e("s_add_u32 s3, s3, s25")
    e(f"s_add_u32 s3, s3, {OBUF}")
    e("s_mov_b32 exec_hi, 0")
    e(f"buffer_store_dwordx2 {vr(P+4,2)}, v3, s[28:31], s3 offen sc1")
    e("s_waitcnt vmcnt(0)")
    e("s_mov_b64 exec, 1")
    e("ds_add_u32 v14, v15 offset:4")
    e("s_waitcnt lgkmcnt(0)")
    stamp(e, 4)
    stamp_flush(e, 7, 1, "s79", 5)
    e("s_endpgm")
    e.label("K2_SLOW")
    e("s_sleep 1")
    e("ds_read_b32 v7, v14")
    e("s_branch K2_CHK")
    e.label("K2_FALLBACK")
    e(f"v_cndmask_b32 v{Q2}, v{Q2}, 0, s[32:33]")
    e("v_mov_b32 v12, 0xff800000")
    e(f"s_mov_b32 s3, {KVBUF}")
    e.label("K2_FB1")
    e(f"buffer_load_dwordx4 {vr(K1(0),4)}, v3, s[28:31], s3 offen")
    e(f"buffer_load_dwordx2 {vr(K2(0),2)}, v4, s[28:31], s3 offen offset:1024")
    e("s_waitcnt vmcnt(0)")
    e(qk(0, 0)); e(qk(0, 1))
    e("s_nop 15")
    set_fold(S[0])
    e("v_max_f32 v12, v12, v5")
    e(f"s_add_u32 s3, s3, {KV_TILE}")
    e(f"s_cmp_lt_u32 s3, {KVBUF + 64*KV_TILE}")
    e("s_cbranch_scc1 K2_FB1")
    e("v_mov_b32 v5, v12")
    fold_from_v5()
    for i in range(16):
        e(f"v_mov_b32 v{O+i}, 0")
    e(f"s_mov_b32 s3, {KVBUF}")
    e.label("K2_FB2")
    e(f"buffer_load_dwordx4 {vr(K1(0),4)}, v3, s[28:31], s3 offen")
    e(f"buffer_load_dwordx2 {vr(K2(0),2)}, v4, s[28:31], s3 offen offset:1024")
    e(f"buffer_load_dwordx4 {vr(V(0,0),4)}, v3, s[28:31], s3 offen offset:1536")
    e(f"buffer_load_dwordx4 {vr(V(0,1),4)}, v3, s[28:31], s3 offen offset:2560")
    e("s_waitcnt vmcnt(0)")
    e(qk(0, 0)); e(qk(0, 1))
    e("s_nop 15")
    for q in range(4): grp(S[0], q)
    e("s_nop 1")
    e(pv(2, 0)); e(pv(2, 1))
    e(f"s_add_u32 s3, s3, {KV_TILE}")
    e(f"s_cmp_lt_u32 s3, {KVBUF + 64*KV_TILE}")
    e("s_cbranch_scc1 K2_FB2")
    e("s_nop 15")
    e(f"v_mov_b32 v5, v{O+8}")
    e(f"v_mov_b32 v6, v{O+8}")
    e("s_nop 1")
    e("v_permlane32_swap_b32 v5, v6")
    e("s_nop 1")
    e("s_branch K2_NORM")
    e.label("K2_GEMM")
    import os
    if os.environ.get("NOGEMM"): e("s_endpgm")
    NS = 5
    srd(e, 32, 4, 1966080)
    srd(e, 36, 8, 819200)
    srd(e, 40, 12, 2621440)
    srd(e, 44, 14, 256)
    e("s_sub_u32 s20, s20, 8")
    e(f"s_mul_i32 s58, s20, {NS*5120}")
    e(f"s_add_u32 s58, s58, {RING}")
    e("s_mov_b32 s59, 1280")
    gemm_addr_setup(e, "s58", type2=True)
    e("v_and_b32 v13, 31, v0")
    e("v_lshlrev_b32 v13, 2, v13")
    e("s_lshl_b32 s3, s21, 7")
    e(f"s_add_u32 s3, s3, {GBUF}")
    e("buffer_load_dword v160, v13, s[28:31], s3 offen")
    e("s_mul_i32 s60, s20, 491520")
    e("s_mul_i32 s3, s22, 320")
    e("s_add_u32 s60, s60, s3")
    e("s_mul_i32 s61, s21, 96")
    e("s_mul_i32 s3, s20, 24")
    e("s_add_u32 s61, s61, s3")
    e("s_lshl_b32 s61, s61, 10")
    e(f"s_add_u32 s61, s61, {HBUF}")
    ks = [(0, k*20480, k*1024) for k in range(24)]
    nb = splitk_gemm(e, "K2", ks, NS, 32, 28, "s58", barrier_every=100, barrier_count=1)
    assert nb == 1
    stamp(e, 1)
    e("s_mul_i32 s60, s22, 320")
    e("s_mul_i32 s3, s20, 204800")
    e("s_add_u32 s60, s60, s3")
    wk = [(0, k*20*1280) for k in range(8)] + [(1, (k*80+16)*1280) for k in range(2)]
    def wslab(k):
        vs, wo_ = wk[k]
        e(f"s_add_u32 s62, s60, {wo_}")
        for i in range(5):
            e(f"s_add_u32 m0, s58, {(k % NS)*5120 + i*1024}")
            e("s_nop 0")
            e(f"buffer_load_dwordx4 v{1+vs*5+i}, s[36:39], s62 offen lds")
    for k in range(NS): wslab(k)
    for k in range(NS, 10):
        vs, wo_ = wk[k]
        e(f"s_add_u32 s62, s60, {wo_}")
        for i in range(5):
            e(f"buffer_load_dwordx4 v[40:43], v{1+vs*5+i}, s[36:39], s62 offen")
    e("v_sub_f32 v160, 1.0, v160")
    e("s_nop 7")
    for i in range(80):
        e(f"v_mul_f32 v{80+i}, v{80+i}, v160")
    def rdw(k):
        base = 16 if k % 2 == 0 else 60
        slab = (k % NS) * 5120
        for nt in range(5):
            for uu in range(2):
                e(f"ds_read_b64_tr_b16 {vr(base+nt*4+uu*2,2)}, v11 offset:{slab + uu*2560 + nt*64}")
    e("s_waitcnt vmcnt(0)")
    rdw(0)
    e(f"v_mov_b32 v13, {CNT}")
    e.label("K2_GW")
    e("s_sleep 2")
    e("ds_read_b32 v14, v13 offset:4")
    e("s_waitcnt lgkmcnt(0)")
    e("v_readfirstlane_b32 s3, v14")
    e("s_cmp_ge_u32 s3, 8")
    e("s_cbranch_scc0 K2_GW")
    stamp(e, 2)
    e("v_mov_b32 v13, 0")
    e("s_cmp_lg_u32 s20, 0")
    e("s_cbranch_scc1 K2_POLL0")
    e("s_lshl_b32 s62, s2, 7")
    e(f"s_add_u32 s62, s62, {FLAG}")
    e("v_mov_b32 v14, 1")
    e("s_mov_b64 exec, 1")
    e("buffer_store_dword v14, v13, s[28:31], s62 offen sc1")
    e("s_mov_b64 exec, -1")
    e.label("K2_POLL0")
    e("s_lshl_b32 s62, s21, 2")
    e("s_add_u32 s62, s62, s20")
    e("s_lshl_b32 s62, s62, 7")
    e(f"s_add_u32 s62, s62, {FLAG}")
    e("s_mov_b32 s63, 0")
    e("s_cmp_eq_u32 s20, s22")
    e("s_cbranch_scc1 K2_GO")
    e.label("K2_POLL")
    e("buffer_load_dword v14, v13, s[28:31], s62 offen sc1")
    e("s_waitcnt vmcnt(0)")
    e("v_readfirstlane_b32 s3, v14")
    e("s_cmp_eq_u32 s3, 1")
    e("s_cbranch_scc1 K2_GO")
    e("s_sleep 2")
    e("s_add_u32 s63, s63, 1")
    e("s_cmp_lt_u32 s63, 0x100000")
    e("s_cbranch_scc1 K2_POLL")
    e.label("K2_GO")
    stamp(e, 3)
    e("s_mul_i32 s61, s21, 40")
    e("s_lshl_b32 s61, s61, 10")
    e(f"s_add_u32 s61, s61, {OBUF}")
    e("s_lshl_b32 s3, s20, 11")
    e("s_add_u32 s63, s61, s3")
    e("s_add_u32 s63, s63, 32768")
    e("s_lshl_b32 s3, s20, 13")
    e("s_add_u32 s61, s61, s3")
    e("s_add_u32 s56, s61, 4096")
    XO = lambda k: 40 + (k % 5) * 4
    WS_ = lambda k: 16 if k % 2 == 0 else 60
    def xld(k):
        if k < 8: e(f"buffer_load_dwordx4 {vr(XO(k),4)}, v12, s[28:31], {'s61' if k < 4 else 's56'} offen offset:{(k%4)*1024} sc1")
        else:     e(f"buffer_load_dwordx4 {vr(XO(k),4)}, v12, s[28:31], s63 offen offset:{(k-8)*1024} sc1")
    for k in range(5): xld(k)
    for k in range(10):
        if k + 1 < 10:
            if k + 1 >= NS: e(f"s_waitcnt vmcnt({(min(9,k+4)-(k+1))*6 + 1})")
            rdw(k + 1)
        if k == 0:
            e("s_waitcnt vmcnt(0)")
            stamp(e, 7)
        elif k >= 5: e(f"s_waitcnt vmcnt({(9-k)*6})")
        e(f"s_waitcnt lgkmcnt({10 if k + 1 < 10 else 0})")
        for nt in range(5):
            e(f"v_mfma_f32_32x32x16_bf16 {vr(80+nt*16,16)}, {vr(WS_(k)+nt*4,4)}, {vr(XO(k),4)}, {vr(80+nt*16,16)}")
        if k + NS < 10:
            wslab(k + NS); xld(k + 5)
    stamp(e, 8)
    reduce_write(e, "s58")
    stamp(e, 9)
    e("s_mul_i32 s57, s20, 5120")
    e(f"s_add_u32 s57, s57, {RING}")
    reduce_read(e, NS*5120, "s57")
    for i in range(10):
        e(f"v_cvt_pk_bf16_f32 v{100+i}, v{80+2*i}, v{80+2*i+1}")
    e("v_and_b32 v13, 31, v0")
    e("v_mul_u32_u24 v13, 0x500, v13")
    e("v_lshrrev_b32 v14, 5, v0")
    e("v_lshl_add_u32 v13, v14, 3, v13")
    e("s_mul_i32 s3, s21, 40960")
    e("s_mul_i32 s62, s22, 320")
    e("s_add_u32 s3, s3, s62")
    e("s_mul_i32 s62, s20, 80")
    e("s_add_u32 s3, s3, s62")
    for q in range(5):
        e(f"buffer_store_dwordx2 {vr(100+2*q,2)}, v13, s[40:43], s3 offen offset:{q*16}")
    stamp(e, 4)
    stamp_flush(e, 5, 1, "s79", 13)
    e.label("K2_END")
    e("s_endpgm")
    return name, 168, RING + 4*NS*5120 + 64, 256, 768

def gen_k3(e):
    name = "k3_kernel"
    kernel_head(e, name)
    e("s_cmp_ge_u32 s2, 256")
    e("s_cbranch_scc1 K3_END")
    e("s_load_dwordx2 s[4:5], s[0:1], 32")
    e("s_load_dwordx2 s[6:7], s[0:1], 96")
    e("s_load_dwordx2 s[8:9], s[0:1], 80")
    e("v_lshrrev_b32 v1, 6, v0")
    e("v_and_b32 v0, 63, v0")
    e("s_nop 0")
    e("v_readfirstlane_b32 s20, v1")
    e("s_lshr_b32 s21, s2, 2")
    e("s_and_b32 s22, s2, 3")
    e("s_waitcnt lgkmcnt(0)")
    srd(e, 28, 6, WS_END)
    srd(e, 32, 4, 819200)
    srd(e, 36, 8, 2621440)
    stamp(e, 0)
    NS = 7
    e(f"s_mul_i32 s58, s20, {NS*5120}")
    e("s_mov_b32 s59, 1280")
    gemm_addr_setup(e, "s58", type2=True)
    e("s_mul_i32 s3, s2, 20480")
    e("s_mul_i32 s62, s20, 5120")
    e("s_add_u32 s3, s3, s62")
    e(f"s_add_u32 s3, s3, {BBUF}")
    e("s_add_u32 s62, s3, 4096")
    for q in range(5):
        if q < 4:
            e(f"buffer_load_dwordx4 {vr(160+q*4,4)}, v12, s[28:31], s3 offen offset:{q*1024}")
        else:
            e(f"buffer_load_dwordx4 {vr(160+q*4,4)}, v12, s[28:31], s62 offen")
    e("v_and_b32 v13, 31, v0")
    e("v_lshlrev_b32 v13, 2, v13")
    e("s_lshl_b32 s3, s21, 7")
    e(f"s_add_u32 s3, s3, {GBUF}")
    e("buffer_load_dword v180, v13, s[28:31], s3 offen")
    e("s_mul_i32 s60, s22, 320")
    e("s_mul_i32 s3, s20, 204800")
    e("s_add_u32 s60, s60, s3")
    e("s_mul_i32 s61, s21, 40")
    e("s_lshl_b32 s61, s61, 10")
    e(f"s_add_u32 s61, s61, {OBUF}")
    e("s_lshl_b32 s3, s20, 13")
    e("s_add_u32 s61, s61, s3")
    e("s_mul_i32 s3, s20, 6144")
    e("s_sub_u32 s56, 32768, s3")
    ks = [(0, k*20*1280, k*1024) for k in range(8)]
    ks += [(1, (k*80+16)*1280, None) for k in range(2)]
    ks2 = []
    for (a, b, c) in ks:
        ks2.append((a, b, c))
    e("s_add_u32 s55, s56, 1024")
    ks2[8] = (1, ks[8][1], "s56"); ks2[9] = (1, ks[9][1], "s55")
    stamp(e, 1)
    splitk_gemm(e, "K3", ks2, NS, 32, 28, "s58")
    stamp(e, 2)
    reduce_write(e, "s58")
    stamp(e, 3)
    e("s_mul_i32 s57, s20, 5120")
    reduce_read(e, NS*5120, "s57", wait="vmcnt(0) lgkmcnt(0)")
    e("v_sub_f32 v181, 1.0, v180")
    for i in range(20):
        e(f"v_mul_f32 v{160+i}, v181, v{160+i}")
        e(f"v_fma_f32 v{80+i}, v180, v{80+i}, v{160+i}")
    for i in range(10):
        e(f"v_cvt_pk_bf16_f32 v{100+i}, v{80+2*i}, v{80+2*i+1}")
    e("v_and_b32 v13, 31, v0")
    e("v_mul_u32_u24 v13, 0x500, v13")
    e("v_lshrrev_b32 v14, 5, v0")
    e("v_lshl_add_u32 v13, v14, 3, v13")
    e("s_mul_i32 s3, s21, 40960")
    e("s_mul_i32 s62, s22, 320")
    e("s_add_u32 s3, s3, s62")
    e("s_mul_i32 s62, s20, 80")
    e("s_add_u32 s3, s3, s62")
    for q in range(5):
        e(f"buffer_store_dwordx2 {vr(100+2*q,2)}, v13, s[36:39], s3 offen offset:{q*16}")
    stamp(e, 4)
    stamp_flush(e, 5, 2, "s20", 13)
    e.label("K3_END")
    e("s_endpgm")
    return name, 184, 4*NS*5120, 256, 256
```

```python
from common import *
import math
QSCALE = math.log2(math.e) / math.sqrt(20.0)
import struct
def f2u(f): return struct.unpack('<I', struct.pack('<f', f))[0]

def gen_k1(e):
    name = "k1_kernel"
    kernel_head(e, name)
    e("s_cmp_ge_u32 s2, 256")
    e("s_cbranch_scc1 K1_END")
    e("s_load_dwordx4 s[4:7], s[0:1], 0")
    e("s_load_dwordx4 s[8:11], s[0:1], 16")
    e("s_load_dwordx4 s[12:15], s[0:1], 48")
    e("s_load_dwordx2 s[16:17], s[0:1], 72")
    e("s_load_dwordx2 s[18:19], s[0:1], 96")
    e("s_load_dwordx2 s[60:61], s[0:1], 32")
    e("s_load_dwordx2 s[62:63], s[0:1], 64")
    e("v_lshrrev_b32 v1, 6, v0")
    e("v_and_b32 v0, 63, v0")
    e("s_nop 0")
    e("v_readfirstlane_b32 s20, v1")
    e("s_and_b32 s3, s2, 7")
    e("s_lshr_b32 s21, s2, 3")
    e("s_and_b32 s22, s3, 1")
    e("s_lshl_b32 s22, s22, 3")
    e("s_and_b32 s23, s21, 7")
    e("s_add_u32 s22, s22, s23")
    e("s_lshr_b32 s23, s3, 1")
    e("s_lshl_b32 s23, s23, 2")
    e("s_lshr_b32 s21, s21, 3")
    e("s_add_u32 s23, s23, s21")
    e("s_waitcnt lgkmcnt(0)")
    srd(e, 24, 4, 2621440)
    srd(e, 28, 18, WS_END)
    stamp(e, 0)
    e("s_lshl_b32 s3, s2, 7")
    e(f"s_add_u32 s3, s3, {FLAG}")
    e("v_mov_b32 v1, 0")
    e("v_lshlrev_b32 v2, 2, v0")
    e("v_cmp_gt_u32 vcc, 32, v0")
    e("s_and_saveexec_b64 s[44:45], vcc")
    e("buffer_store_dword v1, v2, s[28:31], s3 offen")
    e("s_mov_b64 exec, s[44:45]")
    e("s_cmp_eq_u32 s23, 15")
    e("s_cbranch_scc1 K1_ROLE_C")
    e("s_cmp_ge_u32 s23, 12")
    e("s_cbranch_scc1 K1_SETUP_B")
    e("s_lshl_b32 s21, s23, 8")
    e("s_sub_u32 s3, 1966080, s21")
    srd(e, 32, 12, "s3", add="s21")
    srd(e, 36, 14, "s3", add="s21")
    e("s_mov_b32 s40, 3072")
    e("s_branch K1_GEMM")
    e.label("K1_SETUP_B")
    e("s_sub_u32 s21, s23, 12")
    e("s_lshl_b32 s21, s21, 9")
    e("s_sub_u32 s3, 819200, s21")
    srd(e, 32, 6, "s3", add="s21")
    e("s_add_u32 s21, s21, 256")
    e("s_sub_u32 s3, 819200, s21")
    srd(e, 36, 6, "s3", add="s21")
    e("s_mov_b32 s40, 1280")
    e.label("K1_GEMM")
    e("s_mov_b32 s56, 1")
    e("s_cmp_ge_u32 s20, 8")
    e("s_cbranch_scc1 K1_HELP")
    e("s_lshl_b32 s41, s40, 2")
    e("s_lshl_b32 s44, s40, 6")
    e("s_lshl_b32 s45, s40, 3")
    e("s_mul_i32 s45, s45, s20")
    e("s_mul_i32 s46, s22, 163840")
    e("s_lshl_b32 s47, s20, 10")
    e("s_lshl_b32 s48, s20, 11")
    e("s_add_u32 s48, s48, 16384")
    e("s_lshr_b32 s49, s20, 2")
    e("s_and_b32 s50, s20, 3")
    e("s_and_b32 s51, s20, 1")
    e("v_lshrrev_b32 v3, 3, v0")
    e("s_lshl_b32 s3, s20, 3")
    e("v_add_u32 v3, s3, v3")
    e("v_mul_u32_u24 v3, 0x500, v3")
    e("v_lshrrev_b32 v4, 4, v0")
    e("s_lshl_b32 s3, s51, 2")
    e("v_add_u32 v4, s3, v4")
    e("v_and_b32 v4, 7, v4")
    e("v_and_b32 v5, 7, v0")
    e("v_xor_b32 v4, v4, v5")
    e("v_lshl_add_u32 v2, v4, 4, v3")
    e("v_lshrrev_b32 v4, 4, v0")
    e("v_mul_lo_u32 v3, v4, s40")
    e("v_lshlrev_b32 v4, 2, v4")
    e("v_and_b32 v5, 15, v0")
    e("v_xor_b32 v4, v4, v5")
    e("v_lshl_add_u32 v1, v4, 4, v3")
    e("s_mov_b32 s52, 0")
    def dma():
        g = []
        for m in range(2):
            g.append([f"s_add_u32 s53, s52, s47",
                      f"s_add_u32 m0, s53, {m*8192}",
                      f"s_add_u32 s3, s46, {m*81920}",
                      f"buffer_load_dwordx4 v2, s[24:27], s3 offen lds"])
        for ee in range(2):
            for u in range(2):
                g.append([f"s_add_u32 s53, s52, s48",
                          f"s_add_u32 m0, s53, {u*16384 + ee*1024}",
                          (f"s_add_u32 s3, s45, s41" if ee else "s_mov_b32 s3, s45"),
                          f"buffer_load_dwordx4 v1, s[{32+4*u}:{35+4*u}], s3 offen lds"])
        g[-1] += ["s_add_u32 s45, s45, s44", "s_add_u32 s46, s46, 128",
                  "s_add_u32 s52, s52, 49152", "s_cmp_ge_u32 s52, 147456", "s_cselect_b32 s3, 147456, 0", "s_sub_u32 s52, s52, s3"]
        return g
    for st in range(2):
        for grp in dma():
            for ins in grp: e(ins)
        if st < 1: e("s_barrier")
    e("v_and_b32 v3, 31, v0")
    e("s_lshl_b32 s3, s49, 6")
    e("v_add_u32 v3, s3, v3")
    e("v_lshrrev_b32 v4, 1, v3")
    e("v_and_b32 v4, 7, v4")
    e("v_lshrrev_b32 v5, 5, v0")
    e("v_lshlrev_b32 v3, 7, v3")
    for ks in range(4):
        e(f"v_or_b32 v24, {ks*2}, v5")
        e("v_xor_b32 v24, v24, v4")
        e(f"v_lshl_add_u32 v{6+ks}, v24, 4, v3")
        e(f"v_mov_b32 v{11+ks}, v{6+ks}")
    e("v_bfe_u32 v3, v0, 2, 2")
    e("v_lshl_add_u32 v4, v5, 3, v3")
    e("v_lshlrev_b32 v4, 8, v4")
    e("v_bfe_u32 v24, v0, 4, 1")
    e("v_lshl_add_u32 v4, v24, 5, v4")
    e("v_and_b32 v24, 3, v0")
    e("v_lshl_add_u32 v4, v24, 3, v4")
    e("v_xor_b32 v24, s50, v3")
    e("v_lshl_add_u32 v10, v24, 6, v4")
    e("v_mov_b32 v15, v10")
    e("v_add_u32 v16, 49152, v6")
    e("v_add_u32 v17, 49152, v10")
    e("s_mov_b32 s54, 49152")
    ACC = lambda u, rt: 96 + (u*2+rt)*16
    XF = lambda p, rt: 32 + p*16 + rt*4
    WF = lambda p, u: 32 + p*16 + 8 + u*4
    for i in range(64): e(f"v_mov_b32 v{96+i}, 0")
    def reads(ks, nxt=False):
        p = ks & 1
        vx = 16 if nxt else 11 + ks
        vw = 17 if nxt else 15
        g = []
        for rt in range(2):
            g.append([f"ds_read_b128 {vr(XF(p,rt),4)}, v{vx} offset:{rt*4096}"])
        for u in range(2):
            for uu in range(2):
                g.append([f"ds_read_b64_tr_b16 {vr(WF(p,u)+uu*2,2)}, v{vw} offset:{16384+u*16384+(ks*16+uu*4)*256}"])
        return g
    stamp(e, 1)
    e("s_waitcnt vmcnt(6)")
    e("s_barrier")
    stamp(e, 2)
    for grp in reads(0):
        for ins in grp: e(ins)
    for grp in dma():
        for ins in grp: e(ins)
    def stage(with_dma, first_dma_part):
        d = dma() if with_dma else []
        for ks in range(4):
            p = ks & 1
            if ks == 3:
                e(f"s_waitcnt vmcnt({6 if with_dma else 0}) lgkmcnt(0)")
                e("s_barrier")
                others = reads(0, nxt=True)
                others += d[0:2]
            else:
                e("s_waitcnt lgkmcnt(0)")
                others = reads(ks+1)
            mf = []
            for rt in range(2):
                for u in range(2):
                    a = ACC(u, rt)
                    mf.append(f"v_mfma_f32_32x32x16_bf16 {vr(a,16)}, {vr(WF(p,u),4)}, {vr(XF(p,rt),4)}, {vr(a,16)}")
            interleave(e, mf, others)
            if ks == 3:
                for grp in d[2:]:
                    for ins in grp: e(ins)
        for ks in range(4):
            e(f"v_add_u32 v{11+ks}, s54, v{6+ks}")
        e("v_mov_b32 v15, v17")
        e("s_add_u32 s54, s54, 49152"); e("s_cmp_ge_u32 s54, 147456"); e("s_cselect_b32 s3, 147456, 0"); e("s_sub_u32 s54, s54, s3")
        e("v_add_u32 v16, s54, v6")
        e("v_add_u32 v17, s54, v10")
    e("s_mov_b32 s55, 0")
    e.l.append(".p2align 6")
    e.label("K1_L1")
    stage(True, 0)
    e("s_add_u32 s55, s55, 1")
    e("s_cmp_lt_u32 s55, 7")
    e("s_cbranch_scc1 K1_L1")
    e.label("K1_L2")
    stage(False, 0)
    e("s_add_u32 s55, s55, 1")
    e("s_cmp_lt_u32 s55, 10")
    e("s_cbranch_scc1 K1_L2")
    stamp(e, 3)
    e("s_nop 15")
    e("s_cmp_ge_u32 s23, 12")
    e("s_cbranch_scc1 K1_EPI_B")
    e("s_lshl_b32 s3, s22, 2")
    e("s_lshl_b32 s21, s49, 1")
    e("s_add_u32 s3, s3, s21")
    e("s_mul_i32 s3, s3, 96")
    e("s_lshl_b32 s21, s23, 3")
    e("s_add_u32 s3, s3, s21")
    e("s_lshl_b32 s21, s50, 1")
    e("s_add_u32 s3, s3, s21")
    e("s_lshl_b32 s3, s3, 10")
    e(f"s_add_u32 s3, s3, {HBUF}")
    e(f"s_add_u32 s21, s3, {96*1024}")
    e("v_lshlrev_b32 v1, 4, v0")
    for rt in range(2):
        g = ACC(0, rt); u_ = ACC(1, rt)
        for i in range(16):
            e(f"v_max_f32 v{g+i}, 0, v{g+i}")
            e(f"v_mul_f32 v{g+i}, v{g+i}, v{u_+i}")
        d = 64 + rt*8
        for i in range(8):
            e(f"v_cvt_pk_bf16_f32 v{d+i}, v{g+2*i}, v{g+2*i+1}")
        for t in range(2):
            e(f"buffer_store_dwordx4 {vr(d+4*t,4)}, v1, s[28:31], {'s3' if rt==0 else 's21'} offen offset:{t*1024}")
    stamp(e, 4)
    stamp_flush(e, 5, 0, "s20", 2)
    e("s_endpgm")
    e.label("K1_EPI_B")
    e("s_sub_u32 s3, s23, 12")
    e("s_lshl_b32 s3, s3, 6")
    e("s_lshl_b32 s21, s50, 3")
    e("s_add_u32 s3, s3, s21")
    e("s_lshl_b32 s3, s3, 14")
    e("s_lshl_b32 s21, s22, 7")
    e("s_lshl_b32 s51, s49, 6")
    e("s_add_u32 s21, s21, s51")
    e("s_lshl_b32 s21, s21, 3")
    e("s_add_u32 s3, s3, s21")
    e("v_and_b32 v1, 31, v0")
    e("v_lshlrev_b32 v1, 3, v1")
    e("v_lshrrev_b32 v2, 5, v0")
    e("v_lshl_add_u32 v1, v2, 14, v1")
    e(f"s_mov_b32 s51, 0x{f2u(QSCALE):08x}")
    for u in range(2):
        if u == 1:
            e("s_cmp_eq_u32 s23, 14")
            e("s_cbranch_scc1 K1_END")
        for rt in range(2):
            a = ACC(u, rt)
            for i in range(16):
                e(f"v_mul_f32 v{a+i}, s51, v{a+i}")
            d = 64 + (u*2+rt)*8
            for i in range(8):
                e(f"v_cvt_pk_bf16_f32 v{d+i}, v{a+2*i}, v{a+2*i+1}")
            for g in range(4):
                e(f"s_add_u32 s21, s3, {(u*32+2*g)*16384}")
                e(f"buffer_store_dwordx2 {vr(d+2*g,2)}, v1, s[28:31], s21 offen offset:{rt*256}")
    e("s_endpgm")

    e.label("K1_ROLE_C")
    e("s_mov_b32 s56, 0")
    e("s_cmp_ge_u32 s20, 8")
    e("s_cbranch_scc1 K1_HELP")
    srd(e, 32, 8, 25600)
    srd(e, 36, 10, 25600)
    srd(e, 40, 16, 1280)
    e("s_and_b32 s3, s20, 3")
    e("s_lshl_b32 s21, s22, 2")
    e("s_add_u32 s21, s21, s3")
    e("s_lshl_b32 s44, s20, 6")
    e("v_add_u32 v3, s44, v0")
    e("v_lshlrev_b32 v4, 2, v3")
    for i in range(13):
        e(f"buffer_load_dword v{8+i}, v4, s[32:35], 0 offen offset:{(i%2)*2048}")
        e(f"buffer_load_dword v{33+i}, v4, s[36:39], 0 offen offset:{(i%2)*2048}")
        if i % 2 == 1: e("v_add_u32 v4, 4096, v4")
    e("v_lshlrev_b32 v4, 1, v3")
    for i in range(2):
        e(f"buffer_load_ushort v{58+i}, v4, s[40:43], 0 offen offset:{i*1024}")
    e("s_and_b32 s51, s20, 1")
    e("v_lshrrev_b32 v5, 3, v0")
    e("s_lshl_b32 s3, s20, 3")
    e("v_add_u32 v5, s3, v5")
    e("v_mul_u32_u24 v5, 0x500, v5")
    e("v_lshrrev_b32 v6, 4, v0")
    e("s_lshl_b32 s3, s51, 2")
    e("v_add_u32 v6, s3, v6")
    e("v_and_b32 v6, 7, v6")
    e("v_and_b32 v7, 7, v0")
    e("v_xor_b32 v6, v6, v7")
    e("v_lshl_add_u32 v62, v6, 4, v5")
    e("s_mul_i32 s46, s22, 163840")
    e("s_lshl_b32 s47, s20, 10")
    def cdma(kb):
        for m in range(2):
            e(f"s_add_u32 m0, s47, {81920 + (kb%4)*16384 + m*8192}")
            e(f"s_add_u32 s3, s46, {m*81920 + kb*128}")
            e("buffer_load_dwordx4 v62, s[24:27], s3 offen lds")
    for kb in range(3): cdma(kb)
    e("v_mov_b32 v144, 0"); e("v_mov_b32 v145, 0"); e("v_mov_b32 v146, 0"); e("v_mov_b32 v147, 0")
    e("v_lshlrev_b32 v4, 4, v3")
    for i in range(8):
        e(f"ds_write_b128 v4, v[144:147] offset:{i*8192}")
    e("v_add_u32 v5, 65536, v4")
    for i in range(2):
        e(f"ds_write_b128 v5, v[144:147] offset:{i*8192}")
    e("s_waitcnt lgkmcnt(0)")
    e("s_barrier")
    e("s_mov_b32 s3, 0xCCCCCCCD")
    e("s_waitcnt vmcnt(6)")
    for i in range(13):
        e(f"v_add_u32 v4, {512*i}, v3")
        e("v_mul_hi_u32 v5, v4, s3")
        e("v_lshrrev_b32 v5, 3, v5")
        e("v_mul_u32_u24 v6, 10, v5")
        e("v_sub_u32 v6, v4, v6")
        e("v_lshlrev_b32 v5, 6, v5")
        e("v_lshl_add_u32 v5, v6, 2, v5")
        if i == 12:
            e("v_cmp_gt_u32 vcc, 256, v3")
            e("s_and_saveexec_b64 s[44:45], vcc")
        e(f"ds_write_b32 v5, v{8+i}")
        e(f"ds_write_b32 v5, v{33+i} offset:40960")
        if i == 12:
            e("s_mov_b64 exec, s[44:45]")
    e("v_lshlrev_b32 v4, 6, v3")
    e("ds_write_b16 v4, v58 offset:44")
    e("v_cmp_gt_u32 vcc, 128, v3")
    e("s_and_saveexec_b64 s[44:45], vcc")
    e(f"ds_write_b16 v4, v59 offset:{44+32768}")
    e("s_mov_b64 exec, s[44:45]")
    e("s_waitcnt lgkmcnt(0)")
    e("s_barrier")
    e("v_bfe_u32 v3, v0, 2, 2")
    e("v_lshrrev_b32 v5, 5, v0")
    e("v_lshl_add_u32 v4, v5, 3, v3")
    e("v_lshlrev_b32 v4, 6, v4")
    e("v_bfe_u32 v6, v0, 4, 1")
    e("v_lshl_add_u32 v4, v6, 5, v4")
    e("v_and_b32 v6, 3, v0")
    e("v_lshl_add_u32 v4, v6, 3, v4")
    e(f"s_mul_i32 s48, s21, {KV_TILE}")
    e(f"s_add_u32 s48, s48, {KVBUF}")
    e("v_lshlrev_b32 v1, 4, v0")
    e("v_lshlrev_b32 v2, 3, v0")
    e("v_mov_b32 v60, 0x3f803f80")
    e("v_mov_b32 v61, 0")
    KA = 144
    e("v_and_b32 v5, 31, v0")
    e("s_and_b32 s44, s20, 3")
    e("s_lshl_b32 s44, s44, 5")
    e("v_add_u32 v5, s44, v5")
    e("v_lshrrev_b32 v6, 1, v5")
    e("v_and_b32 v6, 7, v6")
    e("v_lshrrev_b32 v7, 5, v0")
    e("v_lshlrev_b32 v5, 7, v5")
    e("v_add_u32 v5, 81920, v5")
    for ks in range(4):
        e(f"v_or_b32 v24, {ks*2}, v7")
        e("v_xor_b32 v24, v24, v6")
        e(f"v_lshl_add_u32 v{64+ks}, v24, 4, v5")
    e("s_cmp_ge_u32 s20, 4")
    e("s_cbranch_scc1 K1_C_V")
    def body(isV):
        for kb in range(10):
            e(f"s_waitcnt vmcnt({2*min(2, 9-kb)})")
            e("s_barrier")
            if kb + 3 < 10: cdma(kb+3)
            for ks in range(4):
                k = kb*4 + ks
                e(f"ds_read_b128 {vr(72+ks*4,4)}, v{64+ks} offset:{(kb%4)*16384}")
                e(f"ds_read_b64_tr_b16 {vr(8+ks*4,2)}, v4 offset:{k*1024}")
                e(f"ds_read_b64_tr_b16 {vr(10+ks*4,2)}, v4 offset:{k*1024+256}")
            for ks in range(4):
                e(f"s_waitcnt lgkmcnt({9-3*ks})")
                ck = "0" if (kb == 0 and ks == 0) else vr(KA, 16)
                if isV: e(f"v_mfma_f32_32x32x16_bf16 {vr(KA,16)}, {vr(72+ks*4,4)}, {vr(8+ks*4,4)}, {ck}")
                else:   e(f"v_mfma_f32_32x32x16_bf16 {vr(KA,16)}, {vr(8+ks*4,4)}, {vr(72+ks*4,4)}, {ck}")
        e("s_nop 15")
    body(False)
    for i in range(6):
        e(f"v_cvt_pk_bf16_f32 v{8+i}, v{KA+2*i}, v{KA+2*i+1}")
    e(f"v_mul_f32 v20, 0xbfb8aa3b, v{KA+10}")
    e("v_exp_f32 v20, v20")
    e("s_nop 0")
    e("v_add_f32 v20, 1.0, v20")
    e("v_rcp_f32 v20, v20")
    e("v_cmp_le_u32 vcc, 32, v0")
    e("s_nop 1")
    e("v_cndmask_b32 v12, v12, v60, vcc")
    e("v_cndmask_b32 v13, v13, v61, vcc")
    e("buffer_store_dwordx4 v[8:11], v1, s[28:31], s48 offen")
    e("buffer_store_dwordx2 v[12:13], v2, s[28:31], s48 offen offset:1024")
    e("s_lshl_b32 s44, s21, 7")
    e(f"s_add_u32 s44, s44, {GBUF - 128}")
    e("v_lshlrev_b32 v23, 2, v0")
    e("s_and_saveexec_b64 s[46:47], vcc")
    e("buffer_store_dword v20, v23, s[28:31], s44 offen")
    e("s_endpgm")
    e.label("K1_C_V")
    e("v_add_u32 v4, 40960, v4")
    body(True)
    e("v_and_b32 v23, 31, v0")
    e("v_cmp_eq_u32 vcc, 20, v23")
    for i in range(8):
        e(f"v_cvt_pk_bf16_f32 v{24+i}, v{KA+2*i}, v{KA+2*i+1}")
    for i in range(8):
        e(f"v_cndmask_b32 v{24+i}, v{24+i}, v60, vcc")
    e("buffer_store_dwordx4 v[24:27], v1, s[28:31], s48 offen offset:1536")
    e("buffer_store_dwordx4 v[28:31], v1, s[28:31], s48 offen offset:2560")
    stamp(e, 4)
    stamp_flush(e, 5, 0, "s20", 2)
    e("s_endpgm")
    e.label("K1_HELP")
    e("s_sub_u32 s20, s20, 8")
    srd(e, 32, 12, 1966080)
    srd(e, 36, 14, 1966080)
    srd(e, 40, 6, 819200)
    srd(e, 48, 60, 819200)
    srd(e, 52, 62, 1966080)
    e("s_lshl_b32 s3, s2, 2")
    e("s_add_u32 s3, s3, s20")
    e("s_lshl_b32 s3, s3, 10")
    e("s_add_u32 s44, s3, 0x100000")
    e("s_add_u32 s45, s3, 0x200000")
    e("v_lshlrev_b32 v1, 4, v0")
    e("v_lshlrev_b32 v2, 16, v0")
    e("s_lshr_b32 s46, s2, 3")
    e("s_and_b32 s46, s46, 3")
    e("s_cmp_eq_u32 s46, 0")
    e("s_cbranch_scc1 K1_T0")
    e("s_cmp_eq_u32 s46, 1")
    e("s_cbranch_scc1 K1_T1")
    e("s_cmp_eq_u32 s46, 2")
    e("s_cbranch_scc1 K1_T2")
    e("s_lshl_b32 s46, s20, 22")
    e("buffer_load_dword v8, v2, s[28:31], s46 offen")
    e("buffer_load_dword v8, v2, s[40:43], 0 offen")
    e("s_branch K1_T0")
    e.label("K1_T1")
    e("buffer_load_dword v8, v2, s[32:35], 0 offen")
    e("s_branch K1_T0")
    e.label("K1_T2")
    e("buffer_load_dword v8, v2, s[36:39], 0 offen")
    e.label("K1_T0")
    e("buffer_load_dword v8, v2, s[24:27], 0 offen")
    e("s_cmp_eq_u32 s56, 0")
    e("s_cbranch_scc1 K1_T3")
    e("s_barrier")
    e.label("K1_T3")
    e("buffer_load_dwordx4 v[4:7], v1, s[24:27], s3 offen")
    e("buffer_load_dwordx4 v[4:7], v1, s[32:35], s3 offen")
    e("buffer_load_dwordx4 v[4:7], v1, s[36:39], s3 offen")
    e("buffer_load_dwordx4 v[4:7], v1, s[24:27], s44 offen")
    e("buffer_load_dwordx4 v[4:7], v1, s[24:27], s45 offen")
    e("buffer_load_dwordx4 v[4:7], v1, s[40:43], s3 offen")
    e("buffer_load_dwordx4 v[4:7], v1, s[32:35], s44 offen")
    e("buffer_load_dwordx4 v[4:7], v1, s[36:39], s44 offen")
    for i in range(6): e("s_barrier")
    e("buffer_load_dwordx4 v[4:7], v1, s[52:55], s3 offen")
    e("buffer_load_dwordx4 v[8:11], v1, s[52:55], s44 offen")
    e("buffer_load_dwordx4 v[12:15], v1, s[48:51], s3 offen")
    for i in range(5): e("s_barrier")
    e.label("K1_END")
    e("s_endpgm")
    return name, 168, 147456, 256, 768
```

```python
from common import *
from k23 import CNT
import math
QSCALE = math.log2(math.e) / math.sqrt(20.0)
import struct
def f2u(f): return struct.unpack('<I', struct.pack('<f', f))[0]

def gen_k1(e):
    name = "gated_mix__grouped_kv_mqa__glu_gated_reglu__prompt_kernel"
    kernel_head(e, name)
    e("s_cmp_ge_u32 s2, 256")
    e("s_cbranch_scc1 K2_END")
    e("s_load_dwordx4 s[4:7], s[0:1], 0")
    e("s_load_dwordx4 s[8:11], s[0:1], 16")
    e("s_load_dwordx4 s[12:15], s[0:1], 48")
    e("s_load_dwordx2 s[16:17], s[0:1], 72")
    e("s_load_dwordx2 s[18:19], s[0:1], 96")
    e("s_load_dwordx2 s[60:61], s[0:1], 32")
    e("s_load_dwordx2 s[62:63], s[0:1], 64")
    e("s_load_dwordx2 s[64:65], s[0:1], 88")
    e("v_lshrrev_b32 v1, 6, v0")
    e("v_and_b32 v0, 63, v0")
    e("s_nop 0")
    e("v_readfirstlane_b32 s20, v1")
    e("s_nop 3")
    e("s_mov_b32 s79, s20")
    e("s_and_b32 s3, s2, 7")
    e("s_lshr_b32 s21, s2, 3")
    e("s_and_b32 s22, s3, 1")
    e("s_lshl_b32 s22, s22, 3")
    e("s_and_b32 s23, s21, 7")
    e("s_add_u32 s22, s22, s23")
    e("s_lshr_b32 s23, s3, 1")
    e("s_lshl_b32 s23, s23, 2")
    e("s_lshr_b32 s21, s21, 3")
    e("s_add_u32 s23, s23, s21")
    e("s_waitcnt lgkmcnt(0)")
    srd(e, 24, 4, 2621440)
    srd(e, 28, 18, WS_END)
    stamp(e, 0)
    e("s_cmp_eq_u32 s23, 15")
    e("s_cbranch_scc1 K1_ROLE_C")
    e("s_cmp_ge_u32 s23, 12")
    e("s_cbranch_scc1 K1_SETUP_B")
    e("s_lshl_b32 s21, s23, 8")
    e("s_sub_u32 s3, 1966080, s21")
    srd(e, 32, 12, "s3", add="s21")
    srd(e, 36, 14, "s3", add="s21")
    e("s_mov_b32 s40, 3072")
    e("s_branch K1_GEMM")
    e.label("K1_SETUP_B")
    e("s_sub_u32 s21, s23, 12")
    e("s_lshl_b32 s21, s21, 9")
    e("s_sub_u32 s3, 819200, s21")
    srd(e, 32, 6, "s3", add="s21")
    e("s_add_u32 s21, s21, 256")
    e("s_sub_u32 s3, 819200, s21")
    srd(e, 36, 6, "s3", add="s21")
    e("s_mov_b32 s40, 1280")
    e.label("K1_GEMM")
    e("s_mov_b32 s56, 1")
    e("s_cmp_ge_u32 s20, 8")
    e("s_cbranch_scc1 K1_HELP")
    e("s_lshl_b32 s41, s40, 2")
    e("s_lshl_b32 s44, s40, 6")
    e("s_lshl_b32 s45, s40, 3")
    e("s_mul_i32 s45, s45, s20")
    e("s_mul_i32 s46, s22, 163840")
    e("s_lshl_b32 s47, s20, 10")
    e("s_lshl_b32 s48, s20, 11")
    e("s_add_u32 s48, s48, 16384")
    e("s_lshr_b32 s49, s20, 2")
    e("s_and_b32 s50, s20, 3")
    e("s_and_b32 s51, s20, 1")
    e("v_lshrrev_b32 v3, 3, v0")
    e("s_lshl_b32 s3, s20, 3")
    e("v_add_u32 v3, s3, v3")
    e("v_mul_u32_u24 v3, 0x500, v3")
    e("v_lshrrev_b32 v4, 4, v0")
    e("s_lshl_b32 s3, s51, 2")
    e("v_add_u32 v4, s3, v4")
    e("v_and_b32 v4, 7, v4")
    e("v_and_b32 v5, 7, v0")
    e("v_xor_b32 v4, v4, v5")
    e("v_lshl_add_u32 v2, v4, 4, v3")
    e("v_lshrrev_b32 v4, 4, v0")
    e("v_mul_lo_u32 v3, v4, s40")
    e("v_lshlrev_b32 v4, 2, v4")
    e("v_and_b32 v5, 15, v0")
    e("v_xor_b32 v4, v4, v5")
    e("v_lshl_add_u32 v1, v4, 4, v3")
    e("s_mov_b32 s52, 0")
    def dma():
        g = []
        for m in range(2):
            g.append([f"s_add_u32 s53, s52, s47",
                      f"s_add_u32 m0, s53, {m*8192}",
                      f"s_add_u32 s3, s46, {m*81920}",
                      f"buffer_load_dwordx4 v2, s[24:27], s3 offen lds"])
        for ee in range(2):
            for u in range(2):
                g.append([f"s_add_u32 s53, s52, s48",
                          f"s_add_u32 m0, s53, {u*16384 + ee*1024}",
                          (f"s_add_u32 s3, s45, s41" if ee else "s_mov_b32 s3, s45"),
                          f"buffer_load_dwordx4 v1, s[{32+4*u}:{35+4*u}], s3 offen lds"])
        g[-1] += ["s_add_u32 s45, s45, s44", "s_add_u32 s46, s46, 128",
                  "s_add_u32 s52, s52, 49152", "s_cmp_ge_u32 s52, 147456", "s_cselect_b32 s3, 147456, 0", "s_sub_u32 s52, s52, s3"]
        return g
    for st in range(2):
        for grp in dma():
            for ins in grp: e(ins)
        if st < 1: e("s_barrier")
    e("v_and_b32 v3, 31, v0")
    e("s_lshl_b32 s3, s49, 6")
    e("v_add_u32 v3, s3, v3")
    e("v_lshrrev_b32 v4, 1, v3")
    e("v_and_b32 v4, 7, v4")
    e("v_lshrrev_b32 v5, 5, v0")
    e("v_lshlrev_b32 v3, 7, v3")
    for ks in range(4):
        e(f"v_or_b32 v24, {ks*2}, v5")
        e("v_xor_b32 v24, v24, v4")
        e(f"v_lshl_add_u32 v{6+ks}, v24, 4, v3")
        e(f"v_mov_b32 v{11+ks}, v{6+ks}")
    e("v_bfe_u32 v3, v0, 2, 2")
    e("v_lshl_add_u32 v4, v5, 3, v3")
    e("v_lshlrev_b32 v4, 8, v4")
    e("v_bfe_u32 v24, v0, 4, 1")
    e("v_lshl_add_u32 v4, v24, 5, v4")
    e("v_and_b32 v24, 3, v0")
    e("v_lshl_add_u32 v4, v24, 3, v4")
    e("v_xor_b32 v24, s50, v3")
    e("v_lshl_add_u32 v10, v24, 6, v4")
    e("v_mov_b32 v15, v10")
    e("v_add_u32 v16, 49152, v6")
    e("v_add_u32 v17, 49152, v10")
    e("s_mov_b32 s54, 49152")
    ACC = lambda u, rt: 96 + (u*2+rt)*16
    XF = lambda p, rt: 32 + p*16 + rt*4
    WF = lambda p, u: 32 + p*16 + 8 + u*4
    for i in range(64): e(f"v_mov_b32 v{96+i}, 0")
    def reads(ks, nxt=False):
        p = ks & 1
        vx = 16 if nxt else 11 + ks
        vw = 17 if nxt else 15
        g = []
        for rt in range(2):
            g.append([f"ds_read_b128 {vr(XF(p,rt),4)}, v{vx} offset:{rt*4096}"])
        for u in range(2):
            for uu in range(2):
                g.append([f"ds_read_b64_tr_b16 {vr(WF(p,u)+uu*2,2)}, v{vw} offset:{16384+u*16384+(ks*16+uu*4)*256}"])
        return g
    stamp(e, 1)
    e("s_waitcnt vmcnt(6)")
    e("s_barrier")
    stamp(e, 2)
    for grp in reads(0):
        for ins in grp: e(ins)
    for grp in dma():
        for ins in grp: e(ins)
    def stage(with_dma, first_dma_part):
        d = dma() if with_dma else []
        for ks in range(4):
            p = ks & 1
            if ks == 3:
                e(f"s_waitcnt vmcnt({6 if with_dma else 0}) lgkmcnt(0)")
                e("s_barrier")
                others = reads(0, nxt=True)
                others += d[0:2]
            else:
                e("s_waitcnt lgkmcnt(0)")
                others = reads(ks+1)
            mf = []
            for rt in range(2):
                for u in range(2):
                    a = ACC(u, rt)
                    mf.append(f"v_mfma_f32_32x32x16_bf16 {vr(a,16)}, {vr(WF(p,u),4)}, {vr(XF(p,rt),4)}, {vr(a,16)}")
            interleave(e, mf, others)
            if ks == 3:
                for grp in d[2:]:
                    for ins in grp: e(ins)
        for ks in range(4):
            e(f"v_add_u32 v{11+ks}, s54, v{6+ks}")
        e("v_mov_b32 v15, v17")
        e("s_add_u32 s54, s54, 49152"); e("s_cmp_ge_u32 s54, 147456"); e("s_cselect_b32 s3, 147456, 0"); e("s_sub_u32 s54, s54, s3")
        e("v_add_u32 v16, s54, v6")
        e("v_add_u32 v17, s54, v10")
    e("s_mov_b32 s55, 0")
    e.l.append(".p2align 6")
    e.label("K1_L1")
    stage(True, 0)
    e("s_add_u32 s55, s55, 1")
    e("s_cmp_lt_u32 s55, 7")
    e("s_cbranch_scc1 K1_L1")
    e.label("K1_L2")
    stage(False, 0)
    e("s_add_u32 s55, s55, 1")
    e("s_cmp_lt_u32 s55, 10")
    e("s_cbranch_scc1 K1_L2")
    stamp(e, 3)
    e("s_nop 15")
    e("s_cmp_ge_u32 s23, 12")
    e("s_cbranch_scc1 K1_EPI_B")
    e("s_lshl_b32 s3, s22, 2")
    e("s_lshl_b32 s21, s49, 1")
    e("s_add_u32 s3, s3, s21")
    e("s_mul_i32 s3, s3, 96")
    e("s_lshl_b32 s21, s23, 3")
    e("s_add_u32 s3, s3, s21")
    e("s_lshl_b32 s21, s50, 1")
    e("s_add_u32 s3, s3, s21")
    e("s_lshl_b32 s3, s3, 10")
    e(f"s_add_u32 s3, s3, {HBUF}")
    e(f"s_add_u32 s21, s3, {96*1024}")
    e("v_lshlrev_b32 v1, 4, v0")
    for rt in range(2):
        g = ACC(0, rt); u_ = ACC(1, rt)
        for i in range(16):
            e(f"v_max_f32 v{g+i}, 0, v{g+i}")
            e(f"v_mul_f32 v{g+i}, v{g+i}, v{u_+i}")
        d = 64 + rt*8
        for i in range(8):
            e(f"v_cvt_pk_bf16_f32 v{d+i}, v{g+2*i}, v{g+2*i+1}")
        for t in range(2):
            e(f"buffer_store_dwordx4 {vr(d+4*t,4)}, v1, s[28:31], {'s3' if rt==0 else 's21'} offen offset:{t*1024} sc1")
    stamp(e, 4)
    stamp_flush(e, 5, 0, "s20", 2)
    e("s_mov_b64 exec, -1")
    e("s_branch P1_DONE")
    e.label("K1_EPI_B")
    e("s_sub_u32 s3, s23, 12")
    e("s_lshl_b32 s3, s3, 6")
    e("s_lshl_b32 s21, s50, 3")
    e("s_add_u32 s3, s3, s21")
    e("s_lshl_b32 s3, s3, 14")
    e("s_lshl_b32 s21, s22, 7")
    e("s_lshl_b32 s51, s49, 6")
    e("s_add_u32 s21, s21, s51")
    e("s_lshl_b32 s21, s21, 3")
    e("s_add_u32 s3, s3, s21")
    e("v_and_b32 v1, 31, v0")
    e("v_lshlrev_b32 v1, 3, v1")
    e("v_lshrrev_b32 v2, 5, v0")
    e("v_lshl_add_u32 v1, v2, 14, v1")
    e(f"s_mov_b32 s51, 0x{f2u(QSCALE):08x}")
    for u in range(2):
        if u == 1:
            e("s_cmp_eq_u32 s23, 14")
            e("s_cbranch_scc1 P1_DONE")
        for rt in range(2):
            a = ACC(u, rt)
            for i in range(16):
                e(f"v_mul_f32 v{a+i}, s51, v{a+i}")
            d = 64 + (u*2+rt)*8
            for i in range(8):
                e(f"v_cvt_pk_bf16_f32 v{d+i}, v{a+2*i}, v{a+2*i+1}")
            for g in range(4):
                e(f"s_add_u32 s21, s3, {(u*32+2*g)*16384}")
                e(f"buffer_store_dwordx2 {vr(d+2*g,2)}, v1, s[28:31], s21 offen offset:{rt*256} sc1")
    e("s_branch P1_DONE")

    e.label("K1_ROLE_C")
    e("s_mov_b32 s56, 0")
    e("s_cmp_ge_u32 s20, 8")
    e("s_cbranch_scc1 K1_HELP")
    srd(e, 32, 8, 25600)
    srd(e, 36, 10, 25600)
    srd(e, 40, 16, 1280)
    e("s_and_b32 s3, s20, 3")
    e("s_lshl_b32 s21, s22, 2")
    e("s_add_u32 s21, s21, s3")
    e("s_lshl_b32 s44, s20, 6")
    e("v_add_u32 v3, s44, v0")
    e("v_lshlrev_b32 v4, 2, v3")
    for i in range(13):
        e(f"buffer_load_dword v{8+i}, v4, s[32:35], 0 offen offset:{(i%2)*2048}")
        e(f"buffer_load_dword v{33+i}, v4, s[36:39], 0 offen offset:{(i%2)*2048}")
        if i % 2 == 1: e("v_add_u32 v4, 4096, v4")
    e("v_lshlrev_b32 v4, 1, v3")
    for i in range(2):
        e(f"buffer_load_ushort v{58+i}, v4, s[40:43], 0 offen offset:{i*1024}")
    e("s_and_b32 s51, s20, 1")
    e("v_lshrrev_b32 v5, 3, v0")
    e("s_lshl_b32 s3, s20, 3")
    e("v_add_u32 v5, s3, v5")
    e("v_mul_u32_u24 v5, 0x500, v5")
    e("v_lshrrev_b32 v6, 4, v0")
    e("s_lshl_b32 s3, s51, 2")
    e("v_add_u32 v6, s3, v6")
    e("v_and_b32 v6, 7, v6")
    e("v_and_b32 v7, 7, v0")
    e("v_xor_b32 v6, v6, v7")
    e("v_lshl_add_u32 v62, v6, 4, v5")
    e("s_mul_i32 s46, s22, 163840")
    e("s_lshl_b32 s47, s20, 10")
    def cdma(kb):
        for m in range(2):
            e(f"s_add_u32 m0, s47, {81920 + (kb%4)*16384 + m*8192}")
            e(f"s_add_u32 s3, s46, {m*81920 + kb*128}")
            e("buffer_load_dwordx4 v62, s[24:27], s3 offen lds")
    for kb in range(3): cdma(kb)
    e("v_mov_b32 v144, 0"); e("v_mov_b32 v145, 0"); e("v_mov_b32 v146, 0"); e("v_mov_b32 v147, 0")
    e("v_lshlrev_b32 v4, 4, v3")
    for i in range(8):
        e(f"ds_write_b128 v4, v[144:147] offset:{i*8192}")
    e("v_add_u32 v5, 65536, v4")
    for i in range(2):
        e(f"ds_write_b128 v5, v[144:147] offset:{i*8192}")
    e("s_waitcnt lgkmcnt(0)")
    e("s_barrier")
    e("s_mov_b32 s3, 0xCCCCCCCD")
    e("s_waitcnt vmcnt(6)")
    for i in range(13):
        e(f"v_add_u32 v4, {512*i}, v3")
        e("v_mul_hi_u32 v5, v4, s3")
        e("v_lshrrev_b32 v5, 3, v5")
        e("v_mul_u32_u24 v6, 10, v5")
        e("v_sub_u32 v6, v4, v6")
        e("v_lshlrev_b32 v5, 6, v5")
        e("v_lshl_add_u32 v5, v6, 2, v5")
        if i == 12:
            e("v_cmp_gt_u32 vcc, 256, v3")
            e("s_and_saveexec_b64 s[44:45], vcc")
        e(f"ds_write_b32 v5, v{8+i}")
        e(f"ds_write_b32 v5, v{33+i} offset:40960")
        if i == 12:
            e("s_mov_b64 exec, s[44:45]")
    e("v_lshlrev_b32 v4, 6, v3")
    e("ds_write_b16 v4, v58 offset:44")
    e("v_cmp_gt_u32 vcc, 128, v3")
    e("s_and_saveexec_b64 s[44:45], vcc")
    e(f"ds_write_b16 v4, v59 offset:{44+32768}")
    e("s_mov_b64 exec, s[44:45]")
    e("s_waitcnt lgkmcnt(0)")
    e("s_barrier")
    e("v_bfe_u32 v3, v0, 2, 2")
    e("v_lshrrev_b32 v5, 5, v0")
    e("v_lshl_add_u32 v4, v5, 3, v3")
    e("v_lshlrev_b32 v4, 6, v4")
    e("v_bfe_u32 v6, v0, 4, 1")
    e("v_lshl_add_u32 v4, v6, 5, v4")
    e("v_and_b32 v6, 3, v0")
    e("v_lshl_add_u32 v4, v6, 3, v4")
    e(f"s_mul_i32 s48, s21, {KV_TILE}")
    e(f"s_add_u32 s48, s48, {KVBUF}")
    e("v_lshlrev_b32 v1, 4, v0")
    e("v_lshlrev_b32 v2, 3, v0")
    e("v_mov_b32 v60, 0x3f803f80")
    e("v_mov_b32 v61, 0")
    KA = 144
    e("v_and_b32 v5, 31, v0")
    e("s_and_b32 s44, s20, 3")
    e("s_lshl_b32 s44, s44, 5")
    e("v_add_u32 v5, s44, v5")
    e("v_lshrrev_b32 v6, 1, v5")
    e("v_and_b32 v6, 7, v6")
    e("v_lshrrev_b32 v7, 5, v0")
    e("v_lshlrev_b32 v5, 7, v5")
    e("v_add_u32 v5, 81920, v5")
    for ks in range(4):
        e(f"v_or_b32 v24, {ks*2}, v7")
        e("v_xor_b32 v24, v24, v6")
        e(f"v_lshl_add_u32 v{64+ks}, v24, 4, v5")
    e("s_cmp_ge_u32 s20, 4")
    e("s_cbranch_scc1 K1_C_V")
    def body(isV):
        for kb in range(10):
            e(f"s_waitcnt vmcnt({2*min(2, 9-kb)})")
            e("s_barrier")
            if kb + 3 < 10: cdma(kb+3)
            for ks in range(4):
                k = kb*4 + ks
                e(f"ds_read_b128 {vr(72+ks*4,4)}, v{64+ks} offset:{(kb%4)*16384}")
                e(f"ds_read_b64_tr_b16 {vr(8+ks*4,2)}, v4 offset:{k*1024}")
                e(f"ds_read_b64_tr_b16 {vr(10+ks*4,2)}, v4 offset:{k*1024+256}")
            for ks in range(4):
                e(f"s_waitcnt lgkmcnt({9-3*ks})")
                ck = "0" if (kb == 0 and ks == 0) else vr(KA, 16)
                if isV: e(f"v_mfma_f32_32x32x16_bf16 {vr(KA,16)}, {vr(72+ks*4,4)}, {vr(8+ks*4,4)}, {ck}")
                else:   e(f"v_mfma_f32_32x32x16_bf16 {vr(KA,16)}, {vr(8+ks*4,4)}, {vr(72+ks*4,4)}, {ck}")
        e("s_nop 15")
    body(False)
    for i in range(6):
        e(f"v_cvt_pk_bf16_f32 v{8+i}, v{KA+2*i}, v{KA+2*i+1}")
    e(f"v_mul_f32 v20, 0xbfb8aa3b, v{KA+10}")
    e("v_exp_f32 v20, v20")
    e("s_nop 0")
    e("v_add_f32 v20, 1.0, v20")
    e("v_rcp_f32 v20, v20")
    e("v_cmp_le_u32 vcc, 32, v0")
    e("s_nop 1")
    e("v_cndmask_b32 v12, v12, v60, vcc")
    e("v_cndmask_b32 v13, v13, v61, vcc")
    e("buffer_store_dwordx4 v[8:11], v1, s[28:31], s48 offen sc1")
    e("buffer_store_dwordx2 v[12:13], v2, s[28:31], s48 offen offset:1024 sc1")
    e("s_lshl_b32 s44, s21, 7")
    e(f"s_add_u32 s44, s44, {GBUF - 128}")
    e("v_lshlrev_b32 v23, 2, v0")
    e("s_and_saveexec_b64 s[46:47], vcc")
    e("buffer_store_dword v20, v23, s[28:31], s44 offen sc1")
    e("s_mov_b64 exec, -1")
    e("s_branch P1_DONE")
    e.label("K1_C_V")
    e("v_add_u32 v4, 40960, v4")
    body(True)
    e("v_and_b32 v23, 31, v0")
    e("v_cmp_eq_u32 vcc, 20, v23")
    for i in range(8):
        e(f"v_cvt_pk_bf16_f32 v{24+i}, v{KA+2*i}, v{KA+2*i+1}")
    for i in range(8):
        e(f"v_cndmask_b32 v{24+i}, v{24+i}, v60, vcc")
    e("buffer_store_dwordx4 v[24:27], v1, s[28:31], s48 offen offset:1536 sc1")
    e("buffer_store_dwordx4 v[28:31], v1, s[28:31], s48 offen offset:2560 sc1")
    stamp(e, 4)
    stamp_flush(e, 5, 0, "s20", 2)
    e("s_mov_b64 exec, -1")
    e("s_branch P1_DONE")
    e.label("K1_HELP")
    e("s_sub_u32 s20, s20, 8")
    srd(e, 32, 12, 1966080)
    srd(e, 36, 14, 1966080)
    srd(e, 40, 6, 819200)
    srd(e, 48, 60, 819200)
    srd(e, 52, 62, 1966080)
    e("s_lshl_b32 s3, s2, 2")
    e("s_add_u32 s3, s3, s20")
    e("s_lshl_b32 s3, s3, 10")
    e("s_add_u32 s44, s3, 0x100000")
    e("s_add_u32 s45, s3, 0x200000")
    e("v_lshlrev_b32 v1, 4, v0")
    srd(e, 68, 64, 256)
    e("v_mov_b32 v2, 0")
    e("s_or_b32 s46, s2, s20")
    e("s_cmp_lg_u32 s46, 0")
    e("s_cbranch_scc1 K1_T0")
    e("s_memrealtime s[46:47]")
    e("s_waitcnt lgkmcnt(0)")
    e("s_or_b32 s46, s46, 1")
    e("v_mov_b32 v3, s46")
    e("s_mov_b64 exec, 1")
    e("buffer_store_dword v3, v2, s[68:71], 0 offen sc1")
    e("s_mov_b64 exec, -1")
    e.label("K1_T0")
    e("s_barrier")
    e("buffer_load_dwordx4 v[4:7], v1, s[24:27], s3 offen")
    e("buffer_load_dwordx4 v[4:7], v1, s[32:35], s3 offen")
    e("buffer_load_dwordx4 v[4:7], v1, s[36:39], s3 offen")
    e("buffer_load_dwordx4 v[4:7], v1, s[24:27], s44 offen")
    e("buffer_load_dwordx4 v[4:7], v1, s[24:27], s45 offen")
    e("buffer_load_dwordx4 v[4:7], v1, s[40:43], s3 offen")
    e("buffer_load_dwordx4 v[4:7], v1, s[32:35], s44 offen")
    e("buffer_load_dwordx4 v[4:7], v1, s[36:39], s44 offen")
    for i in range(6): e("s_barrier")
    e("buffer_load_dwordx4 v[4:7], v1, s[52:55], s3 offen")
    e("buffer_load_dwordx4 v[8:11], v1, s[52:55], s44 offen")
    e("buffer_load_dwordx4 v[12:15], v1, s[48:51], s3 offen")
    for i in range(3): e("s_barrier")
    e("s_cmp_lg_u32 s20, 0")
    e("s_cbranch_scc1 K1_T5")
    e.label("K1_T4")
    e("buffer_load_dword v3, v2, s[68:71], 0 offen sc1")
    e("s_waitcnt vmcnt(0)")
    e("v_readfirstlane_b32 s46, v3")
    e("s_cmp_eq_u32 s46, 0")
    e("s_cbranch_scc1 K1_T4")
    e(f"v_mov_b32 v2, {CNT}")
    e("ds_write_b32 v2, v3 offset:8")
    e("s_waitcnt lgkmcnt(0)")
    e.label("K1_T5")
    for i in range(2): e("s_barrier")
    e.label("P1_DONE")
    e("s_waitcnt vmcnt(0)")
    e("s_barrier")
    e("s_lshl_b32 s76, s22, 4")
    e("s_add_u32 s76, s76, s23")
    return name, 168, 147456, 256, 768
```

```python
from common import *

RING = 4 * 14336
CNT = RING + 4*5*5120
def div20(e, vdst_q, vdst_r, vsrc, stmp):
    e(f"s_mov_b32 {stmp}, 0xCCCCCCCD")
    e(f"v_mul_hi_u32 v{vdst_q}, v{vsrc}, {stmp}")
    e(f"v_lshrrev_b32 v{vdst_q}, 4, v{vdst_q}")
    e(f"v_mul_u32_u24 v{vdst_r}, 20, v{vdst_q}")
    e(f"v_sub_u32 v{vdst_r}, v{vsrc}, v{vdst_r}")

def splitk_gemm(e, pfx, ksteps, nslab, srdW, srdWS, s_slab, barrier_every=None, barrier_count=0):
    n = len(ksteps)
    XR = lambda k: 40 + (k % nslab) * 4
    def issue(k):
        vs, wo, xo = ksteps[k]
        slab = (k % nslab) * 5120
        e(f"s_add_u32 s62, s60, {wo}")
        for i in range(5):
            e(f"s_add_u32 m0, {s_slab}, {slab + i*1024}")
            e("s_nop 0")
            e(f"buffer_load_dwordx4 v{1+vs*5+i}, {sr(srdW,4)}, s62 offen lds")
        e(f"s_add_u32 s63, s61, {xo}")
        e(f"buffer_load_dwordx4 {vr(XR(k),4)}, v12, {sr(srdWS,4)}, s63 offen")
    pre = min(nslab - 1, n)
    for k in range(pre):
        issue(k)
    nb = 0
    for k in range(n):
        if barrier_every and k % barrier_every == 0 and nb < barrier_count:
            e("s_barrier"); nb += 1
        issued = min(n, k + nslab - 1)
        e(f"s_waitcnt vmcnt({(issued - k - 1) * 6})")
        slab = (k % nslab) * 5120
        for nt in range(5):
            for uu in range(2):
                e(f"ds_read_b64_tr_b16 {vr(16+nt*4+uu*2,2)}, v11 offset:{slab + uu*2560 + nt*64}")
        if k + nslab - 1 < n:
            issue(k + nslab - 1)
        for nt in range(5):
            e(f"s_waitcnt lgkmcnt({8 - 2*nt})")
            cc = "0" if k == 0 else vr(80+nt*16, 16)
            e(f"v_mfma_f32_32x32x16_bf16 {vr(80+nt*16,16)}, {vr(16+nt*4,4)}, {vr(XR(k),4)}, {cc}")
    return nb

def gemm_addr_setup(e, s_slab, type2=False):
    for i in range(5):
        e(f"v_add_u32 v13, {i*64}, v0")
        div20(e, 14, 15, 13, "s62")
        e("v_lshlrev_b32 v15, 4, v15")
        e(f"v_mad_u32_u24 v{1+i}, v14, s59, v15")
        if type2:
            e("v_bfe_u32 v13, v14, 2, 1")
            e("v_lshrrev_b32 v36, 3, v14")
            e("v_lshl_add_u32 v13, v13, 1, v36")
            e("v_mul_u32_u24 v13, 20, v13")
            e("v_and_b32 v36, 3, v14")
            e("v_add_u32 v13, v13, v36")
            e(f"v_mad_u32_u24 v{6+i}, v13, s59, v15")
    e("v_bfe_u32 v13, v0, 2, 2")
    e("v_lshrrev_b32 v14, 5, v0")
    e("v_lshl_add_u32 v13, v14, 2, v13")
    e("v_mul_u32_u24 v13, 320, v13")
    e("v_bfe_u32 v14, v0, 4, 1")
    e("v_lshl_add_u32 v13, v14, 5, v13")
    e("v_and_b32 v14, 3, v0")
    e("v_lshl_add_u32 v13, v14, 3, v13")
    e(f"v_add_u32 v11, {s_slab}, v13")
    e("v_lshlrev_b32 v12, 4, v0")

def reduce_write(e, s_slab):
    e("s_nop 15")
    e(f"v_add_u32 v13, {s_slab}, v12")
    for q in range(20):
        e(f"ds_write_b128 v13, {vr(80+q*4,4)} offset:{q*1024}")
    e("s_waitcnt lgkmcnt(0)")
    e("s_barrier")

def reduce_read(e, area_stride, s_base, wait="lgkmcnt(0)"):
    e(f"v_add_u32 v13, {s_base}, v12")
    e(f"v_add_u32 v14, {2*area_stride}, v13")
    for p in range(4):
        for q in range(5):
            e(f"ds_read_b128 {vr(80+(p*5+q)*4,4)}, v{13 + p//2} offset:{(p%2)*area_stride + q*1024}")
    e(f"s_waitcnt {wait}")
    for p in range(1, 4):
        for i in range(20):
            e(f"v_add_f32 v{80+i}, v{80+i}, v{80+p*20+i}")

def gen_k2(e):
    name = "k2"
    e("s_load_dwordx2 s[4:5], s[0:1], 64")
    e("s_load_dwordx2 s[6:7], s[0:1], 96")
    e("s_load_dwordx2 s[8:9], s[0:1], 32")
    e("s_load_dwordx4 s[12:15], s[0:1], 80")
    e("s_mov_b32 s20, s79")
    e(f"v_mov_b32 v14, {CNT}")
    e("ds_read_b32 v1, v14 offset:8")
    e("s_and_b32 s21, s2, 7")
    e("s_lshl_b32 s21, s21, 3")
    e("s_lshr_b32 s22, s2, 5")
    e("s_add_u32 s21, s21, s22")
    e("s_bfe_u32 s22, s2, 0x20003")
    e("s_waitcnt lgkmcnt(0)")
    srd(e, 28, 6, WS_END)
    e("v_readfirstlane_b32 s77, v1")
    stamp(e, 0)
    e("s_cmp_ge_u32 s20, 8")
    e("s_cbranch_scc1 K2_GEMM")
    e("s_cmp_lg_u32 s20, 0")
    e("s_cbranch_scc1 K2_PX")
    e("v_lshl_add_u32 v1, v0, 4, 15")
    e("s_lshr_b32 s3, s21, 2")
    e("s_lshl_b32 s3, s3, 4")
    e("s_sub_u32 s3, s3, 4")
    e("v_add_u32 v2, s3, v0")
    e("v_cmp_gt_u32 vcc, 16, v0")
    e("s_nop 1")
    e("v_cndmask_b32 v1, v2, v1, vcc")
    e("v_lshlrev_b32 v1, 7, v1")
    e(f"s_mov_b32 s3, {FLAG1}")
    e("s_mov_b32 s63, 0")
    e("s_mov_b64 exec, 0x7ffff")
    e.label("K2_PL")
    e("buffer_load_dword v2, v1, s[28:31], s3 offen sc1")
    e("s_waitcnt vmcnt(0)")
    e("v_cmp_ne_u32 vcc, s77, v2")
    e("s_nop 1")
    e("s_cbranch_vccz K2_PD")
    e("s_sleep 2")
    e("s_add_u32 s63, s63, 1")
    e("s_cmp_lt_u32 s63, 0x100000")
    e("s_cbranch_scc1 K2_PL")
    e.label("K2_PD")
    e("s_mov_b64 exec, -1")
    e("buffer_inv sc1")
    e("s_waitcnt vmcnt(0)")
    e.label("K2_PX")
    e("s_barrier")
    import os
    if os.environ.get("NOATTN"): e("s_endpgm")
    S = [16, 32]; O = 48; P = 64; Q1 = 72; Q2 = 76
    K1 = lambda p: 80 + p*8
    K2 = lambda p: 84 + p*8
    V = lambda p, t: 96 + p*8 + t*4
    e("s_lshl_b32 s23, s22, 3")
    e("s_add_u32 s23, s23, s20")
    e("s_mul_i32 s3, s23, 81920")
    e("s_lshl_b32 s24, s21, 8")
    e("s_add_u32 s3, s3, s24")
    e("v_and_b32 v1, 31, v0")
    e("v_lshlrev_b32 v1, 3, v1")
    e("v_lshrrev_b32 v2, 5, v0")
    e("v_lshl_add_u32 v2, v2, 14, v1")
    e("s_add_u32 s24, s3, 32768")
    e("s_add_u32 s25, s3, 65536")
    e(f"buffer_load_dwordx2 {vr(Q1,2)}, v2, s[28:31], s3 offen")
    e(f"buffer_load_dwordx2 {vr(Q1+2,2)}, v2, s[28:31], s24 offen")
    e(f"buffer_load_dwordx2 {vr(Q2,2)}, v1, s[28:31], s25 offen")
    e("v_lshrrev_b32 v13, 1, v1")
    e("s_lshl_b32 s24, s21, 7")
    e(f"s_add_u32 s24, s24, {GBUF}")
    e("buffer_load_dword v13, v13, s[28:31], s24 offen")
    e("v_lshlrev_b32 v3, 4, v0")
    e("v_lshlrev_b32 v4, 3, v0")
    e("s_lshl_b32 s26, s20, 11")
    e(f"s_add_u32 s27, s26, {KVBUF}")
    def emit_dma(tag):
        e("s_cmp_eq_u32 s20, 7")
        e(f"s_cbranch_scc1 K2_SK{tag}")
        e("s_mov_b32 m0, s36")
        e("s_add_u32 s3, s37, 1024")
        e("buffer_load_dwordx4 v3, s[28:31], s37 offen lds")
        e("s_add_u32 m0, s36, 1024")
        e("s_nop 0")
        e("buffer_load_dwordx4 v3, s[28:31], s3 offen lds")
        e.label(f"K2_SK{tag}")
        e("s_add_u32 s37, s37, 14336")
        e("s_add_u32 s36, s36, 14336")
        e(f"s_cmp_ge_u32 s36, {RING}")
        e(f"s_cselect_b32 s3, {RING}, 0")
        e("s_sub_u32 s36, s36, s3")
    e("s_mov_b32 s36, s26")
    e("s_mov_b32 s37, s27")
    emit_dma("a"); emit_dma("b")
    for r in (K2(0)+2, K2(0)+3, K2(1)+2, K2(1)+3, Q2+2, Q2+3, P+4, P+5, P+6, P+7, V(1,1), V(1,1)+1, V(1,1)+2, V(1,1)+3):
        e(f"v_mov_b32 v{r}, 0")
    for i in range(16):
        e(f"v_mov_b32 v{O+i}, 0")
    e("v_cmp_le_u32 s[32:33], 32, v0")
    e("v_mov_b32 v8, v3"); e("v_mov_b32 v9, v4")
    e("v_add_u32 v10, 14336, v3"); e("v_add_u32 v11, 14336, v4")
    e("s_mov_b32 s38, 28672")
    e(f"v_mov_b32 v14, {CNT}")
    e("v_mov_b32 v15, 1")
    e("v_mov_b32 v6, 0"); e("v_mov_b32 v7, 0")
    e("ds_write_b64 v14, v[6:7]")
    e("s_mov_b32 s40, 8")
    e("s_waitcnt lgkmcnt(0)")
    e("s_waitcnt vmcnt(2)")
    e("s_cmp_eq_u32 s20, 7")
    e("s_cbranch_scc0 K2_W7")
    e("s_waitcnt vmcnt(0)")
    e.label("K2_W7")
    e("s_barrier")
    stamp(e, 1)
    emit_dma("c")
    e(f"v_cndmask_b32 v{Q2}, v{Q2}, 0, s[32:33]")
    e(f"v_cndmask_b32 v{Q2+1}, v{Q2+1}, 0, s[32:33]")
    def rdK(t):
        p = t & 1; a16 = 8 if t < 4 else 10; off = (t % 4) * KV_TILE
        return [f"ds_read_b128 {vr(K1(p),4)}, v{a16} offset:{off}",
                f"ds_read_b64 {vr(K2(p),2)}, v{a16+1} offset:{off+1024}"]
    def rdV(t):
        p = t & 1; a16 = 8 if t < 4 else 10; off = (t % 4) * KV_TILE
        return [f"ds_read_b128 {vr(V(p,0),4)}, v{a16} offset:{off+1536}",
                f"ds_read_b128 {vr(V(p,1),4)}, v{a16} offset:{off+2560}"]
    for ins in rdK(0) + rdK(1) + rdV(0): e(ins)
    e("s_waitcnt lgkmcnt(0)")
    def qk(t, which):
        p = t & 1; s = S[t & 1]
        if which == 0:
            return f"v_mfma_f32_32x32x16_bf16 {vr(s,16)}, {vr(K1(p),4)}, {vr(Q1,4)}, 0"
        return f"v_mfma_f32_32x32x8_bf16 {vr(s,16)}, {vr(K2(p),2)}, {vr(Q2,2)}, {vr(s,16)}"
    def set_fold(src16, running=None):
        e(f"v_max3_f32 v5, v{src16}, v{src16+1}, v{src16+2}")
        for i in range(3, 15, 2):
            e(f"v_max3_f32 v5, v5, v{src16+i}, v{src16+i+1}")
        e(f"v_max_f32 v5, v5, v{src16+15}")
    def fold_from_v5():
        e("v_mov_b32 v6, v5")
        e("s_nop 1")
        e("v_permlane32_swap_b32 v5, v6")
        e("s_nop 1")
        e("v_max_f32 v5, v5, v6")
        e("v_sub_f32 v5, 0, v5")
        e("v_cvt_pk_bf16_f32 v6, v5, v5")
        e("v_lshlrev_b32 v6, 16, v6")
        e("v_sub_f32 v6, v5, v6")
        e("v_cvt_pk_bf16_f32 v6, v5, v6")
        e(f"v_cndmask_b32 v{Q2}, v{Q2}, v6, s[32:33]")
        e("s_nop 1")
    e(qk(0, 0)); e(qk(0, 1))
    e("s_nop 15")
    set_fold(S[0])
    fold_from_v5()
    e(qk(0, 0)); e(qk(0, 1))
    e("s_mov_b32 s39, 0")
    e("s_nop 7")
    def pv(t, h):
        p = t & 1
        return f"v_mfma_f32_32x32x16_bf16 {vr(O,16)}, {vr(V(p,h),4)}, {vr(P+4*h,4)}, {vr(O,16)}"
    def grp(s, q):
        for i in range(4):
            e(f"v_exp_f32 v{s+4*q+i}, v{s+4*q+i}")
        e(f"v_cvt_pk_bf16_f32 v{P+2*q}, v{s+4*q}, v{s+4*q+1}")
        e(f"v_cvt_pk_bf16_f32 v{P+2*q+1}, v{s+4*q+2}, v{s+4*q+3}")
    stamp(e, 2)
    if "prio" in os.environ.get("VAR", ""):
        e("s_cmp_ge_u32 s20, 4")
        e("s_cbranch_scc0 K2_NP")
        e("s_setprio 1")
        e.label("K2_NP")
    if "late" in os.environ.get("VAR", ""):
        for r in range(12, 16): e(f"v_mov_b32 v{S[1]+r}, 0")
    e.l.append(".p2align 6")
    e.label("K2_LOOP")
    VAR = os.environ.get("VAR", "")
    def ex(s, q):
        for i in range(4):
            e(f"v_exp_f32 v{s+4*q+i}, v{s+4*q+i}")
    def cv(s, q):
        e(f"v_cvt_pk_bf16_f32 v{P+2*q}, v{s+4*q}, v{s+4*q+1}")
        e(f"v_cvt_pk_bf16_f32 v{P+2*q+1}, v{s+4*q+2}, v{s+4*q+3}")
    for i in range(4):
        s = S[i & 1]; sp = S[(i+1) & 1]
        def upd():
            e("v_mov_b32 v8, v10"); e("v_mov_b32 v9, v11")
            e("v_add_u32 v10, s38, v3"); e("v_add_u32 v11, s38, v4")
            e("s_add_u32 s38, s38, 14336")
            e(f"s_cmp_ge_u32 s38, {RING}")
            e(f"s_cselect_b32 s3, {RING}, 0")
            e("s_sub_u32 s38, s38, s3")
            e("s_add_u32 s39, s39, 1")
        def head():
            if "tog" in VAR: e(f"s_setprio {(3 - ((i+2)%4))}")
            if i == 0:
                e("s_waitcnt vmcnt(2) lgkmcnt(0)")
                e("s_mov_b64 exec, 1")
                e("ds_add_u32 v14, v15")
                e("s_mov_b64 exec, -1")
            elif i == 1:
                e("s_waitcnt lgkmcnt(0)")
                e("ds_read_b32 v7, v14")
            elif i == 2:
                e.label("K2_CHK")
                e("s_waitcnt lgkmcnt(0)")
                e("v_readfirstlane_b32 s3, v7")
                e("s_cmp_ge_u32 s3, s40")
                e("s_cbranch_scc0 K2_SLOW")
                e("s_add_u32 s40, s40, 8")
            else:
                e("s_waitcnt lgkmcnt(0)")
        if "late" in VAR:
            head()
            for ins in rdK(i+2): e(ins if "nords" not in VAR else "s_nop 0")
            ex(s, 0)
            cv(sp, 3)
            e(qk(i+1, 0)) if False else None
            if i == 2 and "nobar" not in VAR: emit_dma("d")
            else: e("s_nop 0")
            e(pv(i+1, 1))
            for ins in rdV(i+1): e(ins if ("nords" not in VAR and "norv" not in VAR) else "s_nop 0")
            ex(s, 1); cv(s, 0)
            e(qk(i+1, 0))
            if i == 3: upd()
            ex(s, 2); cv(s, 1)
            e(qk(i+1, 1))
            ex(s, 3); cv(s, 2)
            e(pv(i, 0))
        else:
            head()
            for ins in rdK(i+2): e(ins)
            e(pv(i+1, 1))
            for ins in rdV(i+1): e(ins)
            if i == 2 and "nobar" not in VAR:
                emit_dma("d")
            grp(s, 0)
            e(qk(i+1, 0))
            grp(s, 1)
            e(qk(i+1, 1))
            if i == 3: upd()
            grp(s, 2)
            e(pv(i, 0))
            grp(s, 3)
    e("s_cmp_lt_u32 s39, 16")
    e("s_cbranch_scc1 K2_LOOP")
    stamp(e, 3)
    if "late" in VAR: cv(S[1], 3)
    e("s_nop 1")
    e(pv(63, 1))
    e("s_nop 15")
    e(f"v_max3_f32 v5, |v{O}|, |v{O+1}|, |v{O+2}|")
    for i in range(3, 11, 2):
        e(f"v_max3_f32 v5, v5, |v{O+i}|, |v{O+i+1}|")
    e(f"v_max_f32 v5, v5, |v{O+11}|")
    e("s_mov_b32 s3, 0x7b800000")
    e("v_cmp_nlt_f32 vcc, v5, s3") if False else None
    e("v_mov_b32 v7, s3")
    e("v_cmp_nlt_f32 s[34:35], v5, v7")
    e(f"v_mov_b32 v5, v{O+8}")
    e(f"v_mov_b32 v6, v{O+8}")
    e("s_nop 1")
    e("v_permlane32_swap_b32 v5, v6")
    e("v_mov_b32 v7, 0x53800000")
    e("s_nop 0")
    e("v_cmp_nlt_f32 vcc, v6, v7")
    e("s_nop 1")
    e("s_or_b64 vcc, vcc, s[34:35]")
    e("s_cbranch_vccnz K2_FALLBACK")
    e.label("K2_NORM")
    e("v_rcp_f32 v6, v6")
    e("s_nop 0")
    e("v_mul_f32 v6, v6, v13")
    for i in range(12):
        e(f"v_mul_f32 v{O+i}, v{O+i}, v6")
    for i in range(6):
        e(f"v_cvt_pk_bf16_f32 v{P+i}, v{O+2*i}, v{O+2*i+1}")
    e("s_mul_i32 s3, s21, 40")
    e("s_add_u32 s24, s3, s23")
    e("s_lshl_b32 s24, s24, 10")
    e(f"s_add_u32 s24, s24, {OBUF}")
    e(f"buffer_store_dwordx4 {vr(P,4)}, v3, s[28:31], s24 offen sc1")
    e("s_lshr_b32 s25, s23, 2")
    e("s_add_u32 s3, s3, s25")
    e("s_add_u32 s3, s3, 32")
    e("s_lshl_b32 s3, s3, 10")
    e("s_bfe_u32 s25, s23, 0x10001")
    e("s_lshl_b32 s25, s25, 9")
    e("s_add_u32 s3, s3, s25")
    e("s_and_b32 s25, s23, 1")
    e("s_lshl_b32 s25, s25, 3")
    e("s_add_u32 s3, s3, s25")
    e(f"s_add_u32 s3, s3, {OBUF}")
    e("s_mov_b32 exec_hi, 0")
    e(f"buffer_store_dwordx2 {vr(P+4,2)}, v3, s[28:31], s3 offen sc1")
    e("s_waitcnt vmcnt(0)")
    e("s_mov_b64 exec, 1")
    e("ds_add_u32 v14, v15 offset:4")
    e("s_waitcnt lgkmcnt(0)")
    stamp(e, 4)
    stamp_flush(e, 7, 1, "s79", 5)
    e("s_endpgm")
    e.label("K2_SLOW")
    e("s_sleep 1")
    e("ds_read_b32 v7, v14")
    e("s_branch K2_CHK")
    e.label("K2_FALLBACK")
    e(f"v_cndmask_b32 v{Q2}, v{Q2}, 0, s[32:33]")
    e("v_mov_b32 v12, 0xff800000")
    e(f"s_mov_b32 s3, {KVBUF}")
    e.label("K2_FB1")
    e(f"buffer_load_dwordx4 {vr(K1(0),4)}, v3, s[28:31], s3 offen")
    e(f"buffer_load_dwordx2 {vr(K2(0),2)}, v4, s[28:31], s3 offen offset:1024")
    e("s_waitcnt vmcnt(0)")
    e(qk(0, 0)); e(qk(0, 1))
    e("s_nop 15")
    set_fold(S[0])
    e("v_max_f32 v12, v12, v5")
    e(f"s_add_u32 s3, s3, {KV_TILE}")
    e(f"s_cmp_lt_u32 s3, {KVBUF + 64*KV_TILE}")
    e("s_cbranch_scc1 K2_FB1")
    e("v_mov_b32 v5, v12")
    fold_from_v5()
    for i in range(16):
        e(f"v_mov_b32 v{O+i}, 0")
    e(f"s_mov_b32 s3, {KVBUF}")
    e.label("K2_FB2")
    e(f"buffer_load_dwordx4 {vr(K1(0),4)}, v3, s[28:31], s3 offen")
    e(f"buffer_load_dwordx2 {vr(K2(0),2)}, v4, s[28:31], s3 offen offset:1024")
    e(f"buffer_load_dwordx4 {vr(V(0,0),4)}, v3, s[28:31], s3 offen offset:1536")
    e(f"buffer_load_dwordx4 {vr(V(0,1),4)}, v3, s[28:31], s3 offen offset:2560")
    e("s_waitcnt vmcnt(0)")
    e(qk(0, 0)); e(qk(0, 1))
    e("s_nop 15")
    for q in range(4): grp(S[0], q)
    e("s_nop 1")
    e(pv(2, 0)); e(pv(2, 1))
    e(f"s_add_u32 s3, s3, {KV_TILE}")
    e(f"s_cmp_lt_u32 s3, {KVBUF + 64*KV_TILE}")
    e("s_cbranch_scc1 K2_FB2")
    e("s_nop 15")
    e(f"v_mov_b32 v5, v{O+8}")
    e(f"v_mov_b32 v6, v{O+8}")
    e("s_nop 1")
    e("v_permlane32_swap_b32 v5, v6")
    e("s_nop 1")
    e("s_branch K2_NORM")
    e.label("K2_GEMM")
    import os
    if os.environ.get("NOGEMM"): e("s_endpgm")
    NS = 5
    srd(e, 32, 4, 1966080)
    srd(e, 36, 8, 819200)
    srd(e, 40, 12, 2621440)
    srd(e, 44, 14, 256)
    e("s_sub_u32 s20, s20, 8")
    e("v_mov_b32 v13, 0")
    e("s_cmp_lg_u32 s20, 0")
    e("s_cbranch_scc1 K2_G0")
    e("s_lshl_b32 s62, s76, 7")
    e(f"s_add_u32 s62, s62, {FLAG1}")
    e("v_mov_b32 v14, s77")
    e("s_mov_b64 exec, 1")
    e("buffer_store_dword v14, v13, s[28:31], s62 offen sc1")
    e("s_mov_b64 exec, -1")
    e.label("K2_G0")
    e("s_mul_i32 s3, s20, 3")
    e("v_add_u32 v1, s3, v0")
    e("v_cmp_eq_u32 vcc, 3, v0")
    e("s_nop 1")
    e("v_cndmask_b32 v1, v1, 15, vcc")
    e("s_lshr_b32 s3, s21, 2")
    e("s_lshl_b32 s3, s3, 4")
    e("v_add_u32 v1, s3, v1")
    e("v_lshlrev_b32 v1, 7, v1")
    e(f"s_mov_b32 s3, {FLAG1}")
    e("s_mov_b32 s63, 0")
    e("s_barrier")
    e("s_barrier")
    e("s_mov_b64 exec, 15")
    e.label("K2_GL")
    e("buffer_load_dword v2, v1, s[28:31], s3 offen sc1")
    e("s_waitcnt vmcnt(0)")
    e("v_cmp_ne_u32 vcc, s77, v2")
    e("s_nop 1")
    e("s_cbranch_vccz K2_GD")
    e("s_sleep 4")
    e("s_add_u32 s63, s63, 1")
    e("s_cmp_lt_u32 s63, 0x100000")
    e("s_cbranch_scc1 K2_GL")
    e.label("K2_GD")
    e("s_mov_b64 exec, -1")
    e("buffer_inv sc1")
    e("s_waitcnt vmcnt(0)")
    e(f"s_mul_i32 s58, s20, {NS*5120}")
    e(f"s_add_u32 s58, s58, {RING}")
    e("s_mov_b32 s59, 1280")
    gemm_addr_setup(e, "s58", type2=True)
    e("v_and_b32 v13, 31, v0")
    e("v_lshlrev_b32 v13, 2, v13")
    e("s_lshl_b32 s3, s21, 7")
    e(f"s_add_u32 s3, s3, {GBUF}")
    e("buffer_load_dword v160, v13, s[28:31], s3 offen")
    e("s_mul_i32 s60, s20, 491520")
    e("s_mul_i32 s3, s22, 320")
    e("s_add_u32 s60, s60, s3")
    e("s_mul_i32 s61, s21, 96")
    e("s_mul_i32 s3, s20, 24")
    e("s_add_u32 s61, s61, s3")
    e("s_lshl_b32 s61, s61, 10")
    e(f"s_add_u32 s61, s61, {HBUF}")
    ks = [(0, k*20480, k*1024) for k in range(24)]
    nb = splitk_gemm(e, "K2", ks, NS, 32, 28, "s58", barrier_every=None, barrier_count=0)
    stamp(e, 1)
    e("s_mul_i32 s60, s22, 320")
    e("s_mul_i32 s3, s20, 204800")
    e("s_add_u32 s60, s60, s3")
    wk = [(0, k*20*1280) for k in range(8)] + [(1, (k*80+16)*1280) for k in range(2)]
    def wslab(k):
        vs, wo_ = wk[k]
        e(f"s_add_u32 s62, s60, {wo_}")
        for i in range(5):
            e(f"s_add_u32 m0, s58, {(k % NS)*5120 + i*1024}")
            e("s_nop 0")
            e(f"buffer_load_dwordx4 v{1+vs*5+i}, s[36:39], s62 offen lds")
    for k in range(NS): wslab(k)
    for k in range(NS, 10):
        vs, wo_ = wk[k]
        e(f"s_add_u32 s62, s60, {wo_}")
        for i in range(5):
            e(f"buffer_load_dwordx4 v[40:43], v{1+vs*5+i}, s[36:39], s62 offen")
    e("v_sub_f32 v160, 1.0, v160")
    e("s_nop 7")
    for i in range(80):
        e(f"v_mul_f32 v{80+i}, v{80+i}, v160")
    def rdw(k):
        base = 16 if k % 2 == 0 else 60
        slab = (k % NS) * 5120
        for nt in range(5):
            for uu in range(2):
                e(f"ds_read_b64_tr_b16 {vr(base+nt*4+uu*2,2)}, v11 offset:{slab + uu*2560 + nt*64}")
    e("s_waitcnt vmcnt(0)")
    rdw(0)
    e(f"v_mov_b32 v13, {CNT}")
    e.label("K2_GW")
    e("s_sleep 2")
    e("ds_read_b32 v14, v13 offset:4")
    e("s_waitcnt lgkmcnt(0)")
    e("v_readfirstlane_b32 s3, v14")
    e("s_cmp_ge_u32 s3, 8")
    e("s_cbranch_scc0 K2_GW")
    stamp(e, 2)
    e("v_mov_b32 v13, 0")
    e("s_cmp_lg_u32 s20, 0")
    e("s_cbranch_scc1 K2_POLL0")
    e("s_lshl_b32 s62, s21, 2")
    e("s_add_u32 s62, s62, s22")
    e("s_lshl_b32 s62, s62, 7")
    e(f"s_add_u32 s62, s62, {FLAG}")
    e("v_mov_b32 v14, s77")
    e("s_mov_b64 exec, 1")
    e("buffer_store_dword v14, v13, s[28:31], s62 offen sc1")
    e("s_mov_b64 exec, -1")
    e.label("K2_POLL0")
    e("s_lshl_b32 s62, s21, 2")
    e("s_add_u32 s62, s62, s20")
    e("s_lshl_b32 s62, s62, 7")
    e(f"s_add_u32 s62, s62, {FLAG}")
    e("s_mov_b32 s63, 0")
    e("s_cmp_eq_u32 s20, s22")
    e("s_cbranch_scc1 K2_GO")
    e.label("K2_POLL")
    e("buffer_load_dword v14, v13, s[28:31], s62 offen sc1")
    e("s_waitcnt vmcnt(0)")
    e("v_readfirstlane_b32 s3, v14")
    e("s_cmp_eq_u32 s3, s77")
    e("s_cbranch_scc1 K2_GO")
    e("s_sleep 2")
    e("s_add_u32 s63, s63, 1")
    e("s_cmp_lt_u32 s63, 0x100000")
    e("s_cbranch_scc1 K2_POLL")
    e.label("K2_GO")
    stamp(e, 3)
    e("s_mul_i32 s61, s21, 40")
    e("s_lshl_b32 s61, s61, 10")
    e(f"s_add_u32 s61, s61, {OBUF}")
    e("s_lshl_b32 s3, s20, 11")
    e("s_add_u32 s63, s61, s3")
    e("s_add_u32 s63, s63, 32768")
    e("s_lshl_b32 s3, s20, 13")
    e("s_add_u32 s61, s61, s3")
    e("s_add_u32 s56, s61, 4096")
    XO = lambda k: 40 + (k % 5) * 4
    WS_ = lambda k: 16 if k % 2 == 0 else 60
    def xld(k):
        if k < 8: e(f"buffer_load_dwordx4 {vr(XO(k),4)}, v12, s[28:31], {'s61' if k < 4 else 's56'} offen offset:{(k%4)*1024} sc1")
        else:     e(f"buffer_load_dwordx4 {vr(XO(k),4)}, v12, s[28:31], s63 offen offset:{(k-8)*1024} sc1")
    for k in range(5): xld(k)
    for k in range(10):
        if k + 1 < 10:
            if k + 1 >= NS: e(f"s_waitcnt vmcnt({(min(9,k+4)-(k+1))*6 + 1})")
            rdw(k + 1)
        if k == 0:
            e("s_waitcnt vmcnt(0)")
            stamp(e, 7)
        elif k >= 5: e(f"s_waitcnt vmcnt({(9-k)*6})")
        e(f"s_waitcnt lgkmcnt({10 if k + 1 < 10 else 0})")
        for nt in range(5):
            e(f"v_mfma_f32_32x32x16_bf16 {vr(80+nt*16,16)}, {vr(WS_(k)+nt*4,4)}, {vr(XO(k),4)}, {vr(80+nt*16,16)}")
        if k + NS < 10:
            wslab(k + NS); xld(k + 5)
    stamp(e, 8)
    reduce_write(e, "s58")
    stamp(e, 9)
    e("s_mul_i32 s57, s20, 5120")
    e(f"s_add_u32 s57, s57, {RING}")
    reduce_read(e, NS*5120, "s57")
    for i in range(10):
        e(f"v_cvt_pk_bf16_f32 v{100+i}, v{80+2*i}, v{80+2*i+1}")
    e("v_and_b32 v13, 31, v0")
    e("v_mul_u32_u24 v13, 0x500, v13")
    e("v_lshrrev_b32 v14, 5, v0")
    e("v_lshl_add_u32 v13, v14, 3, v13")
    e("s_mul_i32 s3, s21, 40960")
    e("s_mul_i32 s62, s22, 320")
    e("s_add_u32 s3, s3, s62")
    e("s_mul_i32 s62, s20, 80")
    e("s_add_u32 s3, s3, s62")
    for q in range(5):
        e(f"buffer_store_dwordx2 {vr(100+2*q,2)}, v13, s[40:43], s3 offen offset:{q*16}")
    stamp(e, 4)
    stamp_flush(e, 5, 1, "s79", 13)
    e.label("K2_END")
    e("s_endpgm")
    return name, 168, RING + 4*NS*5120 + 64, 256, 768

def gen_k3(e):
    name = "k3_kernel"
    kernel_head(e, name)
    e("s_cmp_ge_u32 s2, 256")
    e("s_cbranch_scc1 K3_END")
    e("s_load_dwordx2 s[4:5], s[0:1], 32")
    e("s_load_dwordx2 s[6:7], s[0:1], 96")
    e("s_load_dwordx2 s[8:9], s[0:1], 80")
    e("v_lshrrev_b32 v1, 6, v0")
    e("v_and_b32 v0, 63, v0")
    e("s_nop 0")
    e("v_readfirstlane_b32 s20, v1")
    e("s_lshr_b32 s21, s2, 2")
    e("s_and_b32 s22, s2, 3")
    e("s_waitcnt lgkmcnt(0)")
    srd(e, 28, 6, WS_END)
    srd(e, 32, 4, 819200)
    srd(e, 36, 8, 2621440)
    stamp(e, 0)
    NS = 7
    e(f"s_mul_i32 s58, s20, {NS*5120}")
    e("s_mov_b32 s59, 1280")
    gemm_addr_setup(e, "s58", type2=True)
    e("s_mul_i32 s3, s2, 20480")
    e("s_mul_i32 s62, s20, 5120")
    e("s_add_u32 s3, s3, s62")
    e(f"s_add_u32 s3, s3, {BBUF}")
    e("s_add_u32 s62, s3, 4096")
    for q in range(5):
        if q < 4:
            e(f"buffer_load_dwordx4 {vr(160+q*4,4)}, v12, s[28:31], s3 offen offset:{q*1024}")
        else:
            e(f"buffer_load_dwordx4 {vr(160+q*4,4)}, v12, s[28:31], s62 offen")
    e("v_and_b32 v13, 31, v0")
    e("v_lshlrev_b32 v13, 2, v13")
    e("s_lshl_b32 s3, s21, 7")
    e(f"s_add_u32 s3, s3, {GBUF}")
    e("buffer_load_dword v180, v13, s[28:31], s3 offen")
    e("s_mul_i32 s60, s22, 320")
    e("s_mul_i32 s3, s20, 204800")
    e("s_add_u32 s60, s60, s3")
    e("s_mul_i32 s61, s21, 40")
    e("s_lshl_b32 s61, s61, 10")
    e(f"s_add_u32 s61, s61, {OBUF}")
    e("s_lshl_b32 s3, s20, 13")
    e("s_add_u32 s61, s61, s3")
    e("s_mul_i32 s3, s20, 6144")
    e("s_sub_u32 s56, 32768, s3")
    ks = [(0, k*20*1280, k*1024) for k in range(8)]
    ks += [(1, (k*80+16)*1280, None) for k in range(2)]
    ks2 = []
    for (a, b, c) in ks:
        ks2.append((a, b, c))
    e("s_add_u32 s55, s56, 1024")
    ks2[8] = (1, ks[8][1], "s56"); ks2[9] = (1, ks[9][1], "s55")
    stamp(e, 1)
    splitk_gemm(e, "K3", ks2, NS, 32, 28, "s58")
    stamp(e, 2)
    reduce_write(e, "s58")
    stamp(e, 3)
    e("s_mul_i32 s57, s20, 5120")
    reduce_read(e, NS*5120, "s57", wait="vmcnt(0) lgkmcnt(0)")
    e("v_sub_f32 v181, 1.0, v180")
    for i in range(20):
        e(f"v_mul_f32 v{160+i}, v181, v{160+i}")
        e(f"v_fma_f32 v{80+i}, v180, v{80+i}, v{160+i}")
    for i in range(10):
        e(f"v_cvt_pk_bf16_f32 v{100+i}, v{80+2*i}, v{80+2*i+1}")
    e("v_and_b32 v13, 31, v0")
    e("v_mul_u32_u24 v13, 0x500, v13")
    e("v_lshrrev_b32 v14, 5, v0")
    e("v_lshl_add_u32 v13, v14, 3, v13")
    e("s_mul_i32 s3, s21, 40960")
    e("s_mul_i32 s62, s22, 320")
    e("s_add_u32 s3, s3, s62")
    e("s_mul_i32 s62, s20, 80")
    e("s_add_u32 s3, s3, s62")
    for q in range(5):
        e(f"buffer_store_dwordx2 {vr(100+2*q,2)}, v13, s[36:39], s3 offen offset:{q*16}")
    stamp(e, 4)
    stamp_flush(e, 5, 2, "s20", 13)
    e.label("K3_END")
    e("s_endpgm")
    return name, 184, 4*NS*5120, 256, 256
```

```python
from common import *

RING = 4 * 14336
CNT = RING + 4*5*5120
def div20(e, vdst_q, vdst_r, vsrc, stmp):
    e(f"s_mov_b32 {stmp}, 0xCCCCCCCD")
    e(f"v_mul_hi_u32 v{vdst_q}, v{vsrc}, {stmp}")
    e(f"v_lshrrev_b32 v{vdst_q}, 4, v{vdst_q}")
    e(f"v_mul_u32_u24 v{vdst_r}, 20, v{vdst_q}")
    e(f"v_sub_u32 v{vdst_r}, v{vsrc}, v{vdst_r}")

def splitk_gemm(e, pfx, ksteps, nslab, srdW, srdWS, s_slab, barrier_every=None, barrier_count=0):
    n = len(ksteps)
    XR = lambda k: 40 + (k % nslab) * 4
    def issue(k):
        vs, wo, xo = ksteps[k]
        slab = (k % nslab) * 5120
        e(f"s_add_u32 s62, s60, {wo}")
        for i in range(5):
            e(f"s_add_u32 m0, {s_slab}, {slab + i*1024}")
            e("s_nop 0")
            e(f"buffer_load_dwordx4 v{1+vs*5+i}, {sr(srdW,4)}, s62 offen lds")
        e(f"s_add_u32 s63, s61, {xo}")
        e(f"buffer_load_dwordx4 {vr(XR(k),4)}, v12, {sr(srdWS,4)}, s63 offen")
    pre = min(nslab - 1, n)
    for k in range(pre):
        issue(k)
    nb = 0
    for k in range(n):
        if barrier_every and k % barrier_every == 0 and nb < barrier_count:
            e("s_barrier"); nb += 1
        issued = min(n, k + nslab - 1)
        e(f"s_waitcnt vmcnt({(issued - k - 1) * 6})")
        slab = (k % nslab) * 5120
        for nt in range(5):
            for uu in range(2):
                e(f"ds_read_b64_tr_b16 {vr(16+nt*4+uu*2,2)}, v11 offset:{slab + uu*2560 + nt*64}")
        if k + nslab - 1 < n:
            issue(k + nslab - 1)
        for nt in range(5):
            e(f"s_waitcnt lgkmcnt({8 - 2*nt})")
            cc = "0" if k == 0 else vr(80+nt*16, 16)
            e(f"v_mfma_f32_32x32x16_bf16 {vr(80+nt*16,16)}, {vr(16+nt*4,4)}, {vr(XR(k),4)}, {cc}")
    return nb

def gemm_addr_setup(e, s_slab, type2=False):
    for i in range(5):
        e(f"v_add_u32 v13, {i*64}, v0")
        div20(e, 14, 15, 13, "s62")
        e("v_lshlrev_b32 v15, 4, v15")
        e(f"v_mad_u32_u24 v{1+i}, v14, s59, v15")
        if type2:
            e("v_bfe_u32 v13, v14, 2, 1")
            e("v_lshrrev_b32 v36, 3, v14")
            e("v_lshl_add_u32 v13, v13, 1, v36")
            e("v_mul_u32_u24 v13, 20, v13")
            e("v_and_b32 v36, 3, v14")
            e("v_add_u32 v13, v13, v36")
            e(f"v_mad_u32_u24 v{6+i}, v13, s59, v15")
    e("v_bfe_u32 v13, v0, 2, 2")
    e("v_lshrrev_b32 v14, 5, v0")
    e("v_lshl_add_u32 v13, v14, 2, v13")
    e("v_mul_u32_u24 v13, 320, v13")
    e("v_bfe_u32 v14, v0, 4, 1")
    e("v_lshl_add_u32 v13, v14, 5, v13")
    e("v_and_b32 v14, 3, v0")
    e("v_lshl_add_u32 v13, v14, 3, v13")
    e(f"v_add_u32 v11, {s_slab}, v13")
    e("v_lshlrev_b32 v12, 4, v0")

def reduce_write(e, s_slab):
    e("s_nop 15")
    e(f"v_add_u32 v13, {s_slab}, v12")
    for q in range(20):
        e(f"ds_write_b128 v13, {vr(80+q*4,4)} offset:{q*1024}")
    e("s_waitcnt lgkmcnt(0)")
    e("s_barrier")

def reduce_read(e, area_stride, s_base, wait="lgkmcnt(0)"):
    e(f"v_add_u32 v13, {s_base}, v12")
    e(f"v_add_u32 v14, {2*area_stride}, v13")
    for p in range(4):
        for q in range(5):
            e(f"ds_read_b128 {vr(80+(p*5+q)*4,4)}, v{13 + p//2} offset:{(p%2)*area_stride + q*1024}")
    e(f"s_waitcnt {wait}")
    for p in range(1, 4):
        for i in range(20):
            e(f"v_add_f32 v{80+i}, v{80+i}, v{80+p*20+i}")

def gen_k2(e):
    name = "k2"
    e("s_load_dwordx2 s[4:5], s[0:1], 64")
    e("s_load_dwordx2 s[6:7], s[0:1], 96")
    e("s_load_dwordx2 s[8:9], s[0:1], 32")
    e("s_load_dwordx4 s[12:15], s[0:1], 80")
    e("s_mov_b32 s20, s79")
    e(f"v_mov_b32 v14, {CNT}")
    e("ds_read_b32 v1, v14 offset:8")
    e("s_and_b32 s21, s2, 7")
    e("s_lshl_b32 s21, s21, 3")
    e("s_lshr_b32 s22, s2, 5")
    e("s_add_u32 s21, s21, s22")
    e("s_bfe_u32 s22, s2, 0x20003")
    e("s_waitcnt lgkmcnt(0)")
    srd(e, 28, 6, WS_END)
    e("v_readfirstlane_b32 s77, v1")
    stamp(e, 0)
    e("s_cmp_ge_u32 s20, 8")
    e("s_cbranch_scc1 K2_GEMM")
    e("s_cmp_lg_u32 s20, 0")
    e("s_cbranch_scc1 K2_PX")
    e("v_lshl_add_u32 v1, v0, 4, 15")
    e("s_lshr_b32 s3, s21, 2")
    e("s_lshl_b32 s3, s3, 4")
    e("s_sub_u32 s3, s3, 4")
    e("v_add_u32 v2, s3, v0")
    e("v_cmp_gt_u32 vcc, 16, v0")
    e("s_nop 1")
    e("v_cndmask_b32 v1, v2, v1, vcc")
    e("v_lshlrev_b32 v1, 7, v1")
    e(f"s_mov_b32 s3, {FLAG1}")
    e("s_mov_b32 s63, 0")
    e("s_mov_b64 exec, 0x7ffff")
    e.label("K2_PL")
    e("buffer_load_dword v2, v1, s[28:31], s3 offen sc1")
    e("s_waitcnt vmcnt(0)")
    e("v_cmp_ne_u32 vcc, s77, v2")
    e("s_nop 1")
    e("s_cbranch_vccz K2_PD")
    e("s_sleep 2")
    e("s_add_u32 s63, s63, 1")
    e("s_cmp_lt_u32 s63, 0x100000")
    e("s_cbranch_scc1 K2_PL")
    e.label("K2_PD")
    e("s_mov_b64 exec, -1")
    e.label("K2_PX")
    e("s_barrier")
    import os
    if os.environ.get("NOATTN"): e("s_endpgm")
    S = [16, 32]; O = 48; P = 64; Q1 = 72; Q2 = 76
    K1 = lambda p: 80 + p*8
    K2 = lambda p: 84 + p*8
    V = lambda p, t: 96 + p*8 + t*4
    e("s_lshl_b32 s23, s22, 3")
    e("s_add_u32 s23, s23, s20")
    e("s_mul_i32 s3, s23, 81920")
    e("s_lshl_b32 s24, s21, 8")
    e("s_add_u32 s3, s3, s24")
    e("v_and_b32 v1, 31, v0")
    e("v_lshlrev_b32 v1, 3, v1")
    e("v_lshrrev_b32 v2, 5, v0")
    e("v_lshl_add_u32 v2, v2, 14, v1")
    e("s_add_u32 s24, s3, 32768")
    e("s_add_u32 s25, s3, 65536")
    e(f"buffer_load_dwordx2 {vr(Q1,2)}, v2, s[28:31], s3 offen sc1")
    e(f"buffer_load_dwordx2 {vr(Q1+2,2)}, v2, s[28:31], s24 offen sc1")
    e(f"buffer_load_dwordx2 {vr(Q2,2)}, v1, s[28:31], s25 offen sc1")
    e("v_lshrrev_b32 v13, 1, v1")
    e("s_lshl_b32 s24, s21, 7")
    e(f"s_add_u32 s24, s24, {GBUF}")
    e("buffer_load_dword v13, v13, s[28:31], s24 offen sc1")
    e("v_lshlrev_b32 v3, 4, v0")
    e("v_lshlrev_b32 v4, 3, v0")
    e("s_lshl_b32 s26, s20, 11")
    e(f"s_add_u32 s27, s26, {KVBUF}")
    def emit_dma(tag):
        e("s_cmp_eq_u32 s20, 7")
        e(f"s_cbranch_scc1 K2_SK{tag}")
        e("s_mov_b32 m0, s36")
        e("s_add_u32 s3, s37, 1024")
        e("buffer_load_dwordx4 v3, s[28:31], s37 offen sc1 lds")
        e("s_add_u32 m0, s36, 1024")
        e("s_nop 0")
        e("buffer_load_dwordx4 v3, s[28:31], s3 offen sc1 lds")
        e.label(f"K2_SK{tag}")
        e("s_add_u32 s37, s37, 14336")
        e("s_add_u32 s36, s36, 14336")
        e(f"s_cmp_ge_u32 s36, {RING}")
        e(f"s_cselect_b32 s3, {RING}, 0")
        e("s_sub_u32 s36, s36, s3")
    e("s_mov_b32 s36, s26")
    e("s_mov_b32 s37, s27")
    emit_dma("a"); emit_dma("b")
    for r in (K2(0)+2, K2(0)+3, K2(1)+2, K2(1)+3, Q2+2, Q2+3, P+4, P+5, P+6, P+7, V(1,1), V(1,1)+1, V(1,1)+2, V(1,1)+3):
        e(f"v_mov_b32 v{r}, 0")
    for i in range(16):
        e(f"v_mov_b32 v{O+i}, 0")
    e("v_cmp_le_u32 s[32:33], 32, v0")
    e("v_mov_b32 v8, v3"); e("v_mov_b32 v9, v4")
    e("v_add_u32 v10, 14336, v3"); e("v_add_u32 v11, 14336, v4")
    e("s_mov_b32 s38, 28672")
    e(f"v_mov_b32 v14, {CNT}")
    e("v_mov_b32 v15, 1")
    e("v_mov_b32 v6, 0"); e("v_mov_b32 v7, 0")
    e("ds_write_b64 v14, v[6:7]")
    e("s_mov_b32 s40, 8")
    e("s_waitcnt lgkmcnt(0)")
    e("s_waitcnt vmcnt(2)")
    e("s_cmp_eq_u32 s20, 7")
    e("s_cbranch_scc0 K2_W7")
    e("s_waitcnt vmcnt(0)")
    e.label("K2_W7")
    e("s_barrier")
    stamp(e, 1)
    emit_dma("c")
    e(f"v_cndmask_b32 v{Q2}, v{Q2}, 0, s[32:33]")
    e(f"v_cndmask_b32 v{Q2+1}, v{Q2+1}, 0, s[32:33]")
    def rdK(t):
        p = t & 1; a16 = 8 if t < 4 else 10; off = (t % 4) * KV_TILE
        return [f"ds_read_b128 {vr(K1(p),4)}, v{a16} offset:{off}",
                f"ds_read_b64 {vr(K2(p),2)}, v{a16+1} offset:{off+1024}"]
    def rdV(t):
        p = t & 1; a16 = 8 if t < 4 else 10; off = (t % 4) * KV_TILE
        return [f"ds_read_b128 {vr(V(p,0),4)}, v{a16} offset:{off+1536}",
                f"ds_read_b128 {vr(V(p,1),4)}, v{a16} offset:{off+2560}"]
    for ins in rdK(0) + rdK(1) + rdV(0): e(ins)
    e("s_waitcnt lgkmcnt(0)")
    def qk(t, which):
        p = t & 1; s = S[t & 1]
        if which == 0:
            return f"v_mfma_f32_32x32x16_bf16 {vr(s,16)}, {vr(K1(p),4)}, {vr(Q1,4)}, 0"
        return f"v_mfma_f32_32x32x8_bf16 {vr(s,16)}, {vr(K2(p),2)}, {vr(Q2,2)}, {vr(s,16)}"
    def set_fold(src16, running=None):
        e(f"v_max3_f32 v5, v{src16}, v{src16+1}, v{src16+2}")
        for i in range(3, 15, 2):
            e(f"v_max3_f32 v5, v5, v{src16+i}, v{src16+i+1}")
        e(f"v_max_f32 v5, v5, v{src16+15}")
    def fold_from_v5():
        e("v_mov_b32 v6, v5")
        e("s_nop 1")
        e("v_permlane32_swap_b32 v5, v6")
        e("s_nop 1")
        e("v_max_f32 v5, v5, v6")
        e("v_sub_f32 v5, 0, v5")
        e("v_cvt_pk_bf16_f32 v6, v5, v5")
        e("v_lshlrev_b32 v6, 16, v6")
        e("v_sub_f32 v6, v5, v6")
        e("v_cvt_pk_bf16_f32 v6, v5, v6")
        e(f"v_cndmask_b32 v{Q2}, v{Q2}, v6, s[32:33]")
        e("s_nop 1")
    e(qk(0, 0)); e(qk(0, 1))
    e("s_nop 15")
    set_fold(S[0])
    fold_from_v5()
    e(qk(0, 0)); e(qk(0, 1))
    e("s_mov_b32 s39, 0")
    e("s_nop 7")
    def pv(t, h):
        p = t & 1
        return f"v_mfma_f32_32x32x16_bf16 {vr(O,16)}, {vr(V(p,h),4)}, {vr(P+4*h,4)}, {vr(O,16)}"
    def grp(s, q):
        for i in range(4):
            e(f"v_exp_f32 v{s+4*q+i}, v{s+4*q+i}")
        e(f"v_cvt_pk_bf16_f32 v{P+2*q}, v{s+4*q}, v{s+4*q+1}")
        e(f"v_cvt_pk_bf16_f32 v{P+2*q+1}, v{s+4*q+2}, v{s+4*q+3}")
    stamp(e, 2)
    if "prio" in os.environ.get("VAR", ""):
        e("s_cmp_ge_u32 s20, 4")
        e("s_cbranch_scc0 K2_NP")
        e("s_setprio 1")
        e.label("K2_NP")
    if "late" in os.environ.get("VAR", ""):
        for r in range(12, 16): e(f"v_mov_b32 v{S[1]+r}, 0")
    e.l.append(".p2align 6")
    e.label("K2_LOOP")
    VAR = os.environ.get("VAR", "")
    def ex(s, q):
        for i in range(4):
            e(f"v_exp_f32 v{s+4*q+i}, v{s+4*q+i}")
    def cv(s, q):
        e(f"v_cvt_pk_bf16_f32 v{P+2*q}, v{s+4*q}, v{s+4*q+1}")
        e(f"v_cvt_pk_bf16_f32 v{P+2*q+1}, v{s+4*q+2}, v{s+4*q+3}")
    for i in range(4):
        s = S[i & 1]; sp = S[(i+1) & 1]
        def upd():
            e("v_mov_b32 v8, v10"); e("v_mov_b32 v9, v11")
            e("v_add_u32 v10, s38, v3"); e("v_add_u32 v11, s38, v4")
            e("s_add_u32 s38, s38, 14336")
            e(f"s_cmp_ge_u32 s38, {RING}")
            e(f"s_cselect_b32 s3, {RING}, 0")
            e("s_sub_u32 s38, s38, s3")
            e("s_add_u32 s39, s39, 1")
        def head():
            if "tog" in VAR: e(f"s_setprio {(3 - ((i+2)%4))}")
            if i == 0:
                e("s_waitcnt vmcnt(2) lgkmcnt(0)")
                e("s_mov_b64 exec, 1")
                e("ds_add_u32 v14, v15")
                e("s_mov_b64 exec, -1")
            elif i == 1:
                e("s_waitcnt lgkmcnt(0)")
                e("ds_read_b32 v7, v14")
            elif i == 2:
                e.label("K2_CHK")
                e("s_waitcnt lgkmcnt(0)")
                e("v_readfirstlane_b32 s3, v7")
                e("s_cmp_ge_u32 s3, s40")
                e("s_cbranch_scc0 K2_SLOW")
                e("s_add_u32 s40, s40, 8")
            else:
                e("s_waitcnt lgkmcnt(0)")
        if "late" in VAR:
            head()
            for ins in rdK(i+2): e(ins if "nords" not in VAR else "s_nop 0")
            ex(s, 0)
            cv(sp, 3)
            e(qk(i+1, 0)) if False else None
            if i == 2 and "nobar" not in VAR: emit_dma("d")
            else: e("s_nop 0")
            e(pv(i+1, 1))
            for ins in rdV(i+1): e(ins if ("nords" not in VAR and "norv" not in VAR) else "s_nop 0")
            ex(s, 1); cv(s, 0)
            e(qk(i+1, 0))
            if i == 3: upd()
            ex(s, 2); cv(s, 1)
            e(qk(i+1, 1))
            ex(s, 3); cv(s, 2)
            e(pv(i, 0))
        else:
            head()
            for ins in rdK(i+2): e(ins)
            e(pv(i+1, 1))
            for ins in rdV(i+1): e(ins)
            if i == 2 and "nobar" not in VAR:
                emit_dma("d")
            grp(s, 0)
            e(qk(i+1, 0))
            grp(s, 1)
            e(qk(i+1, 1))
            if i == 3: upd()
            grp(s, 2)
            e(pv(i, 0))
            grp(s, 3)
    e("s_cmp_lt_u32 s39, 16")
    e("s_cbranch_scc1 K2_LOOP")
    stamp(e, 3)
    if "late" in VAR: cv(S[1], 3)
    e("s_nop 1")
    e(pv(63, 1))
    e("s_nop 15")
    e(f"v_max3_f32 v5, |v{O}|, |v{O+1}|, |v{O+2}|")
    for i in range(3, 11, 2):
        e(f"v_max3_f32 v5, v5, |v{O+i}|, |v{O+i+1}|")
    e(f"v_max_f32 v5, v5, |v{O+11}|")
    e("s_mov_b32 s3, 0x7b800000")
    e("v_cmp_nlt_f32 vcc, v5, s3") if False else None
    e("v_mov_b32 v7, s3")
    e("v_cmp_nlt_f32 s[34:35], v5, v7")
    e(f"v_mov_b32 v5, v{O+8}")
    e(f"v_mov_b32 v6, v{O+8}")
    e("s_nop 1")
    e("v_permlane32_swap_b32 v5, v6")
    e("v_mov_b32 v7, 0x53800000")
    e("s_nop 0")
    e("v_cmp_nlt_f32 vcc, v6, v7")
    e("s_nop 1")
    e("s_or_b64 vcc, vcc, s[34:35]")
    e("s_cbranch_vccnz K2_FALLBACK")
    e.label("K2_NORM")
    e("v_rcp_f32 v6, v6")
    e("s_nop 0")
    e("v_mul_f32 v6, v6, v13")
    for i in range(12):
        e(f"v_mul_f32 v{O+i}, v{O+i}, v6")
    for i in range(6):
        e(f"v_cvt_pk_bf16_f32 v{P+i}, v{O+2*i}, v{O+2*i+1}")
    e("s_mul_i32 s3, s21, 40")
    e("s_add_u32 s24, s3, s23")
    e("s_lshl_b32 s24, s24, 10")
    e(f"s_add_u32 s24, s24, {OBUF}")
    e(f"buffer_store_dwordx4 {vr(P,4)}, v3, s[28:31], s24 offen sc1")
    e("s_lshr_b32 s25, s23, 2")
    e("s_add_u32 s3, s3, s25")
    e("s_add_u32 s3, s3, 32")
    e("s_lshl_b32 s3, s3, 10")
    e("s_bfe_u32 s25, s23, 0x10001")
    e("s_lshl_b32 s25, s25, 9")
    e("s_add_u32 s3, s3, s25")
    e("s_and_b32 s25, s23, 1")
    e("s_lshl_b32 s25, s25, 3")
    e("s_add_u32 s3, s3, s25")
    e(f"s_add_u32 s3, s3, {OBUF}")
    e("s_mov_b32 exec_hi, 0")
    e(f"buffer_store_dwordx2 {vr(P+4,2)}, v3, s[28:31], s3 offen sc1")
    e("s_waitcnt vmcnt(0)")
    e("s_mov_b64 exec, 1")
    e("ds_add_u32 v14, v15 offset:4")
    e("s_waitcnt lgkmcnt(0)")
    stamp(e, 4)
    stamp_flush(e, 7, 1, "s79", 5)
    e("s_endpgm")
    e.label("K2_SLOW")
    e("s_sleep 1")
    e("ds_read_b32 v7, v14")
    e("s_branch K2_CHK")
    e.label("K2_FALLBACK")
    e(f"v_cndmask_b32 v{Q2}, v{Q2}, 0, s[32:33]")
    e("v_mov_b32 v12, 0xff800000")
    e(f"s_mov_b32 s3, {KVBUF}")
    e.label("K2_FB1")
    e(f"buffer_load_dwordx4 {vr(K1(0),4)}, v3, s[28:31], s3 offen sc1")
    e(f"buffer_load_dwordx2 {vr(K2(0),2)}, v4, s[28:31], s3 offen offset:1024 sc1")
    e("s_waitcnt vmcnt(0)")
    e(qk(0, 0)); e(qk(0, 1))
    e("s_nop 15")
    set_fold(S[0])
    e("v_max_f32 v12, v12, v5")
    e(f"s_add_u32 s3, s3, {KV_TILE}")
    e(f"s_cmp_lt_u32 s3, {KVBUF + 64*KV_TILE}")
    e("s_cbranch_scc1 K2_FB1")
    e("v_mov_b32 v5, v12")
    fold_from_v5()
    for i in range(16):
        e(f"v_mov_b32 v{O+i}, 0")
    e(f"s_mov_b32 s3, {KVBUF}")
    e.label("K2_FB2")
    e(f"buffer_load_dwordx4 {vr(K1(0),4)}, v3, s[28:31], s3 offen sc1")
    e(f"buffer_load_dwordx2 {vr(K2(0),2)}, v4, s[28:31], s3 offen offset:1024 sc1")
    e(f"buffer_load_dwordx4 {vr(V(0,0),4)}, v3, s[28:31], s3 offen offset:1536 sc1")
    e(f"buffer_load_dwordx4 {vr(V(0,1),4)}, v3, s[28:31], s3 offen offset:2560 sc1")
    e("s_waitcnt vmcnt(0)")
    e(qk(0, 0)); e(qk(0, 1))
    e("s_nop 15")
    for q in range(4): grp(S[0], q)
    e("s_nop 1")
    e(pv(2, 0)); e(pv(2, 1))
    e(f"s_add_u32 s3, s3, {KV_TILE}")
    e(f"s_cmp_lt_u32 s3, {KVBUF + 64*KV_TILE}")
    e("s_cbranch_scc1 K2_FB2")
    e("s_nop 15")
    e(f"v_mov_b32 v5, v{O+8}")
    e(f"v_mov_b32 v6, v{O+8}")
    e("s_nop 1")
    e("v_permlane32_swap_b32 v5, v6")
    e("s_nop 1")
    e("s_branch K2_NORM")
    e.label("K2_GEMM")
    import os
    if os.environ.get("NOGEMM"): e("s_endpgm")
    NS = 5
    srd(e, 32, 4, 1966080)
    srd(e, 36, 8, 819200)
    srd(e, 40, 12, 2621440)
    srd(e, 44, 14, 256)
    e("s_sub_u32 s20, s20, 8")
    e("v_mov_b32 v13, 0")
    e("s_cmp_lg_u32 s20, 0")
    e("s_cbranch_scc1 K2_G0")
    e("s_lshl_b32 s62, s76, 7")
    e(f"s_add_u32 s62, s62, {FLAG1}")
    e("v_mov_b32 v14, s77")
    e("s_mov_b64 exec, 1")
    e("buffer_store_dword v14, v13, s[28:31], s62 offen sc1")
    e("s_mov_b64 exec, -1")
    e.label("K2_G0")
    e("s_mul_i32 s3, s20, 3")
    e("v_add_u32 v1, s3, v0")
    e("v_cmp_eq_u32 vcc, 3, v0")
    e("s_nop 1")
    e("v_cndmask_b32 v1, v1, 15, vcc")
    e("s_lshr_b32 s3, s21, 2")
    e("s_lshl_b32 s3, s3, 4")
    e("v_add_u32 v1, s3, v1")
    e("v_lshlrev_b32 v1, 7, v1")
    e(f"s_mov_b32 s3, {FLAG1}")
    e("s_mov_b32 s63, 0")
    e("s_barrier")
    e("s_barrier")
    e("s_mov_b64 exec, 15")
    e.label("K2_GL")
    e("buffer_load_dword v2, v1, s[28:31], s3 offen sc1")
    e("s_waitcnt vmcnt(0)")
    e("v_cmp_ne_u32 vcc, s77, v2")
    e("s_nop 1")
    e("s_cbranch_vccz K2_GD")
    e("s_sleep 4")
    e("s_add_u32 s63, s63, 1")
    e("s_cmp_lt_u32 s63, 0x100000")
    e("s_cbranch_scc1 K2_GL")
    e.label("K2_GD")
    e("s_mov_b64 exec, -1")
    if os.environ.get("GP"): e(f"s_setprio {os.environ['GP']}")
    e(f"s_mul_i32 s58, s20, {NS*5120}")
    e(f"s_add_u32 s58, s58, {RING}")
    e("s_mov_b32 s59, 1280")
    gemm_addr_setup(e, "s58", type2=True)
    e("v_and_b32 v13, 31, v0")
    e("v_lshlrev_b32 v13, 2, v13")
    e("s_lshl_b32 s3, s21, 7")
    e(f"s_add_u32 s3, s3, {GBUF}")
    e("buffer_load_dword v160, v13, s[28:31], s3 offen sc1")
    e("s_mul_i32 s60, s20, 491520")
    e("s_mul_i32 s3, s22, 320")
    e("s_add_u32 s60, s60, s3")
    e("s_mul_i32 s61, s21, 96")
    e("s_mul_i32 s3, s20, 24")
    e("s_add_u32 s61, s61, s3")
    e("s_lshl_b32 s61, s61, 10")
    e(f"s_add_u32 s61, s61, {HBUF}")
    ks = [(0, k*20480, k*1024) for k in range(24)]
    nb = splitk_gemm(e, "K2", ks, NS, 32, 28, "s58", barrier_every=None, barrier_count=0)
    stamp(e, 1)
    e("s_mul_i32 s60, s22, 320")
    e("s_mul_i32 s3, s20, 204800")
    e("s_add_u32 s60, s60, s3")
    wk = [(0, k*20*1280) for k in range(8)] + [(1, (k*80+16)*1280) for k in range(2)]
    def wslab(k):
        vs, wo_ = wk[k]
        e(f"s_add_u32 s62, s60, {wo_}")
        for i in range(5):
            e(f"s_add_u32 m0, s58, {(k % NS)*5120 + i*1024}")
            e("s_nop 0")
            e(f"buffer_load_dwordx4 v{1+vs*5+i}, s[36:39], s62 offen lds")
    for k in range(NS): wslab(k)
    for k in range(NS, 10):
        vs, wo_ = wk[k]
        e(f"s_add_u32 s62, s60, {wo_}")
        for i in range(5):
            e(f"buffer_load_dwordx4 v[40:43], v{1+vs*5+i}, s[36:39], s62 offen")
    e("v_sub_f32 v160, 1.0, v160")
    e("s_nop 7")
    for i in range(80):
        e(f"v_mul_f32 v{80+i}, v{80+i}, v160")
    def rdw(k):
        base = 16 if k % 2 == 0 else 60
        slab = (k % NS) * 5120
        for nt in range(5):
            for uu in range(2):
                e(f"ds_read_b64_tr_b16 {vr(base+nt*4+uu*2,2)}, v11 offset:{slab + uu*2560 + nt*64}")
    e("s_waitcnt vmcnt(0)")
    rdw(0)
    e(f"v_mov_b32 v13, {CNT}")
    e.label("K2_GW")
    e("s_sleep 2")
    e("ds_read_b32 v14, v13 offset:4")
    e("s_waitcnt lgkmcnt(0)")
    e("v_readfirstlane_b32 s3, v14")
    e("s_cmp_ge_u32 s3, 8")
    e("s_cbranch_scc0 K2_GW")
    stamp(e, 2)
    e("v_mov_b32 v13, 0")
    e("s_cmp_lg_u32 s20, 0")
    e("s_cbranch_scc1 K2_POLL0")
    e("s_lshl_b32 s62, s21, 2")
    e("s_add_u32 s62, s62, s22")
    e("s_lshl_b32 s62, s62, 7")
    e(f"s_add_u32 s62, s62, {FLAG}")
    e("v_mov_b32 v14, s77")
    e("s_mov_b64 exec, 1")
    e("buffer_store_dword v14, v13, s[28:31], s62 offen sc1")
    e("s_mov_b64 exec, -1")
    e.label("K2_POLL0")
    e("s_lshl_b32 s62, s21, 2")
    e("s_add_u32 s62, s62, s20")
    e("s_lshl_b32 s62, s62, 7")
    e(f"s_add_u32 s62, s62, {FLAG}")
    e("s_mov_b32 s63, 0")
    e("s_cmp_eq_u32 s20, s22")
    e("s_cbranch_scc1 K2_GO")
    e.label("K2_POLL")
    e("buffer_load_dword v14, v13, s[28:31], s62 offen sc1")
    e("s_waitcnt vmcnt(0)")
    e("v_readfirstlane_b32 s3, v14")
    e("s_cmp_eq_u32 s3, s77")
    e("s_cbranch_scc1 K2_GO")
    e("s_sleep 2")
    e("s_add_u32 s63, s63, 1")
    e("s_cmp_lt_u32 s63, 0x100000")
    e("s_cbranch_scc1 K2_POLL")
    e.label("K2_GO")
    stamp(e, 3)
    e("s_mul_i32 s61, s21, 40")
    e("s_lshl_b32 s61, s61, 10")
    e(f"s_add_u32 s61, s61, {OBUF}")
    e("s_lshl_b32 s3, s20, 11")
    e("s_add_u32 s63, s61, s3")
    e("s_add_u32 s63, s63, 32768")
    e("s_lshl_b32 s3, s20, 13")
    e("s_add_u32 s61, s61, s3")
    e("s_add_u32 s56, s61, 4096")
    XO = lambda k: 40 + (k % 5) * 4
    WS_ = lambda k: 16 if k % 2 == 0 else 60
    def xld(k):
        if k < 8: e(f"buffer_load_dwordx4 {vr(XO(k),4)}, v12, s[28:31], {'s61' if k < 4 else 's56'} offen offset:{(k%4)*1024} sc1")
        else:     e(f"buffer_load_dwordx4 {vr(XO(k),4)}, v12, s[28:31], s63 offen offset:{(k-8)*1024} sc1")
    for k in range(5): xld(k)
    for k in range(10):
        if k + 1 < 10:
            if k + 1 >= NS: e(f"s_waitcnt vmcnt({(min(9,k+4)-(k+1))*6 + 1})")
            rdw(k + 1)
        if k == 0:
            e("s_waitcnt vmcnt(0)")
            stamp(e, 7)
        elif k >= 5: e(f"s_waitcnt vmcnt({(9-k)*6})")
        e(f"s_waitcnt lgkmcnt({10 if k + 1 < 10 else 0})")
        for nt in range(5):
            e(f"v_mfma_f32_32x32x16_bf16 {vr(80+nt*16,16)}, {vr(WS_(k)+nt*4,4)}, {vr(XO(k),4)}, {vr(80+nt*16,16)}")
        if k + NS < 10:
            wslab(k + NS); xld(k + 5)
    stamp(e, 8)
    reduce_write(e, "s58")
    stamp(e, 9)
    e("s_mul_i32 s57, s20, 5120")
    e(f"s_add_u32 s57, s57, {RING}")
    reduce_read(e, NS*5120, "s57")
    for i in range(10):
        e(f"v_cvt_pk_bf16_f32 v{100+i}, v{80+2*i}, v{80+2*i+1}")
    e("v_and_b32 v13, 31, v0")
    e("v_mul_u32_u24 v13, 0x500, v13")
    e("v_lshrrev_b32 v14, 5, v0")
    e("v_lshl_add_u32 v13, v14, 3, v13")
    e("s_mul_i32 s3, s21, 40960")
    e("s_mul_i32 s62, s22, 320")
    e("s_add_u32 s3, s3, s62")
    e("s_mul_i32 s62, s20, 80")
    e("s_add_u32 s3, s3, s62")
    for q in range(5):
        e(f"buffer_store_dwordx2 {vr(100+2*q,2)}, v13, s[40:43], s3 offen offset:{q*16}")
    stamp(e, 4)
    stamp_flush(e, 5, 1, "s79", 13)
    e.label("K2_END")
    e("s_endpgm")
    return name, 168, RING + 4*NS*5120 + 64, 256, 768

def gen_k3(e):
    name = "k3_kernel"
    kernel_head(e, name)
    e("s_cmp_ge_u32 s2, 256")
    e("s_cbranch_scc1 K3_END")
    e("s_load_dwordx2 s[4:5], s[0:1], 32")
    e("s_load_dwordx2 s[6:7], s[0:1], 96")
    e("s_load_dwordx2 s[8:9], s[0:1], 80")
    e("v_lshrrev_b32 v1, 6, v0")
    e("v_and_b32 v0, 63, v0")
    e("s_nop 0")
    e("v_readfirstlane_b32 s20, v1")
    e("s_lshr_b32 s21, s2, 2")
    e("s_and_b32 s22, s2, 3")
    e("s_waitcnt lgkmcnt(0)")
    srd(e, 28, 6, WS_END)
    srd(e, 32, 4, 819200)
    srd(e, 36, 8, 2621440)
    stamp(e, 0)
    NS = 7
    e(f"s_mul_i32 s58, s20, {NS*5120}")
    e("s_mov_b32 s59, 1280")
    gemm_addr_setup(e, "s58", type2=True)
    e("s_mul_i32 s3, s2, 20480")
    e("s_mul_i32 s62, s20, 5120")
    e("s_add_u32 s3, s3, s62")
    e(f"s_add_u32 s3, s3, {BBUF}")
    e("s_add_u32 s62, s3, 4096")
    for q in range(5):
        if q < 4:
            e(f"buffer_load_dwordx4 {vr(160+q*4,4)}, v12, s[28:31], s3 offen offset:{q*1024}")
        else:
            e(f"buffer_load_dwordx4 {vr(160+q*4,4)}, v12, s[28:31], s62 offen")
    e("v_and_b32 v13, 31, v0")
    e("v_lshlrev_b32 v13, 2, v13")
    e("s_lshl_b32 s3, s21, 7")
    e(f"s_add_u32 s3, s3, {GBUF}")
    e("buffer_load_dword v180, v13, s[28:31], s3 offen")
    e("s_mul_i32 s60, s22, 320")
    e("s_mul_i32 s3, s20, 204800")
    e("s_add_u32 s60, s60, s3")
    e("s_mul_i32 s61, s21, 40")
    e("s_lshl_b32 s61, s61, 10")
    e(f"s_add_u32 s61, s61, {OBUF}")
    e("s_lshl_b32 s3, s20, 13")
    e("s_add_u32 s61, s61, s3")
    e("s_mul_i32 s3, s20, 6144")
    e("s_sub_u32 s56, 32768, s3")
    ks = [(0, k*20*1280, k*1024) for k in range(8)]
    ks += [(1, (k*80+16)*1280, None) for k in range(2)]
    ks2 = []
    for (a, b, c) in ks:
        ks2.append((a, b, c))
    e("s_add_u32 s55, s56, 1024")
    ks2[8] = (1, ks[8][1], "s56"); ks2[9] = (1, ks[9][1], "s55")
    stamp(e, 1)
    splitk_gemm(e, "K3", ks2, NS, 32, 28, "s58")
    stamp(e, 2)
    reduce_write(e, "s58")
    stamp(e, 3)
    e("s_mul_i32 s57, s20, 5120")
    reduce_read(e, NS*5120, "s57", wait="vmcnt(0) lgkmcnt(0)")
    e("v_sub_f32 v181, 1.0, v180")
    for i in range(20):
        e(f"v_mul_f32 v{160+i}, v181, v{160+i}")
        e(f"v_fma_f32 v{80+i}, v180, v{80+i}, v{160+i}")
    for i in range(10):
        e(f"v_cvt_pk_bf16_f32 v{100+i}, v{80+2*i}, v{80+2*i+1}")
    e("v_and_b32 v13, 31, v0")
    e("v_mul_u32_u24 v13, 0x500, v13")
    e("v_lshrrev_b32 v14, 5, v0")
    e("v_lshl_add_u32 v13, v14, 3, v13")
    e("s_mul_i32 s3, s21, 40960")
    e("s_mul_i32 s62, s22, 320")
    e("s_add_u32 s3, s3, s62")
    e("s_mul_i32 s62, s20, 80")
    e("s_add_u32 s3, s3, s62")
    for q in range(5):
        e(f"buffer_store_dwordx2 {vr(100+2*q,2)}, v13, s[36:39], s3 offen offset:{q*16}")
    stamp(e, 4)
    stamp_flush(e, 5, 2, "s20", 13)
    e.label("K3_END")
    e("s_endpgm")
    return name, 184, 4*NS*5120, 256, 256
```

```python
from common import *
from k23 import CNT
import math
QSCALE = math.log2(math.e) / math.sqrt(20.0)
import struct
def f2u(f): return struct.unpack('<I', struct.pack('<f', f))[0]

def gen_k1(e):
    name = "gated_mix__grouped_kv_mqa__glu_gated_reglu__prompt_kernel"
    kernel_head(e, name)
    e("s_cmp_ge_u32 s2, 256")
    e("s_cbranch_scc1 K2_END")
    e("s_load_dwordx4 s[4:7], s[0:1], 0")
    e("s_load_dwordx4 s[8:11], s[0:1], 16")
    e("s_load_dwordx4 s[12:15], s[0:1], 48")
    e("s_load_dwordx2 s[16:17], s[0:1], 72")
    e("s_load_dwordx2 s[18:19], s[0:1], 96")
    e("s_load_dwordx2 s[60:61], s[0:1], 32")
    e("s_load_dwordx2 s[62:63], s[0:1], 64")
    e("s_load_dwordx2 s[64:65], s[0:1], 88")
    e("v_lshrrev_b32 v1, 6, v0")
    e("v_and_b32 v0, 63, v0")
    e("s_nop 0")
    e("v_readfirstlane_b32 s20, v1")
    e("s_nop 3")
    e("s_mov_b32 s79, s20")
    e("s_and_b32 s3, s2, 7")
    e("s_lshr_b32 s21, s2, 3")
    e("s_and_b32 s22, s3, 1")
    e("s_lshl_b32 s22, s22, 3")
    e("s_and_b32 s23, s21, 7")
    e("s_add_u32 s22, s22, s23")
    e("s_lshr_b32 s23, s3, 1")
    e("s_lshl_b32 s23, s23, 2")
    e("s_lshr_b32 s21, s21, 3")
    e("s_add_u32 s23, s23, s21")
    e("s_waitcnt lgkmcnt(0)")
    srd(e, 24, 4, 2621440)
    srd(e, 28, 18, WS_END)
    stamp(e, 0)
    e("s_cmp_eq_u32 s23, 15")
    e("s_cbranch_scc1 K1_ROLE_C")
    e("s_cmp_ge_u32 s23, 12")
    e("s_cbranch_scc1 K1_SETUP_B")
    e("s_lshl_b32 s21, s23, 8")
    e("s_sub_u32 s3, 1966080, s21")
    srd(e, 32, 12, "s3", add="s21")
    srd(e, 36, 14, "s3", add="s21")
    e("s_mov_b32 s40, 3072")
    e("s_branch K1_GEMM")
    e.label("K1_SETUP_B")
    e("s_sub_u32 s21, s23, 12")
    e("s_lshl_b32 s21, s21, 9")
    e("s_sub_u32 s3, 819200, s21")
    srd(e, 32, 6, "s3", add="s21")
    e("s_add_u32 s21, s21, 256")
    e("s_sub_u32 s3, 819200, s21")
    srd(e, 36, 6, "s3", add="s21")
    e("s_mov_b32 s40, 1280")
    e.label("K1_GEMM")
    e("s_mov_b32 s56, 1")
    e("s_cmp_ge_u32 s20, 8")
    e("s_cbranch_scc1 K1_HELP")
    e("s_lshl_b32 s41, s40, 2")
    e("s_lshl_b32 s44, s40, 6")
    e("s_lshl_b32 s45, s40, 3")
    e("s_mul_i32 s45, s45, s20")
    e("s_mul_i32 s46, s22, 163840")
    e("s_lshl_b32 s47, s20, 10")
    e("s_lshl_b32 s48, s20, 11")
    e("s_add_u32 s48, s48, 16384")
    e("s_lshr_b32 s49, s20, 2")
    e("s_and_b32 s50, s20, 3")
    e("s_and_b32 s51, s20, 1")
    e("v_lshrrev_b32 v3, 3, v0")
    e("s_lshl_b32 s3, s20, 3")
    e("v_add_u32 v3, s3, v3")
    e("v_mul_u32_u24 v3, 0x500, v3")
    e("v_lshrrev_b32 v4, 4, v0")
    e("s_lshl_b32 s3, s51, 2")
    e("v_add_u32 v4, s3, v4")
    e("v_and_b32 v4, 7, v4")
    e("v_and_b32 v5, 7, v0")
    e("v_xor_b32 v4, v4, v5")
    e("v_lshl_add_u32 v2, v4, 4, v3")
    e("v_lshrrev_b32 v4, 4, v0")
    e("v_mul_lo_u32 v3, v4, s40")
    e("v_lshlrev_b32 v4, 2, v4")
    e("v_and_b32 v5, 15, v0")
    e("v_xor_b32 v4, v4, v5")
    e("v_lshl_add_u32 v1, v4, 4, v3")
    e("s_mov_b32 s52, 0")
    def dma():
        g = []
        if os.environ.get("LOADER"): return g
        for m in range(2):
            g.append([f"s_add_u32 s53, s52, s47",
                      f"s_add_u32 m0, s53, {m*8192}",
                      f"s_add_u32 s3, s46, {m*81920}",
                      f"buffer_load_dwordx4 v2, s[24:27], s3 offen lds"])
        for ee in range(2):
            for u in range(2):
                g.append([f"s_add_u32 s53, s52, s48",
                          f"s_add_u32 m0, s53, {u*16384 + ee*1024}",
                          (f"s_add_u32 s3, s45, s41" if ee else "s_mov_b32 s3, s45"),
                          f"buffer_load_dwordx4 v1, s[{32+4*u}:{35+4*u}], s3 offen lds"])
        if g: g[-1] += ["s_add_u32 s45, s45, s44", "s_add_u32 s46, s46, 128",
                  "s_add_u32 s52, s52, 49152", "s_cmp_ge_u32 s52, 147456", "s_cselect_b32 s3, 147456, 0", "s_sub_u32 s52, s52, s3"]
        return g
    for st in range(2):
        for grp in dma():
            for ins in grp: e(ins)
        if st < 1: e("s_barrier")
    if os.environ.get("LOADER"):
        e("v_lshrrev_b32 v3, 3, v0"); e("v_mul_u32_u24 v3, 0x500, v3"); e("v_and_b32 v4, 7, v0"); e("v_lshl_add_u32 v3, v4, 4, v3")
        e("s_and_b32 s3, s23, 3"); e("s_lshl_b32 s3, s3, 5"); e("s_lshl_b32 s53, s50, 3"); e("s_add_u32 s3, s3, s53")
        e("s_mul_i32 s3, s3, 1280"); e("s_add_u32 s3, s3, s46"); e("s_lshl_b32 s53, s49, 7"); e("s_add_u32 s3, s3, s53")
        e("v_lshrrev_b32 v4, 4, v0"); e("v_mul_lo_u32 v4, v4, s40"); e("v_and_b32 v5, 15, v0"); e("v_lshl_add_u32 v4, v5, 4, v4")
        e("s_and_b32 s53, s22, 7"); e("s_lshl_b32 s53, s53, 3"); e("s_lshl_b32 s55, s51, 2"); e("s_add_u32 s53, s53, s55")
        e("s_lshl_b32 s55, s49, 6"); e("s_add_u32 s53, s53, s55"); e("s_add_u32 s53, s53, 128"); e("s_mul_i32 s53, s53, s40")
        e("s_lshl_b32 s55, s40, 7")
        e("s_bitcmp1_b32 s20, 1")
        for r in range(4): e(f"s_cselect_b32 s{72+r}, s{36+r}, s{32+r}")
        for j in range(4):
            e(f"buffer_load_dwordx4 v[160:163], v3, s[24:27], s3 offen offset:{256 + j*256}")
            e(f"buffer_load_dwordx4 v[164:167], v4, s[72:75], s53 offen")
            e("s_add_u32 s53, s53, s55")
    e("v_and_b32 v3, 31, v0")
    e("s_lshl_b32 s3, s49, 6")
    e("v_add_u32 v3, s3, v3")
    e("v_lshrrev_b32 v4, 1, v3")
    e("v_and_b32 v4, 7, v4")
    e("v_lshrrev_b32 v5, 5, v0")
    e("v_lshlrev_b32 v3, 7, v3")
    for ks in range(4):
        e(f"v_or_b32 v24, {ks*2}, v5")
        e("v_xor_b32 v24, v24, v4")
        e(f"v_lshl_add_u32 v{6+ks}, v24, 4, v3")
        e(f"v_mov_b32 v{11+ks}, v{6+ks}")
    e("v_bfe_u32 v3, v0, 2, 2")
    e("v_lshl_add_u32 v4, v5, 3, v3")
    e("v_lshlrev_b32 v4, 8, v4")
    e("v_bfe_u32 v24, v0, 4, 1")
    e("v_lshl_add_u32 v4, v24, 5, v4")
    e("v_and_b32 v24, 3, v0")
    e("v_lshl_add_u32 v4, v24, 3, v4")
    e("v_xor_b32 v24, s50, v3")
    e("v_lshl_add_u32 v10, v24, 6, v4")
    e("v_mov_b32 v15, v10")
    e("v_add_u32 v16, 49152, v6")
    e("v_add_u32 v17, 49152, v10")
    e("s_mov_b32 s54, 49152")
    ACC = lambda u, rt: 96 + (u*2+rt)*16
    XF = lambda p, rt: 32 + p*16 + rt*4
    WF = lambda p, u: 32 + p*16 + 8 + u*4
    for i in range(64): e(f"v_mov_b32 v{96+i}, 0")
    def reads(ks, nxt=False):
        p = ks & 1
        vx = 16 if nxt else 11 + ks
        vw = 17 if nxt else 15
        g = []
        for rt in range(2):
            g.append([f"ds_read_b128 {vr(XF(p,rt),4)}, v{vx} offset:{rt*4096}"])
        for u in range(2):
            for uu in range(2):
                g.append([f"ds_read_b64_tr_b16 {vr(WF(p,u)+uu*2,2)}, v{vw} offset:{16384+u*16384+(ks*16+uu*4)*256}"])
        return g
    stamp(e, 1)
    if not os.environ.get("LOADER"): e("s_waitcnt vmcnt(6)")
    e("s_barrier")
    stamp(e, 2)
    for grp in reads(0):
        for ins in grp: e(ins)
    for grp in dma():
        for ins in grp: e(ins)
    def stage(with_dma, first_dma_part):
        d = dma() if with_dma else []
        for ks in range(4):
            p = ks & 1
            if ks == 3:
                e(f"s_waitcnt vmcnt({6 if with_dma else 0}) lgkmcnt(0)" if not os.environ.get("LOADER") else "s_waitcnt lgkmcnt(0)")
                e("s_barrier")
                others = reads(0, nxt=True)
                others += d[0:2]
            else:
                e("s_waitcnt lgkmcnt(0)")
                others = reads(ks+1)
            mf = []
            for rt in range(2):
                for u in range(2):
                    a = ACC(u, rt)
                    mf.append(f"v_mfma_f32_32x32x16_bf16 {vr(a,16)}, {vr(WF(p,u),4)}, {vr(XF(p,rt),4)}, {vr(a,16)}")
            interleave(e, mf, others)
            if ks == 3:
                for grp in d[2:]:
                    for ins in grp: e(ins)
        for ks in range(4):
            e(f"v_add_u32 v{11+ks}, s54, v{6+ks}")
        e("v_mov_b32 v15, v17")
        e("s_add_u32 s54, s54, 49152"); e("s_cmp_ge_u32 s54, 147456"); e("s_cselect_b32 s3, 147456, 0"); e("s_sub_u32 s54, s54, s3")
        e("v_add_u32 v16, s54, v6")
        e("v_add_u32 v17, s54, v10")
    e("s_mov_b32 s55, 0")
    e.l.append(".p2align 6")
    e.label("K1_L1")
    stage(True, 0)
    e("s_add_u32 s55, s55, 1")
    e("s_cmp_lt_u32 s55, 7")
    e("s_cbranch_scc1 K1_L1")
    e.label("K1_L2")
    stage(False, 0)
    e("s_add_u32 s55, s55, 1")
    e("s_cmp_lt_u32 s55, 10")
    e("s_cbranch_scc1 K1_L2")
    stamp(e, 3)
    e("s_nop 15")
    e("s_cmp_ge_u32 s23, 12")
    e("s_cbranch_scc1 K1_EPI_B")
    e("s_lshl_b32 s3, s22, 2")
    e("s_lshl_b32 s21, s49, 1")
    e("s_add_u32 s3, s3, s21")
    e("s_mul_i32 s3, s3, 96")
    e("s_lshl_b32 s21, s23, 3")
    e("s_add_u32 s3, s3, s21")
    e("s_lshl_b32 s21, s50, 1")
    e("s_add_u32 s3, s3, s21")
    e("s_lshl_b32 s3, s3, 10")
    e(f"s_add_u32 s3, s3, {HBUF}")
    e(f"s_add_u32 s21, s3, {96*1024}")
    e("v_lshlrev_b32 v1, 4, v0")
    for rt in range(2):
        g = ACC(0, rt); u_ = ACC(1, rt)
        for i in range(16):
            e(f"v_max_f32 v{g+i}, 0, v{g+i}")
            e(f"v_mul_f32 v{g+i}, v{g+i}, v{u_+i}")
        d = 64 + rt*8
        for i in range(8):
            e(f"v_cvt_pk_bf16_f32 v{d+i}, v{g+2*i}, v{g+2*i+1}")
        for t in range(2):
            e(f"buffer_store_dwordx4 {vr(d+4*t,4)}, v1, s[28:31], {'s3' if rt==0 else 's21'} offen offset:{t*1024} sc1")
    stamp(e, 4)
    stamp_flush(e, 5, 0, "s20", 2)
    e("s_mov_b64 exec, -1")
    e("s_branch P1_DONE")
    e.label("K1_EPI_B")
    e("s_sub_u32 s3, s23, 12")
    e("s_lshl_b32 s3, s3, 6")
    e("s_lshl_b32 s21, s50, 3")
    e("s_add_u32 s3, s3, s21")
    e("s_lshl_b32 s3, s3, 14")
    e("s_lshl_b32 s21, s22, 7")
    e("s_lshl_b32 s51, s49, 6")
    e("s_add_u32 s21, s21, s51")
    e("s_lshl_b32 s21, s21, 3")
    e("s_add_u32 s3, s3, s21")
    e("v_and_b32 v1, 31, v0")
    e("v_lshlrev_b32 v1, 3, v1")
    e("v_lshrrev_b32 v2, 5, v0")
    e("v_lshl_add_u32 v1, v2, 14, v1")
    e(f"s_mov_b32 s51, 0x{f2u(QSCALE):08x}")
    for u in range(2):
        if u == 1:
            e("s_cmp_eq_u32 s23, 14")
            e("s_cbranch_scc1 P1_DONE")
        for rt in range(2):
            a = ACC(u, rt)
            for i in range(16):
                e(f"v_mul_f32 v{a+i}, s51, v{a+i}")
            d = 64 + (u*2+rt)*8
            for i in range(8):
                e(f"v_cvt_pk_bf16_f32 v{d+i}, v{a+2*i}, v{a+2*i+1}")
            for g in range(4):
                e(f"s_add_u32 s21, s3, {(u*32+2*g)*16384}")
                e(f"buffer_store_dwordx2 {vr(d+2*g,2)}, v1, s[28:31], s21 offen offset:{rt*256} sc1")
    e("s_branch P1_DONE")

    e.label("K1_ROLE_C")
    e("s_mov_b32 s56, 0")
    e("s_cmp_ge_u32 s20, 8")
    e("s_cbranch_scc1 K1_HELP")
    srd(e, 32, 8, 25600)
    srd(e, 36, 10, 25600)
    srd(e, 40, 16, 1280)
    e("s_and_b32 s3, s20, 3")
    e("s_lshl_b32 s21, s22, 2")
    e("s_add_u32 s21, s21, s3")
    e("s_lshl_b32 s44, s20, 6")
    e("v_add_u32 v3, s44, v0")
    e("v_lshlrev_b32 v4, 2, v3")
    for i in range(13):
        e(f"buffer_load_dword v{8+i}, v4, s[32:35], 0 offen offset:{(i%2)*2048}")
        e(f"buffer_load_dword v{33+i}, v4, s[36:39], 0 offen offset:{(i%2)*2048}")
        if i % 2 == 1: e("v_add_u32 v4, 4096, v4")
    e("v_lshlrev_b32 v4, 1, v3")
    for i in range(2):
        e(f"buffer_load_ushort v{58+i}, v4, s[40:43], 0 offen offset:{i*1024}")
    e("s_and_b32 s51, s20, 1")
    e("v_lshrrev_b32 v5, 3, v0")
    e("s_lshl_b32 s3, s20, 3")
    e("v_add_u32 v5, s3, v5")
    e("v_mul_u32_u24 v5, 0x500, v5")
    e("v_lshrrev_b32 v6, 4, v0")
    e("s_lshl_b32 s3, s51, 2")
    e("v_add_u32 v6, s3, v6")
    e("v_and_b32 v6, 7, v6")
    e("v_and_b32 v7, 7, v0")
    e("v_xor_b32 v6, v6, v7")
    e("v_lshl_add_u32 v62, v6, 4, v5")
    e("s_mul_i32 s46, s22, 163840")
    e("s_lshl_b32 s47, s20, 10")
    def cdma(kb):
        for m in range(2):
            e(f"s_add_u32 m0, s47, {81920 + (kb%4)*16384 + m*8192}")
            e(f"s_add_u32 s3, s46, {m*81920 + kb*128}")
            e("buffer_load_dwordx4 v62, s[24:27], s3 offen lds")
    for kb in range(3): cdma(kb)
    e("v_mov_b32 v144, 0"); e("v_mov_b32 v145, 0"); e("v_mov_b32 v146, 0"); e("v_mov_b32 v147, 0")
    e("v_lshlrev_b32 v4, 4, v3")
    for i in range(8):
        e(f"ds_write_b128 v4, v[144:147] offset:{i*8192}")
    e("v_add_u32 v5, 65536, v4")
    for i in range(2):
        e(f"ds_write_b128 v5, v[144:147] offset:{i*8192}")
    e("s_waitcnt lgkmcnt(0)")
    e("s_barrier")
    e("s_mov_b32 s3, 0xCCCCCCCD")
    e("s_waitcnt vmcnt(6)")
    for i in range(13):
        e(f"v_add_u32 v4, {512*i}, v3")
        e("v_mul_hi_u32 v5, v4, s3")
        e("v_lshrrev_b32 v5, 3, v5")
        e("v_mul_u32_u24 v6, 10, v5")
        e("v_sub_u32 v6, v4, v6")
        e("v_lshlrev_b32 v5, 6, v5")
        e("v_lshl_add_u32 v5, v6, 2, v5")
        if i == 12:
            e("v_cmp_gt_u32 vcc, 256, v3")
            e("s_and_saveexec_b64 s[44:45], vcc")
        e(f"ds_write_b32 v5, v{8+i}")
        e(f"ds_write_b32 v5, v{33+i} offset:40960")
        if i == 12:
            e("s_mov_b64 exec, s[44:45]")
    e("v_lshlrev_b32 v4, 6, v3")
    e("ds_write_b16 v4, v58 offset:44")
    e("v_cmp_gt_u32 vcc, 128, v3")
    e("s_and_saveexec_b64 s[44:45], vcc")
    e(f"ds_write_b16 v4, v59 offset:{44+32768}")
    e("s_mov_b64 exec, s[44:45]")
    e("s_waitcnt lgkmcnt(0)")
    e("s_barrier")
    e("v_bfe_u32 v3, v0, 2, 2")
    e("v_lshrrev_b32 v5, 5, v0")
    e("v_lshl_add_u32 v4, v5, 3, v3")
    e("v_lshlrev_b32 v4, 6, v4")
    e("v_bfe_u32 v6, v0, 4, 1")
    e("v_lshl_add_u32 v4, v6, 5, v4")
    e("v_and_b32 v6, 3, v0")
    e("v_lshl_add_u32 v4, v6, 3, v4")
    e(f"s_mul_i32 s48, s21, {KV_TILE}")
    e(f"s_add_u32 s48, s48, {KVBUF}")
    e("v_lshlrev_b32 v1, 4, v0")
    e("v_lshlrev_b32 v2, 3, v0")
    e("v_mov_b32 v60, 0x3f803f80")
    e("v_mov_b32 v61, 0")
    KA = 144
    e("v_and_b32 v5, 31, v0")
    e("s_and_b32 s44, s20, 3")
    e("s_lshl_b32 s44, s44, 5")
    e("v_add_u32 v5, s44, v5")
    e("v_lshrrev_b32 v6, 1, v5")
    e("v_and_b32 v6, 7, v6")
    e("v_lshrrev_b32 v7, 5, v0")
    e("v_lshlrev_b32 v5, 7, v5")
    e("v_add_u32 v5, 81920, v5")
    for ks in range(4):
        e(f"v_or_b32 v24, {ks*2}, v7")
        e("v_xor_b32 v24, v24, v6")
        e(f"v_lshl_add_u32 v{64+ks}, v24, 4, v5")
    e("s_cmp_ge_u32 s20, 4")
    e("s_cbranch_scc1 K1_C_V")
    def body(isV):
        for kb in range(10):
            e(f"s_waitcnt vmcnt({2*min(2, 9-kb)})")
            e("s_barrier")
            if kb + 3 < 10: cdma(kb+3)
            for ks in range(4):
                k = kb*4 + ks
                e(f"ds_read_b128 {vr(72+ks*4,4)}, v{64+ks} offset:{(kb%4)*16384}")
                e(f"ds_read_b64_tr_b16 {vr(8+ks*4,2)}, v4 offset:{k*1024}")
                e(f"ds_read_b64_tr_b16 {vr(10+ks*4,2)}, v4 offset:{k*1024+256}")
            for ks in range(4):
                e(f"s_waitcnt lgkmcnt({9-3*ks})")
                ck = "0" if (kb == 0 and ks == 0) else vr(KA, 16)
                if isV: e(f"v_mfma_f32_32x32x16_bf16 {vr(KA,16)}, {vr(72+ks*4,4)}, {vr(8+ks*4,4)}, {ck}")
                else:   e(f"v_mfma_f32_32x32x16_bf16 {vr(KA,16)}, {vr(8+ks*4,4)}, {vr(72+ks*4,4)}, {ck}")
        e("s_nop 15")
    body(False)
    for i in range(6):
        e(f"v_cvt_pk_bf16_f32 v{8+i}, v{KA+2*i}, v{KA+2*i+1}")
    e(f"v_mul_f32 v20, 0xbfb8aa3b, v{KA+10}")
    e("v_exp_f32 v20, v20")
    e("s_nop 0")
    e("v_add_f32 v20, 1.0, v20")
    e("v_rcp_f32 v20, v20")
    e("v_cmp_le_u32 vcc, 32, v0")
    e("s_nop 1")
    e("v_cndmask_b32 v12, v12, v60, vcc")
    e("v_cndmask_b32 v13, v13, v61, vcc")
    e("buffer_store_dwordx4 v[8:11], v1, s[28:31], s48 offen sc1")
    e("buffer_store_dwordx2 v[12:13], v2, s[28:31], s48 offen offset:1024 sc1")
    e("s_lshl_b32 s44, s21, 7")
    e(f"s_add_u32 s44, s44, {GBUF - 128}")
    e("v_lshlrev_b32 v23, 2, v0")
    e("s_and_saveexec_b64 s[46:47], vcc")
    e("buffer_store_dword v20, v23, s[28:31], s44 offen sc1")
    e("s_mov_b64 exec, -1")
    e("s_branch P1_DONE")
    e.label("K1_C_V")
    e("v_add_u32 v4, 40960, v4")
    body(True)
    e("v_and_b32 v23, 31, v0")
    e("v_cmp_eq_u32 vcc, 20, v23")
    for i in range(8):
        e(f"v_cvt_pk_bf16_f32 v{24+i}, v{KA+2*i}, v{KA+2*i+1}")
    for i in range(8):
        e(f"v_cndmask_b32 v{24+i}, v{24+i}, v60, vcc")
    e("buffer_store_dwordx4 v[24:27], v1, s[28:31], s48 offen offset:1536 sc1")
    e("buffer_store_dwordx4 v[28:31], v1, s[28:31], s48 offen offset:2560 sc1")
    stamp(e, 4)
    stamp_flush(e, 5, 0, "s20", 2)
    e("s_mov_b64 exec, -1")
    e("s_branch P1_DONE")
    e.label("K1_HELP")
    e("s_sub_u32 s20, s20, 8")
    srd(e, 48, 60, 819200)
    srd(e, 52, 62, 1966080)
    e("s_lshl_b32 s3, s2, 2")
    e("s_add_u32 s3, s3, s20")
    e("s_lshl_b32 s3, s3, 10")
    e("s_add_u32 s44, s3, 0x100000")
    e("s_add_u32 s45, s3, 0x200000")
    e("v_lshlrev_b32 v1, 4, v0")
    srd(e, 68, 64, 256)
    e("v_mov_b32 v2, 0")
    e("s_or_b32 s46, s2, s20")
    e("s_cmp_lg_u32 s46, 0")
    e("s_cbranch_scc1 K1_T0")
    e("s_memrealtime s[46:47]")
    e("s_waitcnt lgkmcnt(0)")
    e("s_or_b32 s46, s46, 1")
    e("v_mov_b32 v3, s46")
    e("s_mov_b64 exec, 1")
    e("buffer_store_dword v3, v2, s[68:71], 0 offen sc1")
    e("s_mov_b64 exec, -1")
    e.label("K1_T0")
    if os.environ.get("LOADER"):
        e("s_cmp_eq_u32 s56, 0")
        e("s_cbranch_scc1 K1_HC")
        e("s_lshl_b32 s41, s40, 2"); e("s_lshl_b32 s42, s40, 3"); e("s_add_u32 s43, s41, s42")
        e("s_lshl_b32 s58, s40, 6")
        e("s_lshl_b32 s59, s40, 4"); e("s_mul_i32 s59, s59, s20")
        e("s_mul_i32 s46, s22, 163840")
        e("s_lshl_b32 s47, s20, 10"); e("s_lshl_b32 s72, s20, 12"); e("s_add_u32 s72, s72, 16384")
        e("s_and_b32 s73, s20, 1")
        e("v_lshrrev_b32 v13, 3, v0"); e("s_lshl_b32 s74, s20, 3"); e("v_add_u32 v13, s74, v13"); e("v_mul_u32_u24 v13, 0x500, v13")
        e("v_lshrrev_b32 v14, 4, v0"); e("s_lshl_b32 s74, s73, 2"); e("v_add_u32 v14, s74, v14"); e("v_and_b32 v14, 7, v14")
        e("v_and_b32 v15, 7, v0"); e("v_xor_b32 v14, v14, v15"); e("v_lshl_add_u32 v16, v14, 4, v13")
        e("v_lshrrev_b32 v14, 4, v0"); e("v_mul_lo_u32 v13, v14, s40"); e("v_lshlrev_b32 v14, 2, v14")
        e("v_and_b32 v15, 15, v0"); e("v_xor_b32 v14, v14, v15"); e("v_lshl_add_u32 v17, v14, 4, v13")
        def ld(kb):
            base = (kb % 3) * 49152
            for m in range(4):
                e(f"s_add_u32 m0, s47, {base + m*4096}")
                e(f"s_add_u32 s74, s46, {m*40960 + kb*128}")
                e("buffer_load_dwordx4 v16, s[24:27], s74 offen lds")
            for ee in range(4):
                for u in range(2):
                    e(f"s_add_u32 m0, s72, {base + u*16384 + ee*1024}")
                    e(f"s_add_u32 s74, s59, s{40+ee}" if ee else "s_mov_b32 s74, s59")
                    e(f"buffer_load_dwordx4 v17, s[{32+4*u}:{35+4*u}], s74 offen lds")
            e("s_add_u32 s59, s59, s58")
        ld(0); e("s_barrier"); ld(1); e("s_waitcnt vmcnt(12)"); e("s_barrier"); ld(2)
        for kb in range(8):
            e(f"s_waitcnt vmcnt({(15 if kb in (2, 3) else 12) if kb + 2 <= 9 else 0})")
            e("s_barrier")
            if kb + 3 <= 9: ld(kb + 3)
            if kb == 1:
                e("buffer_load_dwordx4 v[4:7], v1, s[52:55], s3 offen")
                e("buffer_load_dwordx4 v[8:11], v1, s[52:55], s44 offen")
                e("buffer_load_dwordx4 v[20:23], v1, s[48:51], s3 offen")
        e("s_waitcnt vmcnt(0)")
        e("s_branch K1_HD")
        e.label("K1_HC")
    srd(e, 32, 12, 1966080)
    srd(e, 36, 14, 1966080)
    srd(e, 40, 6, 819200)
    e("s_barrier")
    e("buffer_load_dwordx4 v[4:7], v1, s[24:27], s3 offen")
    e("buffer_load_dwordx4 v[4:7], v1, s[32:35], s3 offen")
    e("buffer_load_dwordx4 v[4:7], v1, s[36:39], s3 offen")
    e("buffer_load_dwordx4 v[4:7], v1, s[24:27], s44 offen")
    e("buffer_load_dwordx4 v[4:7], v1, s[24:27], s45 offen")
    e("buffer_load_dwordx4 v[4:7], v1, s[40:43], s3 offen")
    e("buffer_load_dwordx4 v[4:7], v1, s[32:35], s44 offen")
    e("buffer_load_dwordx4 v[4:7], v1, s[36:39], s44 offen")
    for i in range(6): e("s_barrier")
    e("buffer_load_dwordx4 v[4:7], v1, s[52:55], s3 offen")
    e("buffer_load_dwordx4 v[8:11], v1, s[52:55], s44 offen")
    e("buffer_load_dwordx4 v[12:15], v1, s[48:51], s3 offen")
    for i in range(3): e("s_barrier")
    e.label("K1_HD")
    e("s_cmp_lg_u32 s20, 0")
    e("s_cbranch_scc1 K1_T5")
    e.label("K1_T4")
    e("buffer_load_dword v3, v2, s[68:71], 0 offen sc1")
    e("s_waitcnt vmcnt(0)")
    e("v_readfirstlane_b32 s46, v3")
    e("s_cmp_eq_u32 s46, 0")
    e("s_cbranch_scc1 K1_T4")
    e(f"v_mov_b32 v2, {CNT}")
    e("ds_write_b32 v2, v3 offset:8")
    e("s_waitcnt lgkmcnt(0)")
    e.label("K1_T5")
    for i in range(2): e("s_barrier")
    e.label("P1_DONE")
    e("s_waitcnt vmcnt(0)")
    e("s_barrier")
    e("s_lshl_b32 s76, s22, 4")
    e("s_add_u32 s76, s76, s23")
    return name, 168, 147456, 256, 768
```

```python
from common import *
from k23 import CNT
import math
QSCALE = math.log2(math.e) / math.sqrt(20.0)
import struct
def f2u(f): return struct.unpack('<I', struct.pack('<f', f))[0]

def gen_k1(e):
    name = "gated_mix__grouped_kv_mqa__glu_gated_reglu__prompt_kernel"
    kernel_head(e, name)
    e("s_cmp_ge_u32 s2, 256")
    e("s_cbranch_scc1 K2_END")
    e("s_load_dwordx4 s[4:7], s[0:1], 0")
    e("s_load_dwordx4 s[8:11], s[0:1], 16")
    e("s_load_dwordx4 s[12:15], s[0:1], 48")
    e("s_load_dwordx2 s[16:17], s[0:1], 72")
    e("s_load_dwordx2 s[18:19], s[0:1], 96")
    e("s_load_dwordx2 s[60:61], s[0:1], 32")
    e("s_load_dwordx2 s[62:63], s[0:1], 64")
    e("s_load_dwordx2 s[64:65], s[0:1], 88")
    e("v_lshrrev_b32 v1, 6, v0")
    e("v_and_b32 v0, 63, v0")
    e("s_nop 0")
    e("v_readfirstlane_b32 s20, v1")
    e("s_nop 3")
    e("s_mov_b32 s79, s20")
    e("s_and_b32 s3, s2, 7")
    e("s_lshr_b32 s21, s2, 3")
    e("s_and_b32 s22, s3, 1")
    e("s_lshl_b32 s22, s22, 3")
    e("s_and_b32 s23, s21, 7")
    e("s_add_u32 s22, s22, s23")
    e("s_lshr_b32 s23, s3, 1")
    e("s_lshl_b32 s23, s23, 2")
    e("s_lshr_b32 s21, s21, 3")
    e("s_add_u32 s23, s23, s21")
    e("s_waitcnt lgkmcnt(0)")
    srd(e, 24, 4, 2621440)
    srd(e, 28, 18, WS_END)
    stamp(e, 0)
    e("s_cmp_eq_u32 s23, 15")
    e("s_cbranch_scc1 K1_ROLE_C")
    e("s_cmp_ge_u32 s23, 12")
    e("s_cbranch_scc1 K1_SETUP_B")
    e("s_lshl_b32 s21, s23, 8")
    e("s_sub_u32 s3, 1966080, s21")
    srd(e, 32, 12, "s3", add="s21")
    srd(e, 36, 14, "s3", add="s21")
    e("s_mov_b32 s40, 3072")
    e("s_branch K1_GEMM")
    e.label("K1_SETUP_B")
    e("s_sub_u32 s21, s23, 12")
    e("s_lshl_b32 s21, s21, 9")
    e("s_sub_u32 s3, 819200, s21")
    srd(e, 32, 6, "s3", add="s21")
    e("s_add_u32 s21, s21, 256")
    e("s_sub_u32 s3, 819200, s21")
    srd(e, 36, 6, "s3", add="s21")
    e("s_mov_b32 s40, 1280")
    e.label("K1_GEMM")
    e("s_mov_b32 s56, 1")
    e("s_cmp_ge_u32 s20, 8")
    e("s_cbranch_scc1 K1_HELP")
    e("s_lshl_b32 s41, s40, 2")
    e("s_lshl_b32 s44, s40, 6")
    e("s_lshl_b32 s45, s40, 3")
    e("s_mul_i32 s45, s45, s20")
    e("s_mul_i32 s46, s22, 163840")
    e("s_lshl_b32 s47, s20, 10")
    e("s_lshl_b32 s48, s20, 11")
    e("s_add_u32 s48, s48, 16384")
    e("s_lshr_b32 s49, s20, 2")
    e("s_and_b32 s50, s20, 3")
    e("s_and_b32 s51, s20, 1")
    e("v_lshrrev_b32 v3, 3, v0")
    e("s_lshl_b32 s3, s20, 3")
    e("v_add_u32 v3, s3, v3")
    e("v_mul_u32_u24 v3, 0x500, v3")
    e("v_lshrrev_b32 v4, 4, v0")
    e("s_lshl_b32 s3, s51, 2")
    e("v_add_u32 v4, s3, v4")
    e("v_and_b32 v4, 7, v4")
    e("v_and_b32 v5, 7, v0")
    e("v_xor_b32 v4, v4, v5")
    e("v_lshl_add_u32 v2, v4, 4, v3")
    e("v_lshrrev_b32 v4, 4, v0")
    e("v_mul_lo_u32 v3, v4, s40")
    e("v_lshlrev_b32 v4, 2, v4")
    e("v_and_b32 v5, 15, v0")
    e("v_xor_b32 v4, v4, v5")
    e("v_lshl_add_u32 v1, v4, 4, v3")
    e("s_mov_b32 s52, 0")
    def dma():
        g = []
        if os.environ.get("LOADER"): return g
        for m in range(2):
            g.append([f"s_add_u32 s53, s52, s47",
                      f"s_add_u32 m0, s53, {m*8192}",
                      f"s_add_u32 s3, s46, {m*81920}",
                      f"buffer_load_dwordx4 v2, s[24:27], s3 offen lds"])
        for ee in range(2):
            for u in range(2):
                g.append([f"s_add_u32 s53, s52, s48",
                          f"s_add_u32 m0, s53, {u*16384 + ee*1024}",
                          (f"s_add_u32 s3, s45, s41" if ee else "s_mov_b32 s3, s45"),
                          f"buffer_load_dwordx4 v1, s[{32+4*u}:{35+4*u}], s3 offen lds"])
        if g: g[-1] += ["s_add_u32 s45, s45, s44", "s_add_u32 s46, s46, 128",
                  "s_add_u32 s52, s52, 49152", "s_cmp_ge_u32 s52, 147456", "s_cselect_b32 s3, 147456, 0", "s_sub_u32 s52, s52, s3"]
        return g
    for st in range(2):
        for grp in dma():
            for ins in grp: e(ins)
        if st < 1 and not os.environ.get("LOADER"): e("s_barrier")
    if os.environ.get("LOADER"):
        e("v_lshrrev_b32 v3, 3, v0"); e("v_mul_u32_u24 v3, 0x500, v3"); e("v_and_b32 v4, 7, v0"); e("v_lshl_add_u32 v3, v4, 4, v3")
        e("s_and_b32 s3, s23, 3"); e("s_lshl_b32 s3, s3, 5"); e("s_lshl_b32 s53, s50, 3"); e("s_add_u32 s3, s3, s53")
        e("s_mul_i32 s3, s3, 1280"); e("s_add_u32 s3, s3, s46"); e("s_lshl_b32 s53, s49, 7"); e("s_add_u32 s3, s3, s53")
        e("v_lshrrev_b32 v4, 4, v0"); e("v_mul_lo_u32 v4, v4, s40"); e("v_and_b32 v5, 15, v0"); e("v_lshl_add_u32 v4, v5, 4, v4")
        e("s_and_b32 s53, s22, 7"); e("s_lshl_b32 s53, s53, 3"); e("s_lshl_b32 s55, s51, 2"); e("s_add_u32 s53, s53, s55")
        e("s_lshl_b32 s55, s49, 6"); e("s_add_u32 s53, s53, s55"); e("s_mul_i32 s53, s53, s40")
        e("s_lshl_b32 s55, s40, 7")
        e("s_bitcmp1_b32 s20, 1")
        for r in range(4): e(f"s_cselect_b32 s{72+r}, s{36+r}, s{32+r}")
        for j in range(0 if os.environ.get('NOPF') else 5):
            e(f"buffer_load_dwordx4 v[160:163], v3, s[24:27], s3 offen offset:{j*256}")
            e(f"buffer_load_dwordx4 v[164:167], v4, s[72:75], s53 offen")
            e("s_add_u32 s53, s53, s55")
        e("s_barrier")
    e("v_and_b32 v3, 31, v0")
    e("s_lshl_b32 s3, s49, 6")
    e("v_add_u32 v3, s3, v3")
    e("v_lshrrev_b32 v4, 1, v3")
    e("v_and_b32 v4, 7, v4")
    e("v_lshrrev_b32 v5, 5, v0")
    e("v_lshlrev_b32 v3, 7, v3")
    for ks in range(4):
        e(f"v_or_b32 v24, {ks*2}, v5")
        e("v_xor_b32 v24, v24, v4")
        e(f"v_lshl_add_u32 v{6+ks}, v24, 4, v3")
        e(f"v_mov_b32 v{11+ks}, v{6+ks}")
    e("v_bfe_u32 v3, v0, 2, 2")
    e("v_lshl_add_u32 v4, v5, 3, v3")
    e("v_lshlrev_b32 v4, 8, v4")
    e("v_bfe_u32 v24, v0, 4, 1")
    e("v_lshl_add_u32 v4, v24, 5, v4")
    e("v_and_b32 v24, 3, v0")
    e("v_lshl_add_u32 v4, v24, 3, v4")
    e("v_xor_b32 v24, s50, v3")
    e("v_lshl_add_u32 v10, v24, 6, v4")
    e("v_mov_b32 v15, v10")
    e("v_add_u32 v16, 49152, v6")
    e("v_add_u32 v17, 49152, v10")
    e("s_mov_b32 s54, 49152")
    ACC = lambda u, rt: 96 + (u*2+rt)*16
    XF = lambda p, rt: 32 + p*16 + rt*4
    WF = lambda p, u: 32 + p*16 + 8 + u*4
    for i in range(64): e(f"v_mov_b32 v{96+i}, 0")
    def reads(ks, nxt=False):
        p = ks & 1
        vx = 16 if nxt else 11 + ks
        vw = 17 if nxt else 15
        g = []
        for rt in range(2):
            g.append([f"ds_read_b128 {vr(XF(p,rt),4)}, v{vx} offset:{rt*4096}"])
        for u in range(2):
            for uu in range(2):
                g.append([f"ds_read_b64_tr_b16 {vr(WF(p,u)+uu*2,2)}, v{vw} offset:{16384+u*16384+(ks*16+uu*4)*256}"])
        return g
    stamp(e, 1)
    if not os.environ.get("LOADER"): e("s_waitcnt vmcnt(6)")
    e("s_barrier")
    stamp(e, 2)
    for grp in reads(0):
        for ins in grp: e(ins)
    for grp in dma():
        for ins in grp: e(ins)
    def stage(with_dma, first_dma_part):
        d = dma() if with_dma else []
        for ks in range(4):
            p = ks & 1
            if ks == 3:
                e(f"s_waitcnt vmcnt({6 if with_dma else 0}) lgkmcnt(0)" if not os.environ.get("LOADER") else "s_waitcnt lgkmcnt(0)")
                e("s_barrier")
                others = reads(0, nxt=True)
                others += d[0:2]
            else:
                e("s_waitcnt lgkmcnt(0)")
                others = reads(ks+1)
            mf = []
            for rt in range(2):
                for u in range(2):
                    a = ACC(u, rt)
                    mf.append(f"v_mfma_f32_32x32x16_bf16 {vr(a,16)}, {vr(WF(p,u),4)}, {vr(XF(p,rt),4)}, {vr(a,16)}")
            interleave(e, mf, others)
            if ks == 3:
                for grp in d[2:]:
                    for ins in grp: e(ins)
        for ks in range(4):
            e(f"v_add_u32 v{11+ks}, s54, v{6+ks}")
        e("v_mov_b32 v15, v17")
        e("s_add_u32 s54, s54, 49152"); e("s_cmp_ge_u32 s54, 147456"); e("s_cselect_b32 s3, 147456, 0"); e("s_sub_u32 s54, s54, s3")
        e("v_add_u32 v16, s54, v6")
        e("v_add_u32 v17, s54, v10")
    e("s_mov_b32 s55, 0")
    e.l.append(".p2align 6")
    e.label("K1_L1")
    stage(True, 0)
    e("s_add_u32 s55, s55, 1")
    e("s_cmp_lt_u32 s55, 7")
    e("s_cbranch_scc1 K1_L1")
    e.label("K1_L2")
    stage(False, 0)
    e("s_add_u32 s55, s55, 1")
    e("s_cmp_lt_u32 s55, 10")
    e("s_cbranch_scc1 K1_L2")
    stamp(e, 3)
    e("s_nop 15")
    e("s_cmp_ge_u32 s23, 12")
    e("s_cbranch_scc1 K1_EPI_B")
    e("s_lshl_b32 s3, s22, 2")
    e("s_lshl_b32 s21, s49, 1")
    e("s_add_u32 s3, s3, s21")
    e("s_mul_i32 s3, s3, 96")
    e("s_lshl_b32 s21, s23, 3")
    e("s_add_u32 s3, s3, s21")
    e("s_lshl_b32 s21, s50, 1")
    e("s_add_u32 s3, s3, s21")
    e("s_lshl_b32 s3, s3, 10")
    e(f"s_add_u32 s3, s3, {HBUF}")
    e(f"s_add_u32 s21, s3, {96*1024}")
    e("v_lshlrev_b32 v1, 4, v0")
    for rt in range(2):
        g = ACC(0, rt); u_ = ACC(1, rt)
        for i in range(16):
            e(f"v_max_f32 v{g+i}, 0, v{g+i}")
            e(f"v_mul_f32 v{g+i}, v{g+i}, v{u_+i}")
        d = 64 + rt*8
        for i in range(8):
            e(f"v_cvt_pk_bf16_f32 v{d+i}, v{g+2*i}, v{g+2*i+1}")
        for t in range(2):
            e(f"buffer_store_dwordx4 {vr(d+4*t,4)}, v1, s[28:31], {'s3' if rt==0 else 's21'} offen offset:{t*1024} sc1")
    stamp(e, 4)
    stamp_flush(e, 5, 0, "s20", 2)
    e("s_mov_b64 exec, -1")
    e("s_branch P1_DONE")
    e.label("K1_EPI_B")
    e("s_sub_u32 s3, s23, 12")
    e("s_lshl_b32 s3, s3, 6")
    e("s_lshl_b32 s21, s50, 3")
    e("s_add_u32 s3, s3, s21")
    e("s_lshl_b32 s3, s3, 14")
    e("s_lshl_b32 s21, s22, 7")
    e("s_lshl_b32 s51, s49, 6")
    e("s_add_u32 s21, s21, s51")
    e("s_lshl_b32 s21, s21, 3")
    e("s_add_u32 s3, s3, s21")
    e("v_and_b32 v1, 31, v0")
    e("v_lshlrev_b32 v1, 3, v1")
    e("v_lshrrev_b32 v2, 5, v0")
    e("v_lshl_add_u32 v1, v2, 14, v1")
    e(f"s_mov_b32 s51, 0x{f2u(QSCALE):08x}")
    for u in range(2):
        if u == 1:
            e("s_cmp_eq_u32 s23, 14")
            e("s_cbranch_scc1 P1_DONE")
        for rt in range(2):
            a = ACC(u, rt)
            for i in range(16):
                e(f"v_mul_f32 v{a+i}, s51, v{a+i}")
            d = 64 + (u*2+rt)*8
            for i in range(8):
                e(f"v_cvt_pk_bf16_f32 v{d+i}, v{a+2*i}, v{a+2*i+1}")
            for g in range(4):
                e(f"s_add_u32 s21, s3, {(u*32+2*g)*16384}")
                e(f"buffer_store_dwordx2 {vr(d+2*g,2)}, v1, s[28:31], s21 offen offset:{rt*256} sc1")
    e("s_branch P1_DONE")

    e.label("K1_ROLE_C")
    e("s_mov_b32 s56, 0")
    e("s_cmp_ge_u32 s20, 8")
    e("s_cbranch_scc1 K1_HELP")
    srd(e, 32, 8, 25600)
    srd(e, 36, 10, 25600)
    srd(e, 40, 16, 1280)
    e("s_and_b32 s3, s20, 3")
    e("s_lshl_b32 s21, s22, 2")
    e("s_add_u32 s21, s21, s3")
    e("s_lshl_b32 s44, s20, 6")
    e("v_add_u32 v3, s44, v0")
    e("v_lshlrev_b32 v4, 2, v3")
    for i in range(13):
        e(f"buffer_load_dword v{8+i}, v4, s[32:35], 0 offen offset:{(i%2)*2048}")
        e(f"buffer_load_dword v{33+i}, v4, s[36:39], 0 offen offset:{(i%2)*2048}")
        if i % 2 == 1: e("v_add_u32 v4, 4096, v4")
    e("v_lshlrev_b32 v4, 1, v3")
    for i in range(2):
        e(f"buffer_load_ushort v{58+i}, v4, s[40:43], 0 offen offset:{i*1024}")
    e("s_and_b32 s51, s20, 1")
    e("v_lshrrev_b32 v5, 3, v0")
    e("s_lshl_b32 s3, s20, 3")
    e("v_add_u32 v5, s3, v5")
    e("v_mul_u32_u24 v5, 0x500, v5")
    e("v_lshrrev_b32 v6, 4, v0")
    e("s_lshl_b32 s3, s51, 2")
    e("v_add_u32 v6, s3, v6")
    e("v_and_b32 v6, 7, v6")
    e("v_and_b32 v7, 7, v0")
    e("v_xor_b32 v6, v6, v7")
    e("v_lshl_add_u32 v62, v6, 4, v5")
    e("s_mul_i32 s46, s22, 163840")
    e("s_lshl_b32 s47, s20, 10")
    def cdma(kb):
        for m in range(2):
            e(f"s_add_u32 m0, s47, {81920 + (kb%4)*16384 + m*8192}")
            e(f"s_add_u32 s3, s46, {m*81920 + kb*128}")
            e("buffer_load_dwordx4 v62, s[24:27], s3 offen lds")
    for kb in range(3): cdma(kb)
    e("v_mov_b32 v144, 0"); e("v_mov_b32 v145, 0"); e("v_mov_b32 v146, 0"); e("v_mov_b32 v147, 0")
    e("v_lshlrev_b32 v4, 4, v3")
    for i in range(8):
        e(f"ds_write_b128 v4, v[144:147] offset:{i*8192}")
    e("v_add_u32 v5, 65536, v4")
    for i in range(2):
        e(f"ds_write_b128 v5, v[144:147] offset:{i*8192}")
    e("s_waitcnt lgkmcnt(0)")
    e("s_barrier")
    e("s_mov_b32 s3, 0xCCCCCCCD")
    e("s_waitcnt vmcnt(6)")
    for i in range(13):
        e(f"v_add_u32 v4, {512*i}, v3")
        e("v_mul_hi_u32 v5, v4, s3")
        e("v_lshrrev_b32 v5, 3, v5")
        e("v_mul_u32_u24 v6, 10, v5")
        e("v_sub_u32 v6, v4, v6")
        e("v_lshlrev_b32 v5, 6, v5")
        e("v_lshl_add_u32 v5, v6, 2, v5")
        if i == 12:
            e("v_cmp_gt_u32 vcc, 256, v3")
            e("s_and_saveexec_b64 s[44:45], vcc")
        e(f"ds_write_b32 v5, v{8+i}")
        e(f"ds_write_b32 v5, v{33+i} offset:40960")
        if i == 12:
            e("s_mov_b64 exec, s[44:45]")
    e("v_lshlrev_b32 v4, 6, v3")
    e("ds_write_b16 v4, v58 offset:44")
    e("v_cmp_gt_u32 vcc, 128, v3")
    e("s_and_saveexec_b64 s[44:45], vcc")
    e(f"ds_write_b16 v4, v59 offset:{44+32768}")
    e("s_mov_b64 exec, s[44:45]")
    e("s_waitcnt lgkmcnt(0)")
    e("s_barrier")
    e("v_bfe_u32 v3, v0, 2, 2")
    e("v_lshrrev_b32 v5, 5, v0")
    e("v_lshl_add_u32 v4, v5, 3, v3")
    e("v_lshlrev_b32 v4, 6, v4")
    e("v_bfe_u32 v6, v0, 4, 1")
    e("v_lshl_add_u32 v4, v6, 5, v4")
    e("v_and_b32 v6, 3, v0")
    e("v_lshl_add_u32 v4, v6, 3, v4")
    e(f"s_mul_i32 s48, s21, {KV_TILE}")
    e(f"s_add_u32 s48, s48, {KVBUF}")
    e("v_lshlrev_b32 v1, 4, v0")
    e("v_lshlrev_b32 v2, 3, v0")
    e("v_mov_b32 v60, 0x3f803f80")
    e("v_mov_b32 v61, 0")
    KA = 144
    e("v_and_b32 v5, 31, v0")
    e("s_and_b32 s44, s20, 3")
    e("s_lshl_b32 s44, s44, 5")
    e("v_add_u32 v5, s44, v5")
    e("v_lshrrev_b32 v6, 1, v5")
    e("v_and_b32 v6, 7, v6")
    e("v_lshrrev_b32 v7, 5, v0")
    e("v_lshlrev_b32 v5, 7, v5")
    e("v_add_u32 v5, 81920, v5")
    for ks in range(4):
        e(f"v_or_b32 v24, {ks*2}, v7")
        e("v_xor_b32 v24, v24, v6")
        e(f"v_lshl_add_u32 v{64+ks}, v24, 4, v5")
    e("s_cmp_ge_u32 s20, 4")
    e("s_cbranch_scc1 K1_C_V")
    def body(isV):
        for kb in range(10):
            e(f"s_waitcnt vmcnt({2*min(2, 9-kb)})")
            e("s_barrier")
            if kb + 3 < 10: cdma(kb+3)
            for ks in range(4):
                k = kb*4 + ks
                e(f"ds_read_b128 {vr(72+ks*4,4)}, v{64+ks} offset:{(kb%4)*16384}")
                e(f"ds_read_b64_tr_b16 {vr(8+ks*4,2)}, v4 offset:{k*1024}")
                e(f"ds_read_b64_tr_b16 {vr(10+ks*4,2)}, v4 offset:{k*1024+256}")
            for ks in range(4):
                e(f"s_waitcnt lgkmcnt({9-3*ks})")
                ck = "0" if (kb == 0 and ks == 0) else vr(KA, 16)
                if isV: e(f"v_mfma_f32_32x32x16_bf16 {vr(KA,16)}, {vr(72+ks*4,4)}, {vr(8+ks*4,4)}, {ck}")
                else:   e(f"v_mfma_f32_32x32x16_bf16 {vr(KA,16)}, {vr(8+ks*4,4)}, {vr(72+ks*4,4)}, {ck}")
        e("s_nop 15")
    body(False)
    for i in range(6):
        e(f"v_cvt_pk_bf16_f32 v{8+i}, v{KA+2*i}, v{KA+2*i+1}")
    e(f"v_mul_f32 v20, 0xbfb8aa3b, v{KA+10}")
    e("v_exp_f32 v20, v20")
    e("s_nop 0")
    e("v_add_f32 v20, 1.0, v20")
    e("v_rcp_f32 v20, v20")
    e("v_cmp_le_u32 vcc, 32, v0")
    e("s_nop 1")
    e("v_cndmask_b32 v12, v12, v60, vcc")
    e("v_cndmask_b32 v13, v13, v61, vcc")
    e("buffer_store_dwordx4 v[8:11], v1, s[28:31], s48 offen sc1")
    e("buffer_store_dwordx2 v[12:13], v2, s[28:31], s48 offen offset:1024 sc1")
    e("s_lshl_b32 s44, s21, 7")
    e(f"s_add_u32 s44, s44, {GBUF - 128}")
    e("v_lshlrev_b32 v23, 2, v0")
    e("s_and_saveexec_b64 s[46:47], vcc")
    e("buffer_store_dword v20, v23, s[28:31], s44 offen sc1")
    e("s_mov_b64 exec, -1")
    e("s_branch P1_DONE")
    e.label("K1_C_V")
    e("v_add_u32 v4, 40960, v4")
    body(True)
    e("v_and_b32 v23, 31, v0")
    e("v_cmp_eq_u32 vcc, 20, v23")
    for i in range(8):
        e(f"v_cvt_pk_bf16_f32 v{24+i}, v{KA+2*i}, v{KA+2*i+1}")
    for i in range(8):
        e(f"v_cndmask_b32 v{24+i}, v{24+i}, v60, vcc")
    e("buffer_store_dwordx4 v[24:27], v1, s[28:31], s48 offen offset:1536 sc1")
    e("buffer_store_dwordx4 v[28:31], v1, s[28:31], s48 offen offset:2560 sc1")
    stamp(e, 4)
    stamp_flush(e, 5, 0, "s20", 2)
    e("s_mov_b64 exec, -1")
    e("s_branch P1_DONE")
    e.label("K1_HELP")
    e("s_sub_u32 s20, s20, 8")
    srd(e, 48, 60, 819200)
    srd(e, 52, 62, 1966080)
    e("s_lshl_b32 s3, s2, 2")
    e("s_add_u32 s3, s3, s20")
    e("s_lshl_b32 s3, s3, 10")
    e("s_add_u32 s44, s3, 0x100000")
    e("s_add_u32 s45, s3, 0x200000")
    e("v_lshlrev_b32 v1, 4, v0")
    srd(e, 68, 64, 256)
    e("v_mov_b32 v2, 0")
    e("s_or_b32 s46, s2, s20")
    e("s_cmp_lg_u32 s46, 0")
    e("s_cbranch_scc1 K1_T0")
    e("s_memrealtime s[46:47]")
    e("s_waitcnt lgkmcnt(0)")
    e("s_or_b32 s46, s46, 1")
    e("v_mov_b32 v3, s46")
    e("s_mov_b64 exec, 1")
    e("buffer_store_dword v3, v2, s[68:71], 0 offen sc1")
    e("s_mov_b64 exec, -1")
    e.label("K1_T0")
    if os.environ.get("LOADER"):
        e("s_cmp_eq_u32 s56, 0")
        e("s_cbranch_scc1 K1_HC")
        e("s_lshl_b32 s41, s40, 2"); e("s_lshl_b32 s42, s40, 3"); e("s_add_u32 s43, s41, s42")
        e("s_lshl_b32 s58, s40, 6")
        e("s_lshl_b32 s59, s40, 4"); e("s_mul_i32 s59, s59, s20")
        e("s_mul_i32 s46, s22, 163840")
        e("s_lshl_b32 s47, s20, 10"); e("s_lshl_b32 s72, s20, 12"); e("s_add_u32 s72, s72, 16384")
        e("s_and_b32 s73, s20, 1")
        e("v_lshrrev_b32 v13, 3, v0"); e("s_lshl_b32 s74, s20, 3"); e("v_add_u32 v13, s74, v13"); e("v_mul_u32_u24 v13, 0x500, v13")
        e("v_lshrrev_b32 v14, 4, v0"); e("s_lshl_b32 s74, s73, 2"); e("v_add_u32 v14, s74, v14"); e("v_and_b32 v14, 7, v14")
        e("v_and_b32 v15, 7, v0"); e("v_xor_b32 v14, v14, v15"); e("v_lshl_add_u32 v16, v14, 4, v13")
        e("v_lshrrev_b32 v14, 4, v0"); e("v_mul_lo_u32 v13, v14, s40"); e("v_lshlrev_b32 v14, 2, v14")
        e("v_and_b32 v15, 15, v0"); e("v_xor_b32 v14, v14, v15"); e("v_lshl_add_u32 v17, v14, 4, v13")
        def ld(kb):
            base = (kb % 3) * 49152
            for m in range(4):
                e(f"s_add_u32 m0, s47, {base + m*4096}")
                e(f"s_add_u32 s74, s46, {m*40960 + kb*128}")
                e("buffer_load_dwordx4 v16, s[24:27], s74 offen lds")
            for ee in range(4):
                for u in range(2):
                    e(f"s_add_u32 m0, s72, {base + u*16384 + ee*1024}")
                    e(f"s_add_u32 s74, s59, s{40+ee}" if ee else "s_mov_b32 s74, s59")
                    e(f"buffer_load_dwordx4 v17, s[{32+4*u}:{35+4*u}], s74 offen lds")
            e("s_add_u32 s59, s59, s58")
        e("s_barrier"); ld(0); ld(1); e("s_waitcnt vmcnt(12)"); e("s_barrier"); ld(2)
        for kb in range(8):
            e(f"s_waitcnt vmcnt({(15 if kb in (2, 3) else 12) if kb + 2 <= 9 else 0})")
            e("s_barrier")
            if kb + 3 <= 9: ld(kb + 3)
            if kb == 1:
                e("buffer_load_dwordx4 v[4:7], v1, s[52:55], s3 offen")
                e("buffer_load_dwordx4 v[8:11], v1, s[52:55], s44 offen")
                e("buffer_load_dwordx4 v[20:23], v1, s[48:51], s3 offen")
        e("s_waitcnt vmcnt(0)")
        e("s_branch K1_HD")
        e.label("K1_HC")
    srd(e, 32, 12, 1966080)
    srd(e, 36, 14, 1966080)
    srd(e, 40, 6, 819200)
    e("s_barrier")
    e("buffer_load_dwordx4 v[4:7], v1, s[24:27], s3 offen")
    e("buffer_load_dwordx4 v[4:7], v1, s[32:35], s3 offen")
    e("buffer_load_dwordx4 v[4:7], v1, s[36:39], s3 offen")
    e("buffer_load_dwordx4 v[4:7], v1, s[24:27], s44 offen")
    e("buffer_load_dwordx4 v[4:7], v1, s[24:27], s45 offen")
    e("buffer_load_dwordx4 v[4:7], v1, s[40:43], s3 offen")
    e("buffer_load_dwordx4 v[4:7], v1, s[32:35], s44 offen")
    e("buffer_load_dwordx4 v[4:7], v1, s[36:39], s44 offen")
    for i in range(6): e("s_barrier")
    e("buffer_load_dwordx4 v[4:7], v1, s[52:55], s3 offen")
    e("buffer_load_dwordx4 v[8:11], v1, s[52:55], s44 offen")
    e("buffer_load_dwordx4 v[12:15], v1, s[48:51], s3 offen")
    for i in range(3): e("s_barrier")
    e.label("K1_HD")
    e("s_cmp_lg_u32 s20, 0")
    e("s_cbranch_scc1 K1_T5")
    e.label("K1_T4")
    e("buffer_load_dword v3, v2, s[68:71], 0 offen sc1")
    e("s_waitcnt vmcnt(0)")
    e("v_readfirstlane_b32 s46, v3")
    e("s_cmp_eq_u32 s46, 0")
    e("s_cbranch_scc1 K1_T4")
    e(f"v_mov_b32 v2, {CNT}")
    e("ds_write_b32 v2, v3 offset:8")
    e("s_waitcnt lgkmcnt(0)")
    e.label("K1_T5")
    for i in range(2): e("s_barrier")
    e.label("P1_DONE")
    e("s_waitcnt vmcnt(0)")
    e("s_barrier")
    e("s_lshl_b32 s76, s22, 4")
    e("s_add_u32 s76, s76, s23")
    return name, 168, 147456, 256, 768
```

```python
from common import *
from k23 import CNT
import math
QSCALE = math.log2(math.e) / math.sqrt(20.0)
import struct
def f2u(f): return struct.unpack('<I', struct.pack('<f', f))[0]

def gen_k1(e):
    name = "gated_mix__grouped_kv_mqa__glu_gated_reglu__prompt_kernel"
    kernel_head(e, name)
    e("s_cmp_ge_u32 s2, 256")
    e("s_cbranch_scc1 K2_END")
    e("s_load_dwordx4 s[4:7], s[0:1], 0")
    e("s_load_dwordx4 s[8:11], s[0:1], 16")
    e("s_load_dwordx4 s[12:15], s[0:1], 48")
    e("s_load_dwordx2 s[16:17], s[0:1], 72")
    e("s_load_dwordx2 s[18:19], s[0:1], 96")
    e("s_load_dwordx2 s[60:61], s[0:1], 32")
    e("s_load_dwordx2 s[62:63], s[0:1], 64")
    e("s_load_dwordx2 s[64:65], s[0:1], 88")
    e("v_lshrrev_b32 v1, 6, v0")
    e("v_and_b32 v0, 63, v0")
    e("s_nop 0")
    e("v_readfirstlane_b32 s20, v1")
    e("s_nop 3")
    e("s_mov_b32 s79, s20")
    e("s_and_b32 s3, s2, 7")
    e("s_lshr_b32 s21, s2, 3")
    e("s_and_b32 s22, s3, 1")
    e("s_lshl_b32 s22, s22, 3")
    e("s_and_b32 s23, s21, 7")
    e("s_add_u32 s22, s22, s23")
    e("s_lshr_b32 s23, s3, 1")
    e("s_lshl_b32 s23, s23, 2")
    e("s_lshr_b32 s21, s21, 3")
    e("s_add_u32 s23, s23, s21")
    e("s_waitcnt lgkmcnt(0)")
    srd(e, 24, 4, 2621440)
    srd(e, 28, 18, WS_END)
    stamp(e, 0)
    e("s_cmp_eq_u32 s23, 15")
    e("s_cbranch_scc1 K1_ROLE_C")
    e("s_cmp_ge_u32 s23, 12")
    e("s_cbranch_scc1 K1_SETUP_B")
    e("s_lshl_b32 s21, s23, 8")
    e("s_sub_u32 s3, 1966080, s21")
    srd(e, 32, 12, "s3", add="s21")
    srd(e, 36, 14, "s3", add="s21")
    e("s_mov_b32 s40, 3072")
    e("s_branch K1_GEMM")
    e.label("K1_SETUP_B")
    e("s_sub_u32 s21, s23, 12")
    e("s_lshl_b32 s21, s21, 9")
    e("s_sub_u32 s3, 819200, s21")
    srd(e, 32, 6, "s3", add="s21")
    e("s_add_u32 s21, s21, 256")
    e("s_sub_u32 s3, 819200, s21")
    srd(e, 36, 6, "s3", add="s21")
    e("s_mov_b32 s40, 1280")
    e.label("K1_GEMM")
    e("s_mov_b32 s56, 1")
    e("s_cmp_ge_u32 s20, 8")
    e("s_cbranch_scc1 K1_HELP")
    e("s_lshl_b32 s41, s40, 2")
    e("s_lshl_b32 s44, s40, 6")
    e("s_lshl_b32 s45, s40, 3")
    e("s_mul_i32 s45, s45, s20")
    e("s_mul_i32 s46, s22, 163840")
    e("s_lshl_b32 s47, s20, 10")
    e("s_lshl_b32 s48, s20, 11")
    e("s_add_u32 s48, s48, 16384")
    e("s_lshr_b32 s49, s20, 2")
    e("s_and_b32 s50, s20, 3")
    e("s_and_b32 s51, s20, 1")
    e("v_lshrrev_b32 v3, 3, v0")
    e("s_lshl_b32 s3, s20, 3")
    e("v_add_u32 v3, s3, v3")
    e("v_mul_u32_u24 v3, 0x500, v3")
    e("v_lshrrev_b32 v4, 4, v0")
    e("s_lshl_b32 s3, s51, 2")
    e("v_add_u32 v4, s3, v4")
    e("v_and_b32 v4, 7, v4")
    e("v_and_b32 v5, 7, v0")
    e("v_xor_b32 v4, v4, v5")
    e("v_lshl_add_u32 v2, v4, 4, v3")
    e("v_lshrrev_b32 v4, 4, v0")
    e("v_mul_lo_u32 v3, v4, s40")
    e("v_lshlrev_b32 v4, 2, v4")
    e("v_and_b32 v5, 15, v0")
    e("v_xor_b32 v4, v4, v5")
    e("v_lshl_add_u32 v1, v4, 4, v3")
    e("s_mov_b32 s52, 0")
    def dma():
        g = []
        if os.environ.get("LOADER"): return g
        for m in range(2):
            g.append([f"s_add_u32 s53, s52, s47",
                      f"s_add_u32 m0, s53, {m*8192}",
                      f"s_add_u32 s3, s46, {m*81920}",
                      f"buffer_load_dwordx4 v2, s[24:27], s3 offen lds"])
        for ee in range(2):
            for u in range(2):
                g.append([f"s_add_u32 s53, s52, s48",
                          f"s_add_u32 m0, s53, {u*16384 + ee*1024}",
                          (f"s_add_u32 s3, s45, s41" if ee else "s_mov_b32 s3, s45"),
                          f"buffer_load_dwordx4 v1, s[{32+4*u}:{35+4*u}], s3 offen lds"])
        if g: g[-1] += ["s_add_u32 s45, s45, s44", "s_add_u32 s46, s46, 128",
                  "s_add_u32 s52, s52, 49152", "s_cmp_ge_u32 s52, 147456", "s_cselect_b32 s3, 147456, 0", "s_sub_u32 s52, s52, s3"]
        return g
    for st in range(2):
        for grp in dma():
            for ins in grp: e(ins)
        if st < 1 and not os.environ.get("LOADER"): e("s_barrier")
    if os.environ.get("LOADER"):
        e("v_lshrrev_b32 v3, 3, v0"); e("v_mul_u32_u24 v3, 0x500, v3"); e("v_and_b32 v4, 7, v0"); e("v_lshl_add_u32 v3, v4, 4, v3")
        e("s_and_b32 s3, s23, 3"); e("s_lshl_b32 s3, s3, 5"); e("s_lshl_b32 s53, s50, 3"); e("s_add_u32 s3, s3, s53")
        e("s_mul_i32 s3, s3, 1280"); e("s_add_u32 s3, s3, s46"); e("s_lshl_b32 s53, s49, 7"); e("s_add_u32 s3, s3, s53")
        e("v_lshrrev_b32 v4, 4, v0"); e("v_mul_lo_u32 v4, v4, s40"); e("v_and_b32 v5, 15, v0"); e("v_lshl_add_u32 v4, v5, 4, v4")
        e("s_and_b32 s53, s22, 7"); e("s_lshl_b32 s53, s53, 3"); e("s_lshl_b32 s55, s51, 2"); e("s_add_u32 s53, s53, s55")
        e("s_lshl_b32 s55, s49, 6"); e("s_add_u32 s53, s53, s55"); e("s_mul_i32 s53, s53, s40")
        e("s_lshl_b32 s55, s40, 7")
        e("s_bitcmp1_b32 s20, 1")
        for r in range(4): e(f"s_cselect_b32 s{72+r}, s{36+r}, s{32+r}")
        for j in range(0 if os.environ.get('NOPF') else 5):
            e(f"buffer_load_dwordx4 v[160:163], v3, s[24:27], s3 offen offset:{j*256}")
            e(f"buffer_load_dwordx4 v[164:167], v4, s[72:75], s53 offen")
            e("s_add_u32 s53, s53, s55")
        e("s_barrier")
    e("v_and_b32 v3, 31, v0")
    e("s_lshl_b32 s3, s49, 6")
    e("v_add_u32 v3, s3, v3")
    e("v_lshrrev_b32 v4, 1, v3")
    e("v_and_b32 v4, 7, v4")
    e("v_lshrrev_b32 v5, 5, v0")
    e("v_lshlrev_b32 v3, 7, v3")
    for ks in range(4):
        e(f"v_or_b32 v24, {ks*2}, v5")
        e("v_xor_b32 v24, v24, v4")
        e(f"v_lshl_add_u32 v{6+ks}, v24, 4, v3")
        e(f"v_mov_b32 v{11+ks}, v{6+ks}")
    e("v_bfe_u32 v3, v0, 2, 2")
    e("v_lshl_add_u32 v4, v5, 3, v3")
    e("v_lshlrev_b32 v4, 8, v4")
    e("v_bfe_u32 v24, v0, 4, 1")
    e("v_lshl_add_u32 v4, v24, 5, v4")
    e("v_and_b32 v24, 3, v0")
    e("v_lshl_add_u32 v4, v24, 3, v4")
    e("v_xor_b32 v24, s50, v3")
    e("v_lshl_add_u32 v10, v24, 6, v4")
    e("v_mov_b32 v15, v10")
    e("v_add_u32 v16, 49152, v6")
    e("v_add_u32 v17, 49152, v10")
    e("s_mov_b32 s54, 49152")
    ACC = lambda u, rt: 96 + (u*2+rt)*16
    XF = lambda p, rt: 32 + p*16 + rt*4
    WF = lambda p, u: 32 + p*16 + 8 + u*4
    for i in range(64): e(f"v_mov_b32 v{96+i}, 0")
    def reads(ks, nxt=False):
        p = ks & 1
        vx = 16 if nxt else 11 + ks
        vw = 17 if nxt else 15
        g = []
        for rt in range(2):
            g.append([f"ds_read_b128 {vr(XF(p,rt),4)}, v{vx} offset:{rt*4096}"])
        for u in range(2):
            for uu in range(2):
                g.append([f"ds_read_b64_tr_b16 {vr(WF(p,u)+uu*2,2)}, v{vw} offset:{16384+u*16384+(ks*16+uu*4)*256}"])
        return g
    stamp(e, 1)
    if not os.environ.get("LOADER"): e("s_waitcnt vmcnt(6)")
    e("s_barrier")
    stamp(e, 2)
    for grp in reads(0):
        for ins in grp: e(ins)
    for grp in dma():
        for ins in grp: e(ins)
    def stage(with_dma, first_dma_part):
        d = dma() if with_dma else []
        for ks in range(4):
            p = ks & 1
            if ks == 3:
                e(f"s_waitcnt vmcnt({6 if with_dma else 0}) lgkmcnt(0)" if not os.environ.get("LOADER") else "s_waitcnt lgkmcnt(0)")
                e("s_barrier")
                others = reads(0, nxt=True)
                others += d[0:2]
            else:
                e("s_waitcnt lgkmcnt(0)")
                others = reads(ks+1)
            mf = []
            for rt in range(2):
                for u in range(2):
                    a = ACC(u, rt)
                    mf.append(f"v_mfma_f32_32x32x16_bf16 {vr(a,16)}, {vr(WF(p,u),4)}, {vr(XF(p,rt),4)}, {vr(a,16)}")
            interleave(e, mf, others)
            if ks == 3:
                for grp in d[2:]:
                    for ins in grp: e(ins)
        for ks in range(4):
            e(f"v_add_u32 v{11+ks}, s54, v{6+ks}")
        e("v_mov_b32 v15, v17")
        e("s_add_u32 s54, s54, 49152"); e("s_cmp_ge_u32 s54, 147456"); e("s_cselect_b32 s3, 147456, 0"); e("s_sub_u32 s54, s54, s3")
        e("v_add_u32 v16, s54, v6")
        e("v_add_u32 v17, s54, v10")
    e("s_mov_b32 s55, 0")
    e.l.append(".p2align 6")
    e.label("K1_L1")
    stage(True, 0)
    e("s_add_u32 s55, s55, 1")
    e("s_cmp_lt_u32 s55, 7")
    e("s_cbranch_scc1 K1_L1")
    e.label("K1_L2")
    stage(False, 0)
    e("s_add_u32 s55, s55, 1")
    e("s_cmp_lt_u32 s55, 10")
    e("s_cbranch_scc1 K1_L2")
    stamp(e, 3)
    e("s_nop 15")
    e("s_cmp_ge_u32 s23, 12")
    e("s_cbranch_scc1 K1_EPI_B")
    e("s_lshl_b32 s3, s22, 2")
    e("s_lshl_b32 s21, s49, 1")
    e("s_add_u32 s3, s3, s21")
    e("s_mul_i32 s3, s3, 96")
    e("s_lshl_b32 s21, s23, 3")
    e("s_add_u32 s3, s3, s21")
    e("s_lshl_b32 s21, s50, 1")
    e("s_add_u32 s3, s3, s21")
    e("s_lshl_b32 s3, s3, 10")
    e(f"s_add_u32 s3, s3, {HBUF}")
    e(f"s_add_u32 s21, s3, {96*1024}")
    e("v_lshlrev_b32 v1, 4, v0")
    for rt in range(2):
        g = ACC(0, rt); u_ = ACC(1, rt)
        for i in range(16):
            e(f"v_max_f32 v{g+i}, 0, v{g+i}")
            e(f"v_mul_f32 v{g+i}, v{g+i}, v{u_+i}")
        d = 64 + rt*8
        for i in range(8):
            e(f"v_cvt_pk_bf16_f32 v{d+i}, v{g+2*i}, v{g+2*i+1}")
        for t in range(2):
            e(f"buffer_store_dwordx4 {vr(d+4*t,4)}, v1, s[28:31], {'s3' if rt==0 else 's21'} offen offset:{t*1024} sc1")
    stamp(e, 4)
    stamp_flush(e, 5, 0, "s20", 2)
    e("s_mov_b64 exec, -1")
    e("s_branch P1_DONE")
    e.label("K1_EPI_B")
    e("s_sub_u32 s3, s23, 12")
    e("s_lshl_b32 s3, s3, 6")
    e("s_lshl_b32 s21, s50, 3")
    e("s_add_u32 s3, s3, s21")
    e("s_lshl_b32 s3, s3, 14")
    e("s_lshl_b32 s21, s22, 7")
    e("s_lshl_b32 s51, s49, 6")
    e("s_add_u32 s21, s21, s51")
    e("s_lshl_b32 s21, s21, 3")
    e("s_add_u32 s3, s3, s21")
    e("v_and_b32 v1, 31, v0")
    e("v_lshlrev_b32 v1, 3, v1")
    e("v_lshrrev_b32 v2, 5, v0")
    e("v_lshl_add_u32 v1, v2, 14, v1")
    e(f"s_mov_b32 s51, 0x{f2u(QSCALE):08x}")
    for u in range(2):
        if u == 1:
            e("s_cmp_eq_u32 s23, 14")
            e("s_cbranch_scc1 P1_DONE")
        for rt in range(2):
            a = ACC(u, rt)
            for i in range(16):
                e(f"v_mul_f32 v{a+i}, s51, v{a+i}")
            d = 64 + (u*2+rt)*8
            for i in range(8):
                e(f"v_cvt_pk_bf16_f32 v{d+i}, v{a+2*i}, v{a+2*i+1}")
            for g in range(4):
                e(f"s_add_u32 s21, s3, {(u*32+2*g)*16384}")
                e(f"buffer_store_dwordx2 {vr(d+2*g,2)}, v1, s[28:31], s21 offen offset:{rt*256} sc1")
    e("s_branch P1_DONE")

    e.label("K1_ROLE_C")
    e("s_mov_b32 s56, 0")
    e("s_cmp_ge_u32 s20, 8")
    e("s_cbranch_scc1 K1_HELP")
    srd(e, 32, 8, 25600)
    srd(e, 36, 10, 25600)
    srd(e, 40, 16, 1280)
    e("s_and_b32 s3, s20, 3")
    e("s_lshl_b32 s21, s22, 2")
    e("s_add_u32 s21, s21, s3")
    e("s_lshl_b32 s44, s20, 6")
    e("v_add_u32 v3, s44, v0")
    e("v_lshlrev_b32 v4, 2, v3")
    for i in range(13):
        e(f"buffer_load_dword v{8+i}, v4, s[32:35], 0 offen offset:{(i%2)*2048}")
        e(f"buffer_load_dword v{33+i}, v4, s[36:39], 0 offen offset:{(i%2)*2048}")
        if i % 2 == 1: e("v_add_u32 v4, 4096, v4")
    e("v_lshlrev_b32 v4, 1, v3")
    for i in range(2):
        e(f"buffer_load_ushort v{58+i}, v4, s[40:43], 0 offen offset:{i*1024}")
    e("s_and_b32 s51, s20, 1")
    e("v_lshrrev_b32 v5, 3, v0")
    e("s_lshl_b32 s3, s20, 3")
    e("v_add_u32 v5, s3, v5")
    e("v_mul_u32_u24 v5, 0x500, v5")
    e("v_lshrrev_b32 v6, 4, v0")
    e("s_lshl_b32 s3, s51, 2")
    e("v_add_u32 v6, s3, v6")
    e("v_and_b32 v6, 7, v6")
    e("v_and_b32 v7, 7, v0")
    e("v_xor_b32 v6, v6, v7")
    e("v_lshl_add_u32 v62, v6, 4, v5")
    e("s_mul_i32 s46, s22, 163840")
    e("s_lshl_b32 s47, s20, 10")
    def cdma(kb):
        for m in range(2):
            e(f"s_add_u32 m0, s47, {81920 + (kb%4)*16384 + m*8192}")
            e(f"s_add_u32 s3, s46, {m*81920 + kb*128}")
            e("buffer_load_dwordx4 v62, s[24:27], s3 offen lds")
    for kb in range(3): cdma(kb)
    e("v_mov_b32 v144, 0"); e("v_mov_b32 v145, 0"); e("v_mov_b32 v146, 0"); e("v_mov_b32 v147, 0")
    e("v_lshlrev_b32 v4, 4, v3")
    for i in range(8):
        e(f"ds_write_b128 v4, v[144:147] offset:{i*8192}")
    e("v_add_u32 v5, 65536, v4")
    for i in range(2):
        e(f"ds_write_b128 v5, v[144:147] offset:{i*8192}")
    e("s_waitcnt lgkmcnt(0)")
    e("s_barrier")
    e("s_mov_b32 s3, 0xCCCCCCCD")
    e("s_waitcnt vmcnt(6)")
    for i in range(13):
        e(f"v_add_u32 v4, {512*i}, v3")
        e("v_mul_hi_u32 v5, v4, s3")
        e("v_lshrrev_b32 v5, 3, v5")
        e("v_mul_u32_u24 v6, 10, v5")
        e("v_sub_u32 v6, v4, v6")
        e("v_lshlrev_b32 v5, 6, v5")
        e("v_lshl_add_u32 v5, v6, 2, v5")
        if i == 12:
            e("v_cmp_gt_u32 vcc, 256, v3")
            e("s_and_saveexec_b64 s[44:45], vcc")
        e(f"ds_write_b32 v5, v{8+i}")
        e(f"ds_write_b32 v5, v{33+i} offset:40960")
        if i == 12:
            e("s_mov_b64 exec, s[44:45]")
    e("v_lshlrev_b32 v4, 6, v3")
    e("ds_write_b16 v4, v58 offset:44")
    e("v_cmp_gt_u32 vcc, 128, v3")
    e("s_and_saveexec_b64 s[44:45], vcc")
    e(f"ds_write_b16 v4, v59 offset:{44+32768}")
    e("s_mov_b64 exec, s[44:45]")
    e("s_waitcnt lgkmcnt(0)")
    e("s_barrier")
    e("v_bfe_u32 v3, v0, 2, 2")
    e("v_lshrrev_b32 v5, 5, v0")
    e("v_lshl_add_u32 v4, v5, 3, v3")
    e("v_lshlrev_b32 v4, 6, v4")
    e("v_bfe_u32 v6, v0, 4, 1")
    e("v_lshl_add_u32 v4, v6, 5, v4")
    e("v_and_b32 v6, 3, v0")
    e("v_lshl_add_u32 v4, v6, 3, v4")
    e(f"s_mul_i32 s48, s21, {KV_TILE}")
    e(f"s_add_u32 s48, s48, {KVBUF}")
    e("v_lshlrev_b32 v1, 4, v0")
    e("v_lshlrev_b32 v2, 3, v0")
    e("v_mov_b32 v60, 0x3f803f80")
    e("v_mov_b32 v61, 0")
    KA = 144
    e("v_and_b32 v5, 31, v0")
    e("s_and_b32 s44, s20, 3")
    e("s_lshl_b32 s44, s44, 5")
    e("v_add_u32 v5, s44, v5")
    e("v_lshrrev_b32 v6, 1, v5")
    e("v_and_b32 v6, 7, v6")
    e("v_lshrrev_b32 v7, 5, v0")
    e("v_lshlrev_b32 v5, 7, v5")
    e("v_add_u32 v5, 81920, v5")
    for ks in range(4):
        e(f"v_or_b32 v24, {ks*2}, v7")
        e("v_xor_b32 v24, v24, v6")
        e(f"v_lshl_add_u32 v{64+ks}, v24, 4, v5")
    e("s_cmp_ge_u32 s20, 4")
    e("s_cbranch_scc1 K1_C_V")
    def body(isV):
        for kb in range(10):
            e(f"s_waitcnt vmcnt({2*min(2, 9-kb)})")
            e("s_barrier")
            if kb + 3 < 10: cdma(kb+3)
            for ks in range(4):
                k = kb*4 + ks
                e(f"ds_read_b128 {vr(72+ks*4,4)}, v{64+ks} offset:{(kb%4)*16384}")
                e(f"ds_read_b64_tr_b16 {vr(8+ks*4,2)}, v4 offset:{k*1024}")
                e(f"ds_read_b64_tr_b16 {vr(10+ks*4,2)}, v4 offset:{k*1024+256}")
            for ks in range(4):
                e(f"s_waitcnt lgkmcnt({9-3*ks})")
                ck = "0" if (kb == 0 and ks == 0) else vr(KA, 16)
                if isV: e(f"v_mfma_f32_32x32x16_bf16 {vr(KA,16)}, {vr(72+ks*4,4)}, {vr(8+ks*4,4)}, {ck}")
                else:   e(f"v_mfma_f32_32x32x16_bf16 {vr(KA,16)}, {vr(8+ks*4,4)}, {vr(72+ks*4,4)}, {ck}")
        e("s_nop 15")
    body(False)
    for i in range(6):
        e(f"v_cvt_pk_bf16_f32 v{8+i}, v{KA+2*i}, v{KA+2*i+1}")
    e(f"v_mul_f32 v20, 0xbfb8aa3b, v{KA+10}")
    e("v_exp_f32 v20, v20")
    e("s_nop 0")
    e("v_add_f32 v20, 1.0, v20")
    e("v_rcp_f32 v20, v20")
    e("v_cmp_le_u32 vcc, 32, v0")
    e("s_nop 1")
    e("v_cndmask_b32 v12, v12, v60, vcc")
    e("v_cndmask_b32 v13, v13, v61, vcc")
    e("buffer_store_dwordx4 v[8:11], v1, s[28:31], s48 offen sc1")
    e("buffer_store_dwordx2 v[12:13], v2, s[28:31], s48 offen offset:1024 sc1")
    e("s_lshl_b32 s44, s21, 7")
    e(f"s_add_u32 s44, s44, {GBUF - 128}")
    e("v_lshlrev_b32 v23, 2, v0")
    e("s_and_saveexec_b64 s[46:47], vcc")
    e("buffer_store_dword v20, v23, s[28:31], s44 offen sc1")
    e("s_mov_b64 exec, -1")
    e("s_branch P1_DONE")
    e.label("K1_C_V")
    e("v_add_u32 v4, 40960, v4")
    body(True)
    e("v_and_b32 v23, 31, v0")
    e("v_cmp_eq_u32 vcc, 20, v23")
    for i in range(8):
        e(f"v_cvt_pk_bf16_f32 v{24+i}, v{KA+2*i}, v{KA+2*i+1}")
    for i in range(8):
        e(f"v_cndmask_b32 v{24+i}, v{24+i}, v60, vcc")
    e("buffer_store_dwordx4 v[24:27], v1, s[28:31], s48 offen offset:1536 sc1")
    e("buffer_store_dwordx4 v[28:31], v1, s[28:31], s48 offen offset:2560 sc1")
    stamp(e, 4)
    stamp_flush(e, 5, 0, "s20", 2)
    e("s_mov_b64 exec, -1")
    e("s_branch P1_DONE")
    e.label("K1_HELP")
    e("s_sub_u32 s20, s20, 8")
    srd(e, 48, 60, 819200)
    srd(e, 52, 62, 1966080)
    e("s_lshl_b32 s3, s2, 2")
    e("s_add_u32 s3, s3, s20")
    e("s_lshl_b32 s3, s3, 10")
    e("s_add_u32 s44, s3, 0x100000")
    e("s_add_u32 s45, s3, 0x200000")
    e("v_lshlrev_b32 v1, 4, v0")
    srd(e, 68, 64, 256)
    e("v_mov_b32 v2, 0")
    e("s_or_b32 s46, s2, s20")
    e("s_cmp_lg_u32 s46, 0")
    e("s_cbranch_scc1 K1_T0")
    e("s_memrealtime s[46:47]")
    e("s_waitcnt lgkmcnt(0)")
    e("s_or_b32 s46, s46, 1")
    e("v_mov_b32 v3, s46")
    e("s_mov_b64 exec, 1")
    e("buffer_store_dword v3, v2, s[68:71], 0 offen sc1")
    e("s_mov_b64 exec, -1")
    e.label("K1_T0")
    if os.environ.get("LOADER"):
        e("s_cmp_eq_u32 s56, 0")
        e("s_cbranch_scc1 K1_HC")
        e("s_lshl_b32 s41, s40, 2"); e("s_lshl_b32 s42, s40, 3"); e("s_add_u32 s43, s41, s42")
        e("s_lshl_b32 s58, s40, 6")
        e("s_lshl_b32 s59, s40, 4"); e("s_mul_i32 s59, s59, s20")
        e("s_mul_i32 s46, s22, 163840")
        e("s_lshl_b32 s47, s20, 10"); e("s_lshl_b32 s72, s20, 12"); e("s_add_u32 s72, s72, 16384")
        e("s_and_b32 s73, s20, 1")
        e("v_lshrrev_b32 v13, 3, v0"); e("s_lshl_b32 s74, s20, 3"); e("v_add_u32 v13, s74, v13"); e("v_mul_u32_u24 v13, 0x500, v13")
        e("v_lshrrev_b32 v14, 4, v0"); e("s_lshl_b32 s74, s73, 2"); e("v_add_u32 v14, s74, v14"); e("v_and_b32 v14, 7, v14")
        e("v_and_b32 v15, 7, v0"); e("v_xor_b32 v14, v14, v15"); e("v_lshl_add_u32 v16, v14, 4, v13")
        e("v_lshrrev_b32 v14, 4, v0"); e("v_mul_lo_u32 v13, v14, s40"); e("v_lshlrev_b32 v14, 2, v14")
        e("v_and_b32 v15, 15, v0"); e("v_xor_b32 v14, v14, v15"); e("v_lshl_add_u32 v17, v14, 4, v13")
        def ld(kb):
            base = (kb % 3) * 49152
            for m in range(4):
                e(f"s_add_u32 m0, s47, {base + m*4096}")
                e(f"s_add_u32 s74, s46, {m*40960 + kb*128}")
                e("buffer_load_dwordx4 v16, s[24:27], s74 offen lds")
            for ee in range(4):
                for u in range(2):
                    e(f"s_add_u32 m0, s72, {base + u*16384 + ee*1024}")
                    e(f"s_add_u32 s74, s59, s{40+ee}" if ee else "s_mov_b32 s74, s59")
                    e(f"buffer_load_dwordx4 v17, s[{32+4*u}:{35+4*u}], s74 offen lds")
            e("s_add_u32 s59, s59, s58")
        e("s_barrier"); ld(0); ld(1); e("s_waitcnt vmcnt(12)"); e("s_barrier"); ld(2)
        for kb in range(8):
            e(f"s_waitcnt vmcnt({(15 if kb in (2, 3) else 12) if kb + 2 <= 9 else 0})")
            e("s_barrier")
            if kb + 3 <= 9: ld(kb + 3)
            if kb == 1:
                e("buffer_load_dwordx4 v[4:7], v1, s[52:55], s3 offen")
                e("buffer_load_dwordx4 v[8:11], v1, s[52:55], s44 offen")
                e("buffer_load_dwordx4 v[20:23], v1, s[48:51], s3 offen")
        e("s_waitcnt vmcnt(0)")
        e("s_branch K1_HD")
        e.label("K1_HC")
    srd(e, 32, 12, 1966080)
    srd(e, 36, 14, 1966080)
    srd(e, 40, 6, 819200)
    e("s_barrier")
    e("buffer_load_dwordx4 v[4:7], v1, s[24:27], s3 offen")
    e("buffer_load_dwordx4 v[4:7], v1, s[32:35], s3 offen")
    e("buffer_load_dwordx4 v[4:7], v1, s[36:39], s3 offen")
    e("buffer_load_dwordx4 v[4:7], v1, s[24:27], s44 offen")
    e("buffer_load_dwordx4 v[4:7], v1, s[24:27], s45 offen")
    e("buffer_load_dwordx4 v[4:7], v1, s[40:43], s3 offen")
    e("buffer_load_dwordx4 v[4:7], v1, s[32:35], s44 offen")
    e("buffer_load_dwordx4 v[4:7], v1, s[36:39], s44 offen")
    for i in range(6): e("s_barrier")
    e("buffer_load_dwordx4 v[4:7], v1, s[52:55], s3 offen")
    e("buffer_load_dwordx4 v[8:11], v1, s[52:55], s44 offen")
    e("buffer_load_dwordx4 v[12:15], v1, s[48:51], s3 offen")
    for i in range(3): e("s_barrier")
    e.label("K1_HD")
    e("s_cmp_lg_u32 s20, 0")
    e("s_cbranch_scc1 K1_T5")
    e("s_mov_b32 s47, 0")
    e.label("K1_T4")
    e("buffer_load_dword v3, v2, s[68:71], 0 offen sc1")
    e("s_waitcnt vmcnt(0)")
    e("v_readfirstlane_b32 s46, v3")
    e("s_add_u32 s47, s47, 1")
    e("s_cmp_ge_u32 s47, 0x100000")
    e("s_cbranch_scc1 K1_T6")
    e("s_cmp_eq_u32 s46, 0")
    e("s_cbranch_scc1 K1_T4")
    e.label("K1_T6")
    e(f"v_mov_b32 v2, {CNT}")
    e("ds_write_b32 v2, v3 offset:8")
    e("s_waitcnt lgkmcnt(0)")
    e.label("K1_T5")
    for i in range(2): e("s_barrier")
    e.label("P1_DONE")
    e("s_waitcnt vmcnt(0)")
    e("s_barrier")
    e("s_lshl_b32 s76, s22, 4")
    e("s_add_u32 s76, s76, s23")
    return name, 168, 147456, 256, 768
```

```python
from common import *

RING = 4 * 14336
CNT = RING + 4*5*5120
def div20(e, vdst_q, vdst_r, vsrc, stmp):
    e(f"s_mov_b32 {stmp}, 0xCCCCCCCD")
    e(f"v_mul_hi_u32 v{vdst_q}, v{vsrc}, {stmp}")
    e(f"v_lshrrev_b32 v{vdst_q}, 4, v{vdst_q}")
    e(f"v_mul_u32_u24 v{vdst_r}, 20, v{vdst_q}")
    e(f"v_sub_u32 v{vdst_r}, v{vsrc}, v{vdst_r}")

def splitk_gemm(e, pfx, ksteps, nslab, srdW, srdWS, s_slab, barrier_every=None, barrier_count=0):
    n = len(ksteps)
    XR = lambda k: 40 + (k % nslab) * 4
    def issue(k):
        vs, wo, xo = ksteps[k]
        slab = (k % nslab) * 5120
        e(f"s_add_u32 s62, s60, {wo}")
        for i in range(5):
            e(f"s_add_u32 m0, {s_slab}, {slab + i*1024}")
            e("s_nop 0")
            e(f"buffer_load_dwordx4 v{1+vs*5+i}, {sr(srdW,4)}, s62 offen lds")
        e(f"s_add_u32 s63, s61, {xo}")
        e(f"buffer_load_dwordx4 {vr(XR(k),4)}, v12, {sr(srdWS,4)}, s63 offen sc1")
    pre = min(nslab - 1, n)
    for k in range(pre):
        issue(k)
    nb = 0
    for k in range(n):
        if barrier_every and k % barrier_every == 0 and nb < barrier_count:
            e("s_barrier"); nb += 1
        issued = min(n, k + nslab - 1)
        e(f"s_waitcnt vmcnt({(issued - k - 1) * 6})")
        slab = (k % nslab) * 5120
        for nt in range(5):
            for uu in range(2):
                e(f"ds_read_b64_tr_b16 {vr(16+nt*4+uu*2,2)}, v11 offset:{slab + uu*2560 + nt*64}")
        if k + nslab - 1 < n:
            issue(k + nslab - 1)
        for nt in range(5):
            e(f"s_waitcnt lgkmcnt({8 - 2*nt})")
            cc = "0" if k == 0 else vr(80+nt*16, 16)
            e(f"v_mfma_f32_32x32x16_bf16 {vr(80+nt*16,16)}, {vr(16+nt*4,4)}, {vr(XR(k),4)}, {cc}")
    return nb

def gemm_addr_setup(e, s_slab, type2=False):
    for i in range(5):
        e(f"v_add_u32 v13, {i*64}, v0")
        div20(e, 14, 15, 13, "s62")
        e("v_lshlrev_b32 v15, 4, v15")
        e(f"v_mad_u32_u24 v{1+i}, v14, s59, v15")
        if type2:
            e("v_bfe_u32 v13, v14, 2, 1")
            e("v_lshrrev_b32 v36, 3, v14")
            e("v_lshl_add_u32 v13, v13, 1, v36")
            e("v_mul_u32_u24 v13, 20, v13")
            e("v_and_b32 v36, 3, v14")
            e("v_add_u32 v13, v13, v36")
            e(f"v_mad_u32_u24 v{6+i}, v13, s59, v15")
    e("v_bfe_u32 v13, v0, 2, 2")
    e("v_lshrrev_b32 v14, 5, v0")
    e("v_lshl_add_u32 v13, v14, 2, v13")
    e("v_mul_u32_u24 v13, 320, v13")
    e("v_bfe_u32 v14, v0, 4, 1")
    e("v_lshl_add_u32 v13, v14, 5, v13")
    e("v_and_b32 v14, 3, v0")
    e("v_lshl_add_u32 v13, v14, 3, v13")
    e(f"v_add_u32 v11, {s_slab}, v13")
    e("v_lshlrev_b32 v12, 4, v0")

def reduce_write(e, s_slab):
    e("s_nop 15")
    e(f"v_add_u32 v13, {s_slab}, v12")
    for q in range(20):
        e(f"ds_write_b128 v13, {vr(80+q*4,4)} offset:{q*1024}")
    e("s_waitcnt lgkmcnt(0)")
    e("s_barrier")

def reduce_read(e, area_stride, s_base, wait="lgkmcnt(0)"):
    e(f"v_add_u32 v13, {s_base}, v12")
    e(f"v_add_u32 v14, {2*area_stride}, v13")
    for p in range(4):
        for q in range(5):
            e(f"ds_read_b128 {vr(80+(p*5+q)*4,4)}, v{13 + p//2} offset:{(p%2)*area_stride + q*1024}")
    e(f"s_waitcnt {wait}")
    for p in range(1, 4):
        for i in range(20):
            e(f"v_add_f32 v{80+i}, v{80+i}, v{80+p*20+i}")

def gen_k2(e):
    name = "k2"
    e("s_load_dwordx2 s[4:5], s[0:1], 64")
    e("s_load_dwordx2 s[6:7], s[0:1], 96")
    e("s_load_dwordx2 s[8:9], s[0:1], 32")
    e("s_load_dwordx4 s[12:15], s[0:1], 80")
    e("s_mov_b32 s20, s79")
    e(f"v_mov_b32 v14, {CNT}")
    e("ds_read_b32 v1, v14 offset:8")
    e("s_and_b32 s21, s2, 7")
    e("s_lshl_b32 s21, s21, 3")
    e("s_lshr_b32 s22, s2, 5")
    e("s_add_u32 s21, s21, s22")
    e("s_bfe_u32 s22, s2, 0x20003")
    e("s_waitcnt lgkmcnt(0)")
    srd(e, 28, 6, WS_END)
    e("v_readfirstlane_b32 s77, v1")
    stamp(e, 0)
    e("s_cmp_ge_u32 s20, 8")
    e("s_cbranch_scc1 K2_GEMM")
    def poll(tag, mask):
        e(f"s_mov_b32 s3, {FLAG1}")
        e("s_mov_b32 s63, 0")
        e(f"s_mov_b64 exec, {mask}")
        e.label(f"K2_PL{tag}")
        e("buffer_load_dword v112, v113, s[28:31], s3 offen sc1")
        e("s_waitcnt vmcnt(0)")
        e("v_cmp_ne_u32 vcc, s77, v112")
        e("s_nop 1")
        e(f"s_cbranch_vccz K2_PD{tag}")
        e("s_sleep 1")
        e("s_add_u32 s63, s63, 1")
        e("s_cmp_lt_u32 s63, 0x100000")
        e(f"s_cbranch_scc1 K2_PL{tag}")
        e.label(f"K2_PD{tag}")
        e("s_mov_b64 exec, -1")
    e("v_lshl_add_u32 v113, v0, 4, 15")
    e("s_lshr_b32 s3, s21, 2")
    e("s_lshl_b32 s3, s3, 4")
    e("s_sub_u32 s3, s3, 4")
    e("v_add_u32 v112, s3, v0")
    e("v_cmp_gt_u32 vcc, 16, v0")
    e("s_nop 1")
    e("v_cndmask_b32 v113, v112, v113, vcc")
    e("v_lshlrev_b32 v113, 7, v113")
    e("s_cmp_lg_u32 s20, 7")
    e("s_cbranch_scc1 K2_PX")
    poll("a", "0xffff")
    e.label("K2_PX")
    e("s_barrier")
    import os
    if os.environ.get("NOATTN"): e("s_endpgm")
    S = [16, 32]; O = 48; P = 64; Q1 = 72; Q2 = 76
    K1 = lambda p: 80 + p*8
    K2 = lambda p: 84 + p*8
    V = lambda p, t: 96 + p*8 + t*4
    e("s_lshl_b32 s23, s22, 3")
    e("s_add_u32 s23, s23, s20")
    e("s_mul_i32 s3, s23, 81920")
    e("s_lshl_b32 s24, s21, 8")
    e("s_add_u32 s3, s3, s24")
    e("v_and_b32 v1, 31, v0")
    e("v_lshlrev_b32 v1, 3, v1")
    e("v_lshrrev_b32 v2, 5, v0")
    e("v_lshl_add_u32 v2, v2, 14, v1")
    e("s_add_u32 s24, s3, 32768")
    e("s_add_u32 s25, s3, 65536")
    e("s_mov_b32 s41, s3"); e("s_mov_b32 s42, s24"); e("s_mov_b32 s43, s25")
    e("v_lshlrev_b32 v3, 4, v0")
    e("v_lshlrev_b32 v4, 3, v0")
    e("s_lshl_b32 s26, s20, 11")
    e(f"s_add_u32 s27, s26, {KVBUF}")
    def emit_dma(tag):
        e("s_cmp_eq_u32 s20, 7")
        e(f"s_cbranch_scc1 K2_SK{tag}")
        e("s_mov_b32 m0, s36")
        e("s_add_u32 s3, s37, 1024")
        e("buffer_load_dwordx4 v3, s[28:31], s37 offen sc1 lds")
        e("s_add_u32 m0, s36, 1024")
        e("s_nop 0")
        e("buffer_load_dwordx4 v3, s[28:31], s3 offen sc1 lds")
        e.label(f"K2_SK{tag}")
        e("s_add_u32 s37, s37, 14336")
        e("s_add_u32 s36, s36, 14336")
        e(f"s_cmp_ge_u32 s36, {RING}")
        e(f"s_cselect_b32 s3, {RING}, 0")
        e("s_sub_u32 s36, s36, s3")
    e("s_mov_b32 s36, s26")
    e("s_mov_b32 s37, s27")
    emit_dma("a"); emit_dma("b"); emit_dma("c")
    e("s_cmp_lg_u32 s20, 7")
    e("s_cbranch_scc1 K2_PY")
    poll("b", "0x70000")
    e.label("K2_PY")
    e("s_barrier")
    e(f"buffer_load_dwordx2 {vr(Q1,2)}, v2, s[28:31], s41 offen sc1")
    e(f"buffer_load_dwordx2 {vr(Q1+2,2)}, v2, s[28:31], s42 offen sc1")
    e(f"buffer_load_dwordx2 {vr(Q2,2)}, v1, s[28:31], s43 offen sc1")
    e("v_lshrrev_b32 v13, 1, v1")
    e("s_lshl_b32 s24, s21, 7")
    e(f"s_add_u32 s24, s24, {GBUF}")
    e("buffer_load_dword v13, v13, s[28:31], s24 offen sc1")
    for r in (K2(0)+2, K2(0)+3, K2(1)+2, K2(1)+3, Q2+2, Q2+3, P+4, P+5, P+6, P+7, V(1,1), V(1,1)+1, V(1,1)+2, V(1,1)+3):
        e(f"v_mov_b32 v{r}, 0")
    for i in range(16):
        e(f"v_mov_b32 v{O+i}, 0")
    e("v_cmp_le_u32 s[32:33], 32, v0")
    e("v_mov_b32 v8, v3"); e("v_mov_b32 v9, v4")
    e("v_add_u32 v10, 14336, v3"); e("v_add_u32 v11, 14336, v4")
    e("s_mov_b32 s38, 28672")
    e(f"v_mov_b32 v14, {CNT}")
    e("v_mov_b32 v15, 1")
    e("v_mov_b32 v6, 0"); e("v_mov_b32 v7, 0")
    e("ds_write_b64 v14, v[6:7]")
    e("s_mov_b32 s40, 8")
    e("s_waitcnt lgkmcnt(0)")
    e("s_waitcnt vmcnt(0)")
    e("s_barrier")
    stamp(e, 1)
    e(f"v_cndmask_b32 v{Q2}, v{Q2}, 0, s[32:33]")
    e(f"v_cndmask_b32 v{Q2+1}, v{Q2+1}, 0, s[32:33]")
    def rdK(t):
        p = t & 1; a16 = 8 if t < 4 else 10; off = (t % 4) * KV_TILE
        return [f"ds_read_b128 {vr(K1(p),4)}, v{a16} offset:{off}",
                f"ds_read_b64 {vr(K2(p),2)}, v{a16+1} offset:{off+1024}"]
    def rdV(t):
        p = t & 1; a16 = 8 if t < 4 else 10; off = (t % 4) * KV_TILE
        return [f"ds_read_b128 {vr(V(p,0),4)}, v{a16} offset:{off+1536}",
                f"ds_read_b128 {vr(V(p,1),4)}, v{a16} offset:{off+2560}"]
    for ins in rdK(0) + rdK(1) + rdV(0): e(ins)
    e("s_waitcnt lgkmcnt(0)")
    def qk(t, which):
        p = t & 1; s = S[t & 1]
        if which == 0:
            return f"v_mfma_f32_32x32x16_bf16 {vr(s,16)}, {vr(K1(p),4)}, {vr(Q1,4)}, 0"
        return f"v_mfma_f32_32x32x8_bf16 {vr(s,16)}, {vr(K2(p),2)}, {vr(Q2,2)}, {vr(s,16)}"
    def set_fold(src16, running=None):
        e(f"v_max3_f32 v5, v{src16}, v{src16+1}, v{src16+2}")
        for i in range(3, 15, 2):
            e(f"v_max3_f32 v5, v5, v{src16+i}, v{src16+i+1}")
        e(f"v_max_f32 v5, v5, v{src16+15}")
    def fold_from_v5():
        e("v_mov_b32 v6, v5")
        e("s_nop 1")
        e("v_permlane32_swap_b32 v5, v6")
        e("s_nop 1")
        e("v_max_f32 v5, v5, v6")
        e("v_sub_f32 v5, 0, v5")
        e("v_cvt_pk_bf16_f32 v6, v5, v5")
        e("v_lshlrev_b32 v6, 16, v6")
        e("v_sub_f32 v6, v5, v6")
        e("v_cvt_pk_bf16_f32 v6, v5, v6")
        e(f"v_cndmask_b32 v{Q2}, v{Q2}, v6, s[32:33]")
        e("s_nop 1")
    e(qk(0, 0)); e(qk(0, 1))
    e("s_nop 15")
    set_fold(S[0])
    fold_from_v5()
    e(qk(0, 0)); e(qk(0, 1))
    e("s_mov_b32 s39, 0")
    if DO_STAMP: e("s_mov_b32 s94, 0")
    e("s_nop 7")
    def pv(t, h):
        p = t & 1
        return f"v_mfma_f32_32x32x16_bf16 {vr(O,16)}, {vr(V(p,h),4)}, {vr(P+4*h,4)}, {vr(O,16)}"
    def grp(s, q):
        for i in range(4):
            e(f"v_exp_f32 v{s+4*q+i}, v{s+4*q+i}")
        e(f"v_cvt_pk_bf16_f32 v{P+2*q}, v{s+4*q}, v{s+4*q+1}")
        e(f"v_cvt_pk_bf16_f32 v{P+2*q+1}, v{s+4*q+2}, v{s+4*q+3}")
    stamp(e, 2)
    if "prio" in os.environ.get("VAR", ""):
        e("s_cmp_ge_u32 s20, 4")
        e("s_cbranch_scc0 K2_NP")
        e("s_setprio 1")
        e.label("K2_NP")
    if "late" in os.environ.get("VAR", ""):
        for r in range(12, 16): e(f"v_mov_b32 v{S[1]+r}, 0")
    e.l.append(".p2align 6")
    e.label("K2_LOOP")
    VAR = os.environ.get("VAR", "")
    def ex(s, q):
        for i in range(4):
            e(f"v_exp_f32 v{s+4*q+i}, v{s+4*q+i}")
    def cv(s, q):
        e(f"v_cvt_pk_bf16_f32 v{P+2*q}, v{s+4*q}, v{s+4*q+1}")
        e(f"v_cvt_pk_bf16_f32 v{P+2*q+1}, v{s+4*q+2}, v{s+4*q+3}")
    for i in range(4):
        s = S[i & 1]; sp = S[(i+1) & 1]
        def upd():
            e("v_mov_b32 v8, v10"); e("v_mov_b32 v9, v11")
            e("v_add_u32 v10, s38, v3"); e("v_add_u32 v11, s38, v4")
            e("s_add_u32 s38, s38, 14336")
            e(f"s_cmp_ge_u32 s38, {RING}")
            e(f"s_cselect_b32 s3, {RING}, 0")
            e("s_sub_u32 s38, s38, s3")
            e("s_add_u32 s39, s39, 1")
        def head():
            if "tog" in VAR: e(f"s_setprio {(3 - ((i+2)%4))}")
            if i == 0:
                e("s_waitcnt vmcnt(2) lgkmcnt(0)")
                e("s_mov_b64 exec, 1")
                e("ds_add_u32 v14, v15")
                e("s_mov_b64 exec, -1")
            elif i == 1:
                e("s_waitcnt lgkmcnt(0)")
                e("ds_read_b32 v7, v14")
            elif i == 2:
                e.label("K2_CHK")
                e("s_waitcnt lgkmcnt(0)")
                e("v_readfirstlane_b32 s3, v7")
                e("s_cmp_ge_u32 s3, s40")
                e("s_cbranch_scc0 K2_SLOW")
                e("s_add_u32 s40, s40, 8")
            else:
                e("s_waitcnt lgkmcnt(0)")
        if "late" in VAR:
            head()
            for ins in rdK(i+2): e(ins if "nords" not in VAR else "s_nop 0")
            ex(s, 0)
            cv(sp, 3)
            e(qk(i+1, 0)) if False else None
            if i == 2 and "nobar" not in VAR: emit_dma("d")
            else: e("s_nop 0")
            e(pv(i+1, 1))
            for ins in rdV(i+1): e(ins if ("nords" not in VAR and "norv" not in VAR) else "s_nop 0")
            ex(s, 1); cv(s, 0)
            e(qk(i+1, 0))
            if i == 3: upd()
            ex(s, 2); cv(s, 1)
            e(qk(i+1, 1))
            ex(s, 3); cv(s, 2)
            e(pv(i, 0))
        else:
            head()
            for ins in rdK(i+2): e(ins)
            e(pv(i+1, 1))
            for ins in rdV(i+1): e(ins)
            if i == 2 and "nobar" not in VAR:
                emit_dma("d")
            grp(s, 0)
            e(qk(i+1, 0))
            grp(s, 1)
            e(qk(i+1, 1))
            if i == 3: upd()
            grp(s, 2)
            e(pv(i, 0))
            grp(s, 3)
    e("s_cmp_lt_u32 s39, 16")
    e("s_cbranch_scc1 K2_LOOP")
    stamp(e, 3)
    if "late" in VAR: cv(S[1], 3)
    e("s_nop 1")
    e(pv(63, 1))
    e("s_nop 15")
    e(f"v_max3_f32 v5, |v{O}|, |v{O+1}|, |v{O+2}|")
    for i in range(3, 11, 2):
        e(f"v_max3_f32 v5, v5, |v{O+i}|, |v{O+i+1}|")
    e(f"v_max_f32 v5, v5, |v{O+11}|")
    e("s_mov_b32 s3, 0x7b800000")
    e("v_cmp_nlt_f32 vcc, v5, s3") if False else None
    e("v_mov_b32 v7, s3")
    e("v_cmp_nlt_f32 s[34:35], v5, v7")
    e(f"v_mov_b32 v5, v{O+8}")
    e(f"v_mov_b32 v6, v{O+8}")
    e("s_nop 1")
    e("v_permlane32_swap_b32 v5, v6")
    e("v_mov_b32 v7, 0x53800000")
    e("s_nop 0")
    e("v_cmp_nlt_f32 vcc, v6, v7")
    e("s_nop 1")
    e("s_or_b64 vcc, vcc, s[34:35]")
    e("s_cbranch_vccnz K2_FALLBACK")
    e.label("K2_NORM")
    e("v_rcp_f32 v6, v6")
    e("s_nop 0")
    e("v_mul_f32 v6, v6, v13")
    for i in range(12):
        e(f"v_mul_f32 v{O+i}, v{O+i}, v6")
    for i in range(6):
        e(f"v_cvt_pk_bf16_f32 v{P+i}, v{O+2*i}, v{O+2*i+1}")
    e("s_mul_i32 s3, s21, 40")
    e("s_add_u32 s24, s3, s23")
    e("s_lshl_b32 s24, s24, 10")
    e(f"s_add_u32 s24, s24, {OBUF}")
    e(f"buffer_store_dwordx4 {vr(P,4)}, v3, s[28:31], s24 offen sc1")
    e("s_lshr_b32 s25, s23, 2")
    e("s_add_u32 s3, s3, s25")
    e("s_add_u32 s3, s3, 32")
    e("s_lshl_b32 s3, s3, 10")
    e("s_bfe_u32 s25, s23, 0x10001")
    e("s_lshl_b32 s25, s25, 9")
    e("s_add_u32 s3, s3, s25")
    e("s_and_b32 s25, s23, 1")
    e("s_lshl_b32 s25, s25, 3")
    e("s_add_u32 s3, s3, s25")
    e(f"s_add_u32 s3, s3, {OBUF}")
    e("s_mov_b32 exec_hi, 0")
    e(f"buffer_store_dwordx2 {vr(P+4,2)}, v3, s[28:31], s3 offen sc1")
    e("s_waitcnt vmcnt(0)")
    e("s_mov_b64 exec, 1")
    e("ds_add_u32 v14, v15 offset:4")
    e("s_waitcnt lgkmcnt(0)")
    stamp(e, 4)
    stamp_flush(e, 7, 1, "s79", 5)
    e("s_endpgm")
    e.label("K2_SLOW")
    if DO_STAMP: e("s_add_u32 s94, s94, 1")
    e("s_sleep 1")
    e("ds_read_b32 v7, v14")
    e("s_branch K2_CHK")
    e.label("K2_FALLBACK")
    e(f"v_cndmask_b32 v{Q2}, v{Q2}, 0, s[32:33]")
    e("v_mov_b32 v12, 0xff800000")
    e(f"s_mov_b32 s3, {KVBUF}")
    e.label("K2_FB1")
    e(f"buffer_load_dwordx4 {vr(K1(0),4)}, v3, s[28:31], s3 offen sc1")
    e(f"buffer_load_dwordx2 {vr(K2(0),2)}, v4, s[28:31], s3 offen offset:1024 sc1")
    e("s_waitcnt vmcnt(0)")
    e(qk(0, 0)); e(qk(0, 1))
    e("s_nop 15")
    set_fold(S[0])
    e("v_max_f32 v12, v12, v5")
    e(f"s_add_u32 s3, s3, {KV_TILE}")
    e(f"s_cmp_lt_u32 s3, {KVBUF + 64*KV_TILE}")
    e("s_cbranch_scc1 K2_FB1")
    e("v_mov_b32 v5, v12")
    fold_from_v5()
    for i in range(16):
        e(f"v_mov_b32 v{O+i}, 0")
    e(f"s_mov_b32 s3, {KVBUF}")
    e.label("K2_FB2")
    e(f"buffer_load_dwordx4 {vr(K1(0),4)}, v3, s[28:31], s3 offen sc1")
    e(f"buffer_load_dwordx2 {vr(K2(0),2)}, v4, s[28:31], s3 offen offset:1024 sc1")
    e(f"buffer_load_dwordx4 {vr(V(0,0),4)}, v3, s[28:31], s3 offen offset:1536 sc1")
    e(f"buffer_load_dwordx4 {vr(V(0,1),4)}, v3, s[28:31], s3 offen offset:2560 sc1")
    e("s_waitcnt vmcnt(0)")
    e(qk(0, 0)); e(qk(0, 1))
    e("s_nop 15")
    for q in range(4): grp(S[0], q)
    e("s_nop 1")
    e(pv(2, 0)); e(pv(2, 1))
    e(f"s_add_u32 s3, s3, {KV_TILE}")
    e(f"s_cmp_lt_u32 s3, {KVBUF + 64*KV_TILE}")
    e("s_cbranch_scc1 K2_FB2")
    e("s_nop 15")
    e(f"v_mov_b32 v5, v{O+8}")
    e(f"v_mov_b32 v6, v{O+8}")
    e("s_nop 1")
    e("v_permlane32_swap_b32 v5, v6")
    e("s_nop 1")
    e("s_branch K2_NORM")
    e.label("K2_GEMM")
    import os
    if os.environ.get("NOGEMM"): e("s_endpgm")
    NS = 5
    srd(e, 32, 4, 1966080)
    srd(e, 36, 8, 819200)
    srd(e, 40, 12, 2621440)
    srd(e, 44, 14, 256)
    e("s_sub_u32 s20, s20, 8")
    e("v_mov_b32 v13, 0")
    e("s_cmp_lg_u32 s20, 0")
    e("s_cbranch_scc1 K2_G0")
    e("s_lshl_b32 s62, s76, 7")
    e(f"s_add_u32 s62, s62, {FLAG1}")
    e("v_mov_b32 v14, s77")
    e("s_mov_b64 exec, 1")
    e("buffer_store_dword v14, v13, s[28:31], s62 offen sc1")
    e("s_mov_b64 exec, -1")
    e.label("K2_G0")
    e("s_mul_i32 s3, s20, 3")
    e("v_add_u32 v1, s3, v0")
    e("v_cmp_eq_u32 vcc, 3, v0")
    e("s_nop 1")
    e("v_cndmask_b32 v1, v1, 15, vcc")
    e("s_lshr_b32 s3, s21, 2")
    e("s_lshl_b32 s3, s3, 4")
    e("v_add_u32 v1, s3, v1")
    e("v_lshlrev_b32 v1, 7, v1")
    e(f"s_mov_b32 s3, {FLAG1}")
    e("s_mov_b32 s63, 0")
    e("s_barrier")
    e("s_barrier")
    e("s_barrier")
    e("s_mov_b64 exec, 15")
    e.label("K2_GL")
    e("buffer_load_dword v2, v1, s[28:31], s3 offen sc1")
    e("s_waitcnt vmcnt(0)")
    e("v_cmp_ne_u32 vcc, s77, v2")
    e("s_nop 1")
    e("s_cbranch_vccz K2_GD")
    e("s_sleep 4")
    e("s_add_u32 s63, s63, 1")
    e("s_cmp_lt_u32 s63, 0x100000")
    e("s_cbranch_scc1 K2_GL")
    e.label("K2_GD")
    e("s_mov_b64 exec, -1")
    if os.environ.get("GP"): e(f"s_setprio {os.environ['GP']}")
    e(f"s_mul_i32 s58, s20, {NS*5120}")
    e(f"s_add_u32 s58, s58, {RING}")
    e("s_mov_b32 s59, 1280")
    gemm_addr_setup(e, "s58", type2=True)
    e("v_and_b32 v13, 31, v0")
    e("v_lshlrev_b32 v13, 2, v13")
    e("s_lshl_b32 s3, s21, 7")
    e(f"s_add_u32 s3, s3, {GBUF}")
    e("buffer_load_dword v160, v13, s[28:31], s3 offen sc1")
    e("s_mul_i32 s60, s20, 491520")
    e("s_mul_i32 s3, s22, 320")
    e("s_add_u32 s60, s60, s3")
    e("s_mul_i32 s61, s21, 96")
    e("s_mul_i32 s3, s20, 24")
    e("s_add_u32 s61, s61, s3")
    e("s_lshl_b32 s61, s61, 10")
    e(f"s_add_u32 s61, s61, {HBUF}")
    ks = [(0, k*20480, k*1024) for k in range(24)]
    nb = splitk_gemm(e, "K2", ks, NS, 32, 28, "s58", barrier_every=None, barrier_count=0)
    stamp(e, 1)
    e("s_mul_i32 s60, s22, 320")
    e("s_mul_i32 s3, s20, 204800")
    e("s_add_u32 s60, s60, s3")
    wk = [(0, k*20*1280) for k in range(8)] + [(1, (k*80+16)*1280) for k in range(2)]
    def wslab(k):
        vs, wo_ = wk[k]
        e(f"s_add_u32 s62, s60, {wo_}")
        for i in range(5):
            e(f"s_add_u32 m0, s58, {(k % NS)*5120 + i*1024}")
            e("s_nop 0")
            e(f"buffer_load_dwordx4 v{1+vs*5+i}, s[36:39], s62 offen lds")
    for k in range(NS): wslab(k)
    for k in range(NS, 10):
        vs, wo_ = wk[k]
        e(f"s_add_u32 s62, s60, {wo_}")
        for i in range(5):
            e(f"buffer_load_dwordx4 v[40:43], v{1+vs*5+i}, s[36:39], s62 offen")
    e("v_sub_f32 v160, 1.0, v160")
    e("s_nop 7")
    for i in range(80):
        e(f"v_mul_f32 v{80+i}, v{80+i}, v160")
    def rdw(k):
        base = 16 if k % 2 == 0 else 60
        slab = (k % NS) * 5120
        for nt in range(5):
            for uu in range(2):
                e(f"ds_read_b64_tr_b16 {vr(base+nt*4+uu*2,2)}, v11 offset:{slab + uu*2560 + nt*64}")
    e("s_waitcnt vmcnt(0)")
    rdw(0)
    e(f"v_mov_b32 v13, {CNT}")
    e.label("K2_GW")
    e("s_sleep 2")
    e("ds_read_b32 v14, v13 offset:4")
    e("s_waitcnt lgkmcnt(0)")
    e("v_readfirstlane_b32 s3, v14")
    e("s_cmp_ge_u32 s3, 8")
    e("s_cbranch_scc0 K2_GW")
    stamp(e, 2)
    e("v_mov_b32 v13, 0")
    e("s_cmp_lg_u32 s20, 0")
    e("s_cbranch_scc1 K2_POLL0")
    e("s_lshl_b32 s62, s21, 2")
    e("s_add_u32 s62, s62, s22")
    e("s_lshl_b32 s62, s62, 7")
    e(f"s_add_u32 s62, s62, {FLAG}")
    e("v_mov_b32 v14, s77")
    e("s_mov_b64 exec, 1")
    e("buffer_store_dword v14, v13, s[28:31], s62 offen sc1")
    e("s_mov_b64 exec, -1")
    e.label("K2_POLL0")
    e("s_lshl_b32 s62, s21, 2")
    e("s_add_u32 s62, s62, s20")
    e("s_lshl_b32 s62, s62, 7")
    e(f"s_add_u32 s62, s62, {FLAG}")
    e("s_mov_b32 s63, 0")
    e("s_cmp_eq_u32 s20, s22")
    e("s_cbranch_scc1 K2_GO")
    e.label("K2_POLL")
    e("buffer_load_dword v14, v13, s[28:31], s62 offen sc1")
    e("s_waitcnt vmcnt(0)")
    e("v_readfirstlane_b32 s3, v14")
    e("s_cmp_eq_u32 s3, s77")
    e("s_cbranch_scc1 K2_GO")
    e("s_sleep 2")
    e("s_add_u32 s63, s63, 1")
    e("s_cmp_lt_u32 s63, 0x100000")
    e("s_cbranch_scc1 K2_POLL")
    e.label("K2_GO")
    stamp(e, 3)
    e("s_mul_i32 s61, s21, 40")
    e("s_lshl_b32 s61, s61, 10")
    e(f"s_add_u32 s61, s61, {OBUF}")
    e("s_lshl_b32 s3, s20, 11")
    e("s_add_u32 s63, s61, s3")
    e("s_add_u32 s63, s63, 32768")
    e("s_lshl_b32 s3, s20, 13")
    e("s_add_u32 s61, s61, s3")
    e("s_add_u32 s56, s61, 4096")
    XO = lambda k: 40 + (k % 5) * 4
    WS_ = lambda k: 16 if k % 2 == 0 else 60
    def xld(k):
        if k < 8: e(f"buffer_load_dwordx4 {vr(XO(k),4)}, v12, s[28:31], {'s61' if k < 4 else 's56'} offen offset:{(k%4)*1024} sc1")
        else:     e(f"buffer_load_dwordx4 {vr(XO(k),4)}, v12, s[28:31], s63 offen offset:{(k-8)*1024} sc1")
    for k in range(5): xld(k)
    for k in range(10):
        if k + 1 < 10:
            if k + 1 >= NS: e(f"s_waitcnt vmcnt({(min(9,k+4)-(k+1))*6 + 1})")
            rdw(k + 1)
        if k == 0:
            e("s_waitcnt vmcnt(0)")
            stamp(e, 7)
        elif k >= 5: e(f"s_waitcnt vmcnt({(9-k)*6})")
        e(f"s_waitcnt lgkmcnt({10 if k + 1 < 10 else 0})")
        for nt in range(5):
            e(f"v_mfma_f32_32x32x16_bf16 {vr(80+nt*16,16)}, {vr(WS_(k)+nt*4,4)}, {vr(XO(k),4)}, {vr(80+nt*16,16)}")
        if k + NS < 10:
            wslab(k + NS); xld(k + 5)
    stamp(e, 8)
    reduce_write(e, "s58")
    stamp(e, 9)
    e("s_mul_i32 s57, s20, 5120")
    e(f"s_add_u32 s57, s57, {RING}")
    reduce_read(e, NS*5120, "s57")
    for i in range(10):
        e(f"v_cvt_pk_bf16_f32 v{100+i}, v{80+2*i}, v{80+2*i+1}")
    e("v_and_b32 v13, 31, v0")
    e("v_mul_u32_u24 v13, 0x500, v13")
    e("v_lshrrev_b32 v14, 5, v0")
    e("v_lshl_add_u32 v13, v14, 3, v13")
    e("s_mul_i32 s3, s21, 40960")
    e("s_mul_i32 s62, s22, 320")
    e("s_add_u32 s3, s3, s62")
    e("s_mul_i32 s62, s20, 80")
    e("s_add_u32 s3, s3, s62")
    for q in range(5):
        e(f"buffer_store_dwordx2 {vr(100+2*q,2)}, v13, s[40:43], s3 offen offset:{q*16}")
    stamp(e, 4)
    stamp_flush(e, 5, 1, "s79", 13)
    e.label("K2_END")
    e("s_endpgm")
    return name, 168, RING + 4*NS*5120 + 64, 256, 768

def gen_k3(e):
    name = "k3_kernel"
    kernel_head(e, name)
    e("s_cmp_ge_u32 s2, 256")
    e("s_cbranch_scc1 K3_END")
    e("s_load_dwordx2 s[4:5], s[0:1], 32")
    e("s_load_dwordx2 s[6:7], s[0:1], 96")
    e("s_load_dwordx2 s[8:9], s[0:1], 80")
    e("v_lshrrev_b32 v1, 6, v0")
    e("v_and_b32 v0, 63, v0")
    e("s_nop 0")
    e("v_readfirstlane_b32 s20, v1")
    e("s_lshr_b32 s21, s2, 2")
    e("s_and_b32 s22, s2, 3")
    e("s_waitcnt lgkmcnt(0)")
    srd(e, 28, 6, WS_END)
    srd(e, 32, 4, 819200)
    srd(e, 36, 8, 2621440)
    stamp(e, 0)
    NS = 7
    e(f"s_mul_i32 s58, s20, {NS*5120}")
    e("s_mov_b32 s59, 1280")
    gemm_addr_setup(e, "s58", type2=True)
    e("s_mul_i32 s3, s2, 20480")
    e("s_mul_i32 s62, s20, 5120")
    e("s_add_u32 s3, s3, s62")
    e(f"s_add_u32 s3, s3, {BBUF}")
    e("s_add_u32 s62, s3, 4096")
    for q in range(5):
        if q < 4:
            e(f"buffer_load_dwordx4 {vr(160+q*4,4)}, v12, s[28:31], s3 offen offset:{q*1024}")
        else:
            e(f"buffer_load_dwordx4 {vr(160+q*4,4)}, v12, s[28:31], s62 offen")
    e("v_and_b32 v13, 31, v0")
    e("v_lshlrev_b32 v13, 2, v13")
    e("s_lshl_b32 s3, s21, 7")
    e(f"s_add_u32 s3, s3, {GBUF}")
    e("buffer_load_dword v180, v13, s[28:31], s3 offen")
    e("s_mul_i32 s60, s22, 320")
    e("s_mul_i32 s3, s20, 204800")
    e("s_add_u32 s60, s60, s3")
    e("s_mul_i32 s61, s21, 40")
    e("s_lshl_b32 s61, s61, 10")
    e(f"s_add_u32 s61, s61, {OBUF}")
    e("s_lshl_b32 s3, s20, 13")
    e("s_add_u32 s61, s61, s3")
    e("s_mul_i32 s3, s20, 6144")
    e("s_sub_u32 s56, 32768, s3")
    ks = [(0, k*20*1280, k*1024) for k in range(8)]
    ks += [(1, (k*80+16)*1280, None) for k in range(2)]
    ks2 = []
    for (a, b, c) in ks:
        ks2.append((a, b, c))
    e("s_add_u32 s55, s56, 1024")
    ks2[8] = (1, ks[8][1], "s56"); ks2[9] = (1, ks[9][1], "s55")
    stamp(e, 1)
    splitk_gemm(e, "K3", ks2, NS, 32, 28, "s58")
    stamp(e, 2)
    reduce_write(e, "s58")
    stamp(e, 3)
    e("s_mul_i32 s57, s20, 5120")
    reduce_read(e, NS*5120, "s57", wait="vmcnt(0) lgkmcnt(0)")
    e("v_sub_f32 v181, 1.0, v180")
    for i in range(20):
        e(f"v_mul_f32 v{160+i}, v181, v{160+i}")
        e(f"v_fma_f32 v{80+i}, v180, v{80+i}, v{160+i}")
    for i in range(10):
        e(f"v_cvt_pk_bf16_f32 v{100+i}, v{80+2*i}, v{80+2*i+1}")
    e("v_and_b32 v13, 31, v0")
    e("v_mul_u32_u24 v13, 0x500, v13")
    e("v_lshrrev_b32 v14, 5, v0")
    e("v_lshl_add_u32 v13, v14, 3, v13")
    e("s_mul_i32 s3, s21, 40960")
    e("s_mul_i32 s62, s22, 320")
    e("s_add_u32 s3, s3, s62")
    e("s_mul_i32 s62, s20, 80")
    e("s_add_u32 s3, s3, s62")
    for q in range(5):
        e(f"buffer_store_dwordx2 {vr(100+2*q,2)}, v13, s[36:39], s3 offen offset:{q*16}")
    stamp(e, 4)
    stamp_flush(e, 5, 2, "s20", 13)
    e.label("K3_END")
    e("s_endpgm")
    return name, 184, 4*NS*5120, 256, 256
```

```python
from common import *
from k23 import CNT
import math
QSCALE = math.log2(math.e) / math.sqrt(20.0)
import struct
def f2u(f): return struct.unpack('<I', struct.pack('<f', f))[0]

def gen_k1(e):
    name = "gated_mix__grouped_kv_mqa__glu_gated_reglu__prompt_kernel"
    kernel_head(e, name)
    e("s_cmp_ge_u32 s2, 256")
    e("s_cbranch_scc1 K2_END")
    e("s_load_dwordx4 s[4:7], s[0:1], 0")
    e("s_load_dwordx4 s[8:11], s[0:1], 16")
    e("s_load_dwordx4 s[12:15], s[0:1], 48")
    e("s_load_dwordx2 s[16:17], s[0:1], 72")
    e("s_load_dwordx2 s[18:19], s[0:1], 96")
    e("s_load_dwordx2 s[60:61], s[0:1], 32")
    e("s_load_dwordx2 s[62:63], s[0:1], 64")
    e("s_load_dwordx2 s[64:65], s[0:1], 88")
    e("v_lshrrev_b32 v1, 6, v0")
    e("v_and_b32 v0, 63, v0")
    e("s_nop 0")
    e("v_readfirstlane_b32 s20, v1")
    e("s_nop 3")
    e("s_mov_b32 s79, s20")
    e("s_and_b32 s3, s2, 7")
    e("s_lshr_b32 s21, s2, 3")
    e("s_and_b32 s22, s3, 1")
    e("s_lshl_b32 s22, s22, 3")
    e("s_and_b32 s23, s21, 7")
    e("s_add_u32 s22, s22, s23")
    e("s_lshr_b32 s23, s3, 1")
    e("s_lshl_b32 s23, s23, 2")
    e("s_lshr_b32 s21, s21, 3")
    e("s_add_u32 s23, s23, s21")
    e("s_waitcnt lgkmcnt(0)")
    srd(e, 24, 4, 2621440)
    srd(e, 28, 18, WS_END)
    stamp(e, 0)
    e("s_cmp_eq_u32 s23, 15")
    e("s_cbranch_scc1 K1_ROLE_C")
    e("s_cmp_ge_u32 s23, 12")
    e("s_cbranch_scc1 K1_SETUP_B")
    e("s_lshl_b32 s21, s23, 8")
    e("s_sub_u32 s3, 1966080, s21")
    srd(e, 32, 12, "s3", add="s21")
    srd(e, 36, 14, "s3", add="s21")
    e("s_mov_b32 s40, 3072")
    e("s_branch K1_GEMM")
    e.label("K1_SETUP_B")
    e("s_sub_u32 s21, s23, 12")
    e("s_lshl_b32 s21, s21, 9")
    e("s_sub_u32 s3, 819200, s21")
    srd(e, 32, 6, "s3", add="s21")
    e("s_add_u32 s21, s21, 256")
    e("s_sub_u32 s3, 819200, s21")
    srd(e, 36, 6, "s3", add="s21")
    e("s_mov_b32 s40, 1280")
    e.label("K1_GEMM")
    e("s_mov_b32 s56, 1")
    e("s_cmp_ge_u32 s20, 8")
    e("s_cbranch_scc1 K1_HELP")
    e("s_lshl_b32 s41, s40, 2")
    e("s_lshl_b32 s44, s40, 6")
    e("s_lshl_b32 s45, s40, 3")
    e("s_mul_i32 s45, s45, s20")
    e("s_mul_i32 s46, s22, 163840")
    e("s_lshl_b32 s47, s20, 10")
    e("s_lshl_b32 s48, s20, 11")
    e("s_add_u32 s48, s48, 16384")
    e("s_lshr_b32 s49, s20, 2")
    e("s_and_b32 s50, s20, 3")
    e("s_and_b32 s51, s20, 1")
    e("v_lshrrev_b32 v3, 3, v0")
    e("s_lshl_b32 s3, s20, 3")
    e("v_add_u32 v3, s3, v3")
    e("v_mul_u32_u24 v3, 0x500, v3")
    e("v_lshrrev_b32 v4, 4, v0")
    e("s_lshl_b32 s3, s51, 2")
    e("v_add_u32 v4, s3, v4")
    e("v_and_b32 v4, 7, v4")
    e("v_and_b32 v5, 7, v0")
    e("v_xor_b32 v4, v4, v5")
    e("v_lshl_add_u32 v2, v4, 4, v3")
    e("v_lshrrev_b32 v4, 4, v0")
    e("v_mul_lo_u32 v3, v4, s40")
    e("v_lshlrev_b32 v4, 2, v4")
    e("v_and_b32 v5, 15, v0")
    e("v_xor_b32 v4, v4, v5")
    e("v_lshl_add_u32 v1, v4, 4, v3")
    e("s_mov_b32 s52, 0")
    def dma():
        g = []
        if os.environ.get("LOADER"): return g
        for m in range(2):
            g.append([f"s_add_u32 s53, s52, s47",
                      f"s_add_u32 m0, s53, {m*8192}",
                      f"s_add_u32 s3, s46, {m*81920}",
                      f"buffer_load_dwordx4 v2, s[24:27], s3 offen lds"])
        for ee in range(2):
            for u in range(2):
                g.append([f"s_add_u32 s53, s52, s48",
                          f"s_add_u32 m0, s53, {u*16384 + ee*1024}",
                          (f"s_add_u32 s3, s45, s41" if ee else "s_mov_b32 s3, s45"),
                          f"buffer_load_dwordx4 v1, s[{32+4*u}:{35+4*u}], s3 offen lds"])
        if g: g[-1] += ["s_add_u32 s45, s45, s44", "s_add_u32 s46, s46, 128",
                  "s_add_u32 s52, s52, 49152", "s_cmp_ge_u32 s52, 147456", "s_cselect_b32 s3, 147456, 0", "s_sub_u32 s52, s52, s3"]
        return g
    for st in range(2):
        for grp in dma():
            for ins in grp: e(ins)
        if st < 1 and not os.environ.get("LOADER"): e("s_barrier")
    if os.environ.get("LOADER"):
        e("v_lshrrev_b32 v3, 3, v0"); e("v_mul_u32_u24 v3, 0x500, v3"); e("v_and_b32 v4, 7, v0"); e("v_lshl_add_u32 v3, v4, 4, v3")
        e("s_and_b32 s3, s23, 3"); e("s_lshl_b32 s3, s3, 5"); e("s_lshl_b32 s53, s50, 3"); e("s_add_u32 s3, s3, s53")
        e("s_mul_i32 s3, s3, 1280"); e("s_add_u32 s3, s3, s46"); e("s_lshl_b32 s53, s49, 7"); e("s_add_u32 s3, s3, s53")
        e("v_lshrrev_b32 v4, 4, v0"); e("v_mul_lo_u32 v4, v4, s40"); e("v_and_b32 v5, 15, v0"); e("v_lshl_add_u32 v4, v5, 4, v4")
        e("s_and_b32 s53, s22, 7"); e("s_lshl_b32 s53, s53, 3"); e("s_lshl_b32 s55, s51, 2"); e("s_add_u32 s53, s53, s55")
        e("s_lshl_b32 s55, s49, 6"); e("s_add_u32 s53, s53, s55"); e("s_mul_i32 s53, s53, s40")
        e("s_lshl_b32 s55, s40, 7")
        e("s_bitcmp1_b32 s20, 1")
        for r in range(4): e(f"s_cselect_b32 s{72+r}, s{36+r}, s{32+r}")
        if os.environ.get("PF2"): e("s_barrier")
        NUP = int(os.environ.get("NUP", "5"))
        e(f"s_add_u32 s57, s3, {NUP*256}")
        e("v_mov_b32 v25, v3"); e("v_mov_b32 v26, v4"); e("s_mov_b32 s58, s55")
        for j in range(0 if os.environ.get('NOPF') else NUP):
            e(f"buffer_load_dwordx4 v[160:163], v3, s[24:27], s3 offen offset:{j*256}")
            e(f"buffer_load_dwordx4 v[164:167], v4, s[72:75], s53 offen")
            e("s_add_u32 s53, s53, s55")
        if not os.environ.get("PF2"): e("s_barrier")
    e("v_and_b32 v3, 31, v0")
    e("s_lshl_b32 s3, s49, 6")
    e("v_add_u32 v3, s3, v3")
    e("v_lshrrev_b32 v4, 1, v3")
    e("v_and_b32 v4, 7, v4")
    e("v_lshrrev_b32 v5, 5, v0")
    e("v_lshlrev_b32 v3, 7, v3")
    for ks in range(4):
        e(f"v_or_b32 v24, {ks*2}, v5")
        e("v_xor_b32 v24, v24, v4")
        e(f"v_lshl_add_u32 v{6+ks}, v24, 4, v3")
        e(f"v_mov_b32 v{11+ks}, v{6+ks}")
    e("v_bfe_u32 v3, v0, 2, 2")
    e("v_lshl_add_u32 v4, v5, 3, v3")
    e("v_lshlrev_b32 v4, 8, v4")
    e("v_bfe_u32 v24, v0, 4, 1")
    e("v_lshl_add_u32 v4, v24, 5, v4")
    e("v_and_b32 v24, 3, v0")
    e("v_lshl_add_u32 v4, v24, 3, v4")
    e("v_xor_b32 v24, s50, v3")
    e("v_lshl_add_u32 v10, v24, 6, v4")
    e("v_mov_b32 v15, v10")
    e("v_add_u32 v16, 49152, v6")
    e("v_add_u32 v17, 49152, v10")
    e("s_mov_b32 s54, 49152")
    ACC = lambda u, rt: 96 + (u*2+rt)*16
    XF = lambda p, rt: 32 + p*16 + rt*4
    WF = lambda p, u: 32 + p*16 + 8 + u*4
    for i in range(64): e(f"v_mov_b32 v{96+i}, 0")
    def reads(ks, nxt=False):
        p = ks & 1
        vx = 16 if nxt else 11 + ks
        vw = 17 if nxt else 15
        g = []
        for rt in range(2):
            g.append([f"ds_read_b128 {vr(XF(p,rt),4)}, v{vx} offset:{rt*4096}"])
        for u in range(2):
            for uu in range(2):
                g.append([f"ds_read_b64_tr_b16 {vr(WF(p,u)+uu*2,2)}, v{vw} offset:{16384+u*16384+(ks*16+uu*4)*256}"])
        return g
    stamp(e, 1)
    if not os.environ.get("LOADER"): e("s_waitcnt vmcnt(6)")
    e("s_barrier")
    stamp(e, 2)
    for grp in reads(0):
        for ins in grp: e(ins)
    for grp in dma():
        for ins in grp: e(ins)
    def stage(with_dma, first_dma_part):
        d = dma() if with_dma else []
        for ks in range(4):
            p = ks & 1
            if ks == 3:
                e(f"s_waitcnt vmcnt({6 if with_dma else 0}) lgkmcnt(0)" if not os.environ.get("LOADER") else "s_waitcnt lgkmcnt(0)")
                e("s_barrier")
                others = reads(0, nxt=True)
                others += d[0:2]
            else:
                e("s_waitcnt lgkmcnt(0)")
                others = reads(ks+1)
            mf = []
            for rt in range(2):
                for u in range(2):
                    a = ACC(u, rt)
                    mf.append(f"v_mfma_f32_32x32x16_bf16 {vr(a,16)}, {vr(WF(p,u),4)}, {vr(XF(p,rt),4)}, {vr(a,16)}")
            interleave(e, mf, others)
            if ks == 0 and with_dma and os.environ.get("LOADER") and int(os.environ.get("NUP", "5")) < 5:
                e(f"s_cmp_lt_u32 s55, {5 - int(os.environ['NUP'])}")
                e("s_cbranch_scc0 K1_NPF")
                e("buffer_load_dwordx4 v[160:163], v25, s[24:27], s57 offen")
                e("buffer_load_dwordx4 v[164:167], v26, s[72:75], s53 offen")
                e("s_add_u32 s53, s53, s58")
                e("s_add_u32 s57, s57, 256")
                e.label("K1_NPF")
            if ks == 3:
                for grp in d[2:]:
                    for ins in grp: e(ins)
        for ks in range(4):
            e(f"v_add_u32 v{11+ks}, s54, v{6+ks}")
        e("v_mov_b32 v15, v17")
        e("s_add_u32 s54, s54, 49152"); e("s_cmp_ge_u32 s54, 147456"); e("s_cselect_b32 s3, 147456, 0"); e("s_sub_u32 s54, s54, s3")
        e("v_add_u32 v16, s54, v6")
        e("v_add_u32 v17, s54, v10")
    e("s_mov_b32 s55, 0")
    e.l.append(".p2align 6")
    e.label("K1_L1")
    stage(True, 0)
    e("s_add_u32 s55, s55, 1")
    e("s_cmp_lt_u32 s55, 7")
    e("s_cbranch_scc1 K1_L1")
    e.label("K1_L2")
    stage(False, 0)
    e("s_add_u32 s55, s55, 1")
    e("s_cmp_lt_u32 s55, 10")
    e("s_cbranch_scc1 K1_L2")
    stamp(e, 3)
    e("s_nop 15")
    e("s_cmp_ge_u32 s23, 12")
    e("s_cbranch_scc1 K1_EPI_B")
    e("s_lshl_b32 s3, s22, 2")
    e("s_lshl_b32 s21, s49, 1")
    e("s_add_u32 s3, s3, s21")
    e("s_mul_i32 s3, s3, 96")
    e("s_lshl_b32 s21, s23, 3")
    e("s_add_u32 s3, s3, s21")
    e("s_lshl_b32 s21, s50, 1")
    e("s_add_u32 s3, s3, s21")
    e("s_lshl_b32 s3, s3, 10")
    e(f"s_add_u32 s3, s3, {HBUF}")
    e(f"s_add_u32 s21, s3, {96*1024}")
    e("v_lshlrev_b32 v1, 4, v0")
    for rt in range(2):
        g = ACC(0, rt); u_ = ACC(1, rt)
        for i in range(16):
            e(f"v_max_f32 v{g+i}, 0, v{g+i}")
            e(f"v_mul_f32 v{g+i}, v{g+i}, v{u_+i}")
        d = 64 + rt*8
        for i in range(8):
            e(f"v_cvt_pk_bf16_f32 v{d+i}, v{g+2*i}, v{g+2*i+1}")
        for t in range(2):
            e(f"buffer_store_dwordx4 {vr(d+4*t,4)}, v1, s[28:31], {'s3' if rt==0 else 's21'} offen offset:{t*1024} sc1")
    stamp(e, 4)
    stamp_flush(e, 5, 0, "s20", 2)
    e("s_mov_b64 exec, -1")
    e("s_branch P1_DONE")
    e.label("K1_EPI_B")
    e("s_sub_u32 s3, s23, 12")
    e("s_lshl_b32 s3, s3, 6")
    e("s_lshl_b32 s21, s50, 3")
    e("s_add_u32 s3, s3, s21")
    e("s_lshl_b32 s3, s3, 14")
    e("s_lshl_b32 s21, s22, 7")
    e("s_lshl_b32 s51, s49, 6")
    e("s_add_u32 s21, s21, s51")
    e("s_lshl_b32 s21, s21, 3")
    e("s_add_u32 s3, s3, s21")
    e("v_and_b32 v1, 31, v0")
    e("v_lshlrev_b32 v1, 3, v1")
    e("v_lshrrev_b32 v2, 5, v0")
    e("v_lshl_add_u32 v1, v2, 14, v1")
    e(f"s_mov_b32 s51, 0x{f2u(QSCALE):08x}")
    for u in range(2):
        if u == 1:
            e("s_cmp_eq_u32 s23, 14")
            e("s_cbranch_scc1 P1_DONE")
        for rt in range(2):
            a = ACC(u, rt)
            for i in range(16):
                e(f"v_mul_f32 v{a+i}, s51, v{a+i}")
            d = 64 + (u*2+rt)*8
            for i in range(8):
                e(f"v_cvt_pk_bf16_f32 v{d+i}, v{a+2*i}, v{a+2*i+1}")
            for g in range(4):
                e(f"s_add_u32 s21, s3, {(u*32+2*g)*16384}")
                e(f"buffer_store_dwordx2 {vr(d+2*g,2)}, v1, s[28:31], s21 offen offset:{rt*256} sc1")
    e("s_branch P1_DONE")

    e.label("K1_ROLE_C")
    e("s_mov_b32 s56, 0")
    e("s_cmp_ge_u32 s20, 8")
    e("s_cbranch_scc1 K1_HELP")
    srd(e, 32, 8, 25600)
    srd(e, 36, 10, 25600)
    srd(e, 40, 16, 1280)
    e("s_and_b32 s3, s20, 3")
    e("s_lshl_b32 s21, s22, 2")
    e("s_add_u32 s21, s21, s3")
    e("s_lshl_b32 s44, s20, 6")
    e("v_add_u32 v3, s44, v0")
    e("v_lshlrev_b32 v4, 2, v3")
    for i in range(13):
        e(f"buffer_load_dword v{8+i}, v4, s[32:35], 0 offen offset:{(i%2)*2048}")
        e(f"buffer_load_dword v{33+i}, v4, s[36:39], 0 offen offset:{(i%2)*2048}")
        if i % 2 == 1: e("v_add_u32 v4, 4096, v4")
    e("v_lshlrev_b32 v4, 1, v3")
    for i in range(2):
        e(f"buffer_load_ushort v{58+i}, v4, s[40:43], 0 offen offset:{i*1024}")
    e("s_and_b32 s51, s20, 1")
    e("v_lshrrev_b32 v5, 3, v0")
    e("s_lshl_b32 s3, s20, 3")
    e("v_add_u32 v5, s3, v5")
    e("v_mul_u32_u24 v5, 0x500, v5")
    e("v_lshrrev_b32 v6, 4, v0")
    e("s_lshl_b32 s3, s51, 2")
    e("v_add_u32 v6, s3, v6")
    e("v_and_b32 v6, 7, v6")
    e("v_and_b32 v7, 7, v0")
    e("v_xor_b32 v6, v6, v7")
    e("v_lshl_add_u32 v62, v6, 4, v5")
    e("s_mul_i32 s46, s22, 163840")
    e("s_lshl_b32 s47, s20, 10")
    def cdma(kb):
        for m in range(2):
            e(f"s_add_u32 m0, s47, {81920 + (kb%4)*16384 + m*8192}")
            e(f"s_add_u32 s3, s46, {m*81920 + kb*128}")
            e("buffer_load_dwordx4 v62, s[24:27], s3 offen lds")
    for kb in range(3): cdma(kb)
    e("v_mov_b32 v144, 0"); e("v_mov_b32 v145, 0"); e("v_mov_b32 v146, 0"); e("v_mov_b32 v147, 0")
    e("v_lshlrev_b32 v4, 4, v3")
    for i in range(8):
        e(f"ds_write_b128 v4, v[144:147] offset:{i*8192}")
    e("v_add_u32 v5, 65536, v4")
    for i in range(2):
        e(f"ds_write_b128 v5, v[144:147] offset:{i*8192}")
    e("s_waitcnt lgkmcnt(0)")
    e("s_barrier")
    e("s_mov_b32 s3, 0xCCCCCCCD")
    e("s_waitcnt vmcnt(6)")
    for i in range(13):
        e(f"v_add_u32 v4, {512*i}, v3")
        e("v_mul_hi_u32 v5, v4, s3")
        e("v_lshrrev_b32 v5, 3, v5")
        e("v_mul_u32_u24 v6, 10, v5")
        e("v_sub_u32 v6, v4, v6")
        e("v_lshlrev_b32 v5, 6, v5")
        e("v_lshl_add_u32 v5, v6, 2, v5")
        if i == 12:
            e("v_cmp_gt_u32 vcc, 256, v3")
            e("s_and_saveexec_b64 s[44:45], vcc")
        e(f"ds_write_b32 v5, v{8+i}")
        e(f"ds_write_b32 v5, v{33+i} offset:40960")
        if i == 12:
            e("s_mov_b64 exec, s[44:45]")
    e("v_lshlrev_b32 v4, 6, v3")
    e("ds_write_b16 v4, v58 offset:44")
    e("v_cmp_gt_u32 vcc, 128, v3")
    e("s_and_saveexec_b64 s[44:45], vcc")
    e(f"ds_write_b16 v4, v59 offset:{44+32768}")
    e("s_mov_b64 exec, s[44:45]")
    e("s_waitcnt lgkmcnt(0)")
    e("s_barrier")
    e("v_bfe_u32 v3, v0, 2, 2")
    e("v_lshrrev_b32 v5, 5, v0")
    e("v_lshl_add_u32 v4, v5, 3, v3")
    e("v_lshlrev_b32 v4, 6, v4")
    e("v_bfe_u32 v6, v0, 4, 1")
    e("v_lshl_add_u32 v4, v6, 5, v4")
    e("v_and_b32 v6, 3, v0")
    e("v_lshl_add_u32 v4, v6, 3, v4")
    e(f"s_mul_i32 s48, s21, {KV_TILE}")
    e(f"s_add_u32 s48, s48, {KVBUF}")
    e("v_lshlrev_b32 v1, 4, v0")
    e("v_lshlrev_b32 v2, 3, v0")
    e("v_mov_b32 v60, 0x3f803f80")
    e("v_mov_b32 v61, 0")
    KA = 144
    e("v_and_b32 v5, 31, v0")
    e("s_and_b32 s44, s20, 3")
    e("s_lshl_b32 s44, s44, 5")
    e("v_add_u32 v5, s44, v5")
    e("v_lshrrev_b32 v6, 1, v5")
    e("v_and_b32 v6, 7, v6")
    e("v_lshrrev_b32 v7, 5, v0")
    e("v_lshlrev_b32 v5, 7, v5")
    e("v_add_u32 v5, 81920, v5")
    for ks in range(4):
        e(f"v_or_b32 v24, {ks*2}, v7")
        e("v_xor_b32 v24, v24, v6")
        e(f"v_lshl_add_u32 v{64+ks}, v24, 4, v5")
    e("s_cmp_ge_u32 s20, 4")
    e("s_cbranch_scc1 K1_C_V")
    def body(isV):
        for kb in range(10):
            e(f"s_waitcnt vmcnt({2*min(2, 9-kb)})")
            e("s_barrier")
            if kb + 3 < 10: cdma(kb+3)
            for ks in range(4):
                k = kb*4 + ks
                e(f"ds_read_b128 {vr(72+ks*4,4)}, v{64+ks} offset:{(kb%4)*16384}")
                e(f"ds_read_b64_tr_b16 {vr(8+ks*4,2)}, v4 offset:{k*1024}")
                e(f"ds_read_b64_tr_b16 {vr(10+ks*4,2)}, v4 offset:{k*1024+256}")
            for ks in range(4):
                e(f"s_waitcnt lgkmcnt({9-3*ks})")
                ck = "0" if (kb == 0 and ks == 0) else vr(KA, 16)
                if isV: e(f"v_mfma_f32_32x32x16_bf16 {vr(KA,16)}, {vr(72+ks*4,4)}, {vr(8+ks*4,4)}, {ck}")
                else:   e(f"v_mfma_f32_32x32x16_bf16 {vr(KA,16)}, {vr(8+ks*4,4)}, {vr(72+ks*4,4)}, {ck}")
        e("s_nop 15")
    body(False)
    for i in range(6):
        e(f"v_cvt_pk_bf16_f32 v{8+i}, v{KA+2*i}, v{KA+2*i+1}")
    e(f"v_mul_f32 v20, 0xbfb8aa3b, v{KA+10}")
    e("v_exp_f32 v20, v20")
    e("s_nop 0")
    e("v_add_f32 v20, 1.0, v20")
    e("v_rcp_f32 v20, v20")
    e("v_cmp_le_u32 vcc, 32, v0")
    e("s_nop 1")
    e("v_cndmask_b32 v12, v12, v60, vcc")
    e("v_cndmask_b32 v13, v13, v61, vcc")
    e("buffer_store_dwordx4 v[8:11], v1, s[28:31], s48 offen sc1")
    e("buffer_store_dwordx2 v[12:13], v2, s[28:31], s48 offen offset:1024 sc1")
    e("s_lshl_b32 s44, s21, 7")
    e(f"s_add_u32 s44, s44, {GBUF - 128}")
    e("v_lshlrev_b32 v23, 2, v0")
    e("s_and_saveexec_b64 s[46:47], vcc")
    e("buffer_store_dword v20, v23, s[28:31], s44 offen sc1")
    e("s_mov_b64 exec, -1")
    e("s_branch P1_DONE")
    e.label("K1_C_V")
    e("v_add_u32 v4, 40960, v4")
    body(True)
    e("v_and_b32 v23, 31, v0")
    e("v_cmp_eq_u32 vcc, 20, v23")
    for i in range(8):
        e(f"v_cvt_pk_bf16_f32 v{24+i}, v{KA+2*i}, v{KA+2*i+1}")
    for i in range(8):
        e(f"v_cndmask_b32 v{24+i}, v{24+i}, v60, vcc")
    e("buffer_store_dwordx4 v[24:27], v1, s[28:31], s48 offen offset:1536 sc1")
    e("buffer_store_dwordx4 v[28:31], v1, s[28:31], s48 offen offset:2560 sc1")
    stamp(e, 4)
    stamp_flush(e, 5, 0, "s20", 2)
    e("s_mov_b64 exec, -1")
    e("s_branch P1_DONE")
    e.label("K1_HELP")
    e("s_sub_u32 s20, s20, 8")
    srd(e, 48, 60, 819200)
    srd(e, 52, 62, 1966080)
    e("s_lshl_b32 s3, s2, 2")
    e("s_add_u32 s3, s3, s20")
    e("s_lshl_b32 s3, s3, 10")
    e("s_add_u32 s44, s3, 0x100000")
    e("s_add_u32 s45, s3, 0x200000")
    e("v_lshlrev_b32 v1, 4, v0")
    srd(e, 68, 64, 256)
    e("v_mov_b32 v2, 0")
    e("s_or_b32 s46, s2, s20")
    e("s_cmp_lg_u32 s46, 0")
    e("s_cbranch_scc1 K1_T0")
    e("s_memrealtime s[46:47]")
    e("s_waitcnt lgkmcnt(0)")
    e("s_or_b32 s46, s46, 1")
    e("v_mov_b32 v3, s46")
    e("s_mov_b64 exec, 1")
    e("buffer_store_dword v3, v2, s[68:71], 0 offen sc1")
    e("s_mov_b64 exec, -1")
    e.label("K1_T0")
    if os.environ.get("LOADER"):
        e("s_cmp_eq_u32 s56, 0")
        e("s_cbranch_scc1 K1_HC")
        e("s_lshl_b32 s41, s40, 2"); e("s_lshl_b32 s42, s40, 3"); e("s_add_u32 s43, s41, s42")
        e("s_lshl_b32 s58, s40, 6")
        e("s_lshl_b32 s59, s40, 4"); e("s_mul_i32 s59, s59, s20")
        e("s_mul_i32 s46, s22, 163840")
        e("s_lshl_b32 s47, s20, 10"); e("s_lshl_b32 s72, s20, 12"); e("s_add_u32 s72, s72, 16384")
        e("s_and_b32 s73, s20, 1")
        e("v_lshrrev_b32 v13, 3, v0"); e("s_lshl_b32 s74, s20, 3"); e("v_add_u32 v13, s74, v13"); e("v_mul_u32_u24 v13, 0x500, v13")
        e("v_lshrrev_b32 v14, 4, v0"); e("s_lshl_b32 s74, s73, 2"); e("v_add_u32 v14, s74, v14"); e("v_and_b32 v14, 7, v14")
        e("v_and_b32 v15, 7, v0"); e("v_xor_b32 v14, v14, v15"); e("v_lshl_add_u32 v16, v14, 4, v13")
        e("v_lshrrev_b32 v14, 4, v0"); e("v_mul_lo_u32 v13, v14, s40"); e("v_lshlrev_b32 v14, 2, v14")
        e("v_and_b32 v15, 15, v0"); e("v_xor_b32 v14, v14, v15"); e("v_lshl_add_u32 v17, v14, 4, v13")
        def ld(kb):
            base = (kb % 3) * 49152
            for m in range(4):
                e(f"s_add_u32 m0, s47, {base + m*4096}")
                e(f"s_add_u32 s74, s46, {m*40960 + kb*128}")
                e("buffer_load_dwordx4 v16, s[24:27], s74 offen lds")
            for ee in range(4):
                for u in range(2):
                    e(f"s_add_u32 m0, s72, {base + u*16384 + ee*1024}")
                    e(f"s_add_u32 s74, s59, s{40+ee}" if ee else "s_mov_b32 s74, s59")
                    e(f"buffer_load_dwordx4 v17, s[{32+4*u}:{35+4*u}], s74 offen lds")
            e("s_add_u32 s59, s59, s58")

        if os.environ.get("PF2"):
            ld(0); e("s_barrier"); e("s_waitcnt vmcnt(0)"); e("s_barrier"); ld(1); ld(2)
        else:
            e("s_barrier"); ld(0); ld(1); e("s_waitcnt vmcnt(12)"); e("s_barrier"); ld(2)
        for kb in range(8):
            e(f"s_waitcnt vmcnt({(15 if kb in (2, 3) else 12) if kb + 2 <= 9 else 0})")
            e("s_barrier")
            if kb + 3 <= 9: ld(kb + 3)
            if kb == 1:
                e("buffer_load_dwordx4 v[4:7], v1, s[52:55], s3 offen")
                e("buffer_load_dwordx4 v[8:11], v1, s[52:55], s44 offen")
                e("buffer_load_dwordx4 v[20:23], v1, s[48:51], s3 offen")
        e("s_waitcnt vmcnt(0)")
        e("s_branch K1_HD")
        e.label("K1_HC")
    srd(e, 32, 12, 1966080)
    srd(e, 36, 14, 1966080)
    srd(e, 40, 6, 819200)
    e("s_barrier")
    e("buffer_load_dwordx4 v[4:7], v1, s[24:27], s3 offen")
    e("buffer_load_dwordx4 v[4:7], v1, s[32:35], s3 offen")
    e("buffer_load_dwordx4 v[4:7], v1, s[36:39], s3 offen")
    e("buffer_load_dwordx4 v[4:7], v1, s[24:27], s44 offen")
    e("buffer_load_dwordx4 v[4:7], v1, s[24:27], s45 offen")
    e("buffer_load_dwordx4 v[4:7], v1, s[40:43], s3 offen")
    e("buffer_load_dwordx4 v[4:7], v1, s[32:35], s44 offen")
    e("buffer_load_dwordx4 v[4:7], v1, s[36:39], s44 offen")
    for i in range(6): e("s_barrier")
    e("buffer_load_dwordx4 v[4:7], v1, s[52:55], s3 offen")
    e("buffer_load_dwordx4 v[8:11], v1, s[52:55], s44 offen")
    e("buffer_load_dwordx4 v[12:15], v1, s[48:51], s3 offen")
    for i in range(3): e("s_barrier")
    e.label("K1_HD")
    e("s_cmp_lg_u32 s20, 0")
    e("s_cbranch_scc1 K1_T5")
    e("s_mov_b32 s47, 0")
    e.label("K1_T4")
    e("buffer_load_dword v3, v2, s[68:71], 0 offen sc1")
    e("s_waitcnt vmcnt(0)")
    e("v_readfirstlane_b32 s46, v3")
    e("s_add_u32 s47, s47, 1")
    e("s_cmp_ge_u32 s47, 0x100000")
    e("s_cbranch_scc1 K1_T6")
    e("s_cmp_eq_u32 s46, 0")
    e("s_cbranch_scc1 K1_T4")
    e.label("K1_T6")
    e(f"v_mov_b32 v2, {CNT}")
    e("ds_write_b32 v2, v3 offset:8")
    e("s_waitcnt lgkmcnt(0)")
    e.label("K1_T5")
    for i in range(2): e("s_barrier")
    e.label("P1_DONE")
    e("s_waitcnt vmcnt(0)")
    e("s_barrier")
    e("s_lshl_b32 s76, s22, 4")
    e("s_add_u32 s76, s76, s23")
    return name, 168, 147456, 256, 768
```

```python
from common import *

RING = 4 * 14336
CNT = RING + 4*5*5120
def div20(e, vdst_q, vdst_r, vsrc, stmp):
    e(f"s_mov_b32 {stmp}, 0xCCCCCCCD")
    e(f"v_mul_hi_u32 v{vdst_q}, v{vsrc}, {stmp}")
    e(f"v_lshrrev_b32 v{vdst_q}, 4, v{vdst_q}")
    e(f"v_mul_u32_u24 v{vdst_r}, 20, v{vdst_q}")
    e(f"v_sub_u32 v{vdst_r}, v{vsrc}, v{vdst_r}")

def splitk_gemm(e, pfx, ksteps, nslab, srdW, srdWS, s_slab, barrier_every=None, barrier_count=0):
    n = len(ksteps)
    XR = lambda k: 40 + (k % nslab) * 4
    def issue(k):
        vs, wo, xo = ksteps[k]
        slab = (k % nslab) * 5120
        e(f"s_add_u32 s62, s60, {wo}")
        for i in range(5):
            e(f"s_add_u32 m0, {s_slab}, {slab + i*1024}")
            e("s_nop 0")
            e(f"buffer_load_dwordx4 v{1+vs*5+i}, {sr(srdW,4)}, s62 offen lds")
        e(f"s_add_u32 s63, s61, {xo}")
        e(f"buffer_load_dwordx4 {vr(XR(k),4)}, v12, {sr(srdWS,4)}, s63 offen sc1")
    pre = min(nslab - 1, n)
    for k in range(pre):
        issue(k)
    nb = 0
    for k in range(n):
        if barrier_every and k % barrier_every == 0 and nb < barrier_count:
            e("s_barrier"); nb += 1
        issued = min(n, k + nslab - 1)
        e(f"s_waitcnt vmcnt({(issued - k - 1) * 6})")
        slab = (k % nslab) * 5120
        for nt in range(5):
            for uu in range(2):
                e(f"ds_read_b64_tr_b16 {vr(16+nt*4+uu*2,2)}, v11 offset:{slab + uu*2560 + nt*64}")
        if k + nslab - 1 < n:
            issue(k + nslab - 1)
        for nt in range(5):
            e(f"s_waitcnt lgkmcnt({8 - 2*nt})")
            cc = "0" if k == 0 else vr(80+nt*16, 16)
            e(f"v_mfma_f32_32x32x16_bf16 {vr(80+nt*16,16)}, {vr(16+nt*4,4)}, {vr(XR(k),4)}, {cc}")
    return nb

def gemm_addr_setup(e, s_slab, type2=False):
    for i in range(5):
        e(f"v_add_u32 v13, {i*64}, v0")
        div20(e, 14, 15, 13, "s62")
        e("v_lshlrev_b32 v15, 4, v15")
        e(f"v_mad_u32_u24 v{1+i}, v14, s59, v15")
        if type2:
            e("v_bfe_u32 v13, v14, 2, 1")
            e("v_lshrrev_b32 v36, 3, v14")
            e("v_lshl_add_u32 v13, v13, 1, v36")
            e("v_mul_u32_u24 v13, 20, v13")
            e("v_and_b32 v36, 3, v14")
            e("v_add_u32 v13, v13, v36")
            e(f"v_mad_u32_u24 v{6+i}, v13, s59, v15")
    e("v_bfe_u32 v13, v0, 2, 2")
    e("v_lshrrev_b32 v14, 5, v0")
    e("v_lshl_add_u32 v13, v14, 2, v13")
    e("v_mul_u32_u24 v13, 320, v13")
    e("v_bfe_u32 v14, v0, 4, 1")
    e("v_lshl_add_u32 v13, v14, 5, v13")
    e("v_and_b32 v14, 3, v0")
    e("v_lshl_add_u32 v13, v14, 3, v13")
    e(f"v_add_u32 v11, {s_slab}, v13")
    e("v_lshlrev_b32 v12, 4, v0")

def reduce_write(e, s_slab):
    e("s_nop 15")
    e(f"v_add_u32 v13, {s_slab}, v12")
    for q in range(20):
        e(f"ds_write_b128 v13, {vr(80+q*4,4)} offset:{q*1024}")
    e("s_waitcnt lgkmcnt(0)")
    e("s_barrier")

def reduce_read(e, area_stride, s_base, wait="lgkmcnt(0)"):
    e(f"v_add_u32 v13, {s_base}, v12")
    e(f"v_add_u32 v14, {2*area_stride}, v13")
    for p in range(4):
        for q in range(5):
            e(f"ds_read_b128 {vr(80+(p*5+q)*4,4)}, v{13 + p//2} offset:{(p%2)*area_stride + q*1024}")
    e(f"s_waitcnt {wait}")
    for p in range(1, 4):
        for i in range(20):
            e(f"v_add_f32 v{80+i}, v{80+i}, v{80+p*20+i}")

def gen_k2(e):
    name = "k2"
    e("s_load_dwordx2 s[4:5], s[0:1], 64")
    e("s_load_dwordx2 s[6:7], s[0:1], 96")
    e("s_load_dwordx2 s[8:9], s[0:1], 32")
    e("s_load_dwordx4 s[12:15], s[0:1], 80")
    e("s_mov_b32 s20, s79")
    e(f"v_mov_b32 v14, {CNT}")
    e("ds_read_b32 v1, v14 offset:8")
    e("s_and_b32 s21, s2, 7")
    e("s_lshl_b32 s21, s21, 3")
    e("s_lshr_b32 s22, s2, 5")
    e("s_add_u32 s21, s21, s22")
    e("s_bfe_u32 s22, s2, 0x20003")
    e("s_waitcnt lgkmcnt(0)")
    srd(e, 28, 6, WS_END)
    e("v_readfirstlane_b32 s77, v1")
    stamp(e, 0)
    e("s_cmp_ge_u32 s20, 8")
    e("s_cbranch_scc1 K2_GEMM")
    def poll(tag, mask):
        e(f"s_mov_b32 s3, {FLAG1}")
        e("s_mov_b32 s63, 0")
        e(f"s_mov_b64 exec, {mask}")
        e.label(f"K2_PL{tag}")
        e("buffer_load_dword v112, v113, s[28:31], s3 offen sc1")
        e("s_waitcnt vmcnt(0)")
        e("v_cmp_ne_u32 vcc, s77, v112")
        e("s_nop 1")
        e(f"s_cbranch_vccz K2_PD{tag}")
        e("s_sleep 1")
        e("s_add_u32 s63, s63, 1")
        e("s_cmp_lt_u32 s63, 0x100000")
        e(f"s_cbranch_scc1 K2_PL{tag}")
        e.label(f"K2_PD{tag}")
        e("s_mov_b64 exec, -1")
    e("v_lshl_add_u32 v113, v0, 4, 15")
    e("s_lshr_b32 s3, s21, 2")
    e("s_lshl_b32 s3, s3, 4")
    e("s_sub_u32 s3, s3, 4")
    e("v_add_u32 v112, s3, v0")
    e("v_cmp_gt_u32 vcc, 16, v0")
    e("s_nop 1")
    e("v_cndmask_b32 v113, v112, v113, vcc")
    e("v_lshlrev_b32 v113, 7, v113")
    e("s_cmp_lg_u32 s20, 7")
    e("s_cbranch_scc1 K2_PX")
    poll("a", "0xffff")
    e.label("K2_PX")
    e("s_barrier")
    import os
    if os.environ.get("NOATTN"): e("s_endpgm")
    S = [16, 32]; O = 48; P = 64; Q1 = 72; Q2 = 76
    K1 = lambda p: 80 + p*8
    K2 = lambda p: 84 + p*8
    V = lambda p, t: 96 + p*8 + t*4
    e("s_lshl_b32 s23, s22, 3")
    e("s_add_u32 s23, s23, s20")
    e("s_mul_i32 s3, s23, 81920")
    e("s_lshl_b32 s24, s21, 8")
    e("s_add_u32 s3, s3, s24")
    e("v_and_b32 v1, 31, v0")
    e("v_lshlrev_b32 v1, 3, v1")
    e("v_lshrrev_b32 v2, 5, v0")
    e("v_lshl_add_u32 v2, v2, 14, v1")
    e("s_add_u32 s24, s3, 32768")
    e("s_add_u32 s25, s3, 65536")
    e("s_mov_b32 s41, s3"); e("s_mov_b32 s42, s24"); e("s_mov_b32 s43, s25")
    e("v_lshlrev_b32 v3, 4, v0")
    e("v_lshlrev_b32 v4, 3, v0")
    e("s_lshl_b32 s26, s20, 11")
    e(f"s_add_u32 s27, s26, {KVBUF}")
    def emit_dma(tag):
        e("s_cmp_eq_u32 s20, 7")
        e(f"s_cbranch_scc1 K2_SK{tag}")
        e("s_mov_b32 m0, s36")
        e("s_add_u32 s3, s37, 1024")
        e("buffer_load_dwordx4 v3, s[28:31], s37 offen sc1 lds")
        e("s_add_u32 m0, s36, 1024")
        e("s_nop 0")
        e("buffer_load_dwordx4 v3, s[28:31], s3 offen sc1 lds")
        e.label(f"K2_SK{tag}")
        e("s_add_u32 s37, s37, 14336")
        e("s_add_u32 s36, s36, 14336")
        e(f"s_cmp_ge_u32 s36, {RING}")
        e(f"s_cselect_b32 s3, {RING}, 0")
        e("s_sub_u32 s36, s36, s3")
    e("s_mov_b32 s36, s26")
    e("s_mov_b32 s37, s27")
    emit_dma("a"); emit_dma("b"); emit_dma("c")
    e("s_cmp_lg_u32 s20, 7")
    e("s_cbranch_scc1 K2_PY")
    poll("b", "0x70000")
    e.label("K2_PY")
    e("s_barrier")
    e(f"buffer_load_dwordx2 {vr(Q1,2)}, v2, s[28:31], s41 offen sc1")
    e(f"buffer_load_dwordx2 {vr(Q1+2,2)}, v2, s[28:31], s42 offen sc1")
    e(f"buffer_load_dwordx2 {vr(Q2,2)}, v1, s[28:31], s43 offen sc1")
    e("v_lshrrev_b32 v13, 1, v1")
    e("s_lshl_b32 s24, s21, 7")
    e(f"s_add_u32 s24, s24, {GBUF}")
    e("buffer_load_dword v13, v13, s[28:31], s24 offen sc1")
    for r in (K2(0)+2, K2(0)+3, K2(1)+2, K2(1)+3, Q2+2, Q2+3, P+4, P+5, P+6, P+7, V(1,1), V(1,1)+1, V(1,1)+2, V(1,1)+3):
        e(f"v_mov_b32 v{r}, 0")
    for i in range(16):
        e(f"v_mov_b32 v{O+i}, 0")
    e("v_cmp_le_u32 s[32:33], 32, v0")
    e("v_mov_b32 v8, v3"); e("v_mov_b32 v9, v4")
    e("v_add_u32 v10, 14336, v3"); e("v_add_u32 v11, 14336, v4")
    e("s_mov_b32 s38, 28672")
    e(f"v_mov_b32 v14, {CNT}")
    e("v_mov_b32 v15, 1")
    e("v_mov_b32 v6, 0"); e("v_mov_b32 v7, 0")
    e("ds_write_b64 v14, v[6:7]")
    e("s_mov_b32 s40, 8")
    e("s_waitcnt lgkmcnt(0)")
    e("s_waitcnt vmcnt(0)")
    e("s_barrier")
    stamp(e, 1)
    e(f"v_cndmask_b32 v{Q2}, v{Q2}, 0, s[32:33]")
    e(f"v_cndmask_b32 v{Q2+1}, v{Q2+1}, 0, s[32:33]")
    def rdK(t):
        p = t & 1; a16 = 8 if t < 4 else 10; off = (t % 4) * KV_TILE
        return [f"ds_read_b128 {vr(K1(p),4)}, v{a16} offset:{off}",
                f"ds_read_b64 {vr(K2(p),2)}, v{a16+1} offset:{off+1024}"]
    def rdV(t):
        p = t & 1; a16 = 8 if t < 4 else 10; off = (t % 4) * KV_TILE
        return [f"ds_read_b128 {vr(V(p,0),4)}, v{a16} offset:{off+1536}",
                f"ds_read_b128 {vr(V(p,1),4)}, v{a16} offset:{off+2560}"]
    for ins in rdK(0) + rdK(1) + rdV(0): e(ins)
    e("s_waitcnt lgkmcnt(0)")
    def qk(t, which):
        p = t & 1; s = S[t & 1]
        if which == 0:
            return f"v_mfma_f32_32x32x16_bf16 {vr(s,16)}, {vr(K1(p),4)}, {vr(Q1,4)}, 0"
        return f"v_mfma_f32_32x32x8_bf16 {vr(s,16)}, {vr(K2(p),2)}, {vr(Q2,2)}, {vr(s,16)}"
    def set_fold(src16, running=None):
        e(f"v_max3_f32 v5, v{src16}, v{src16+1}, v{src16+2}")
        for i in range(3, 15, 2):
            e(f"v_max3_f32 v5, v5, v{src16+i}, v{src16+i+1}")
        e(f"v_max_f32 v5, v5, v{src16+15}")
    def fold_from_v5():
        e("v_mov_b32 v6, v5")
        e("s_nop 1")
        e("v_permlane32_swap_b32 v5, v6")
        e("s_nop 1")
        e("v_max_f32 v5, v5, v6")
        e("v_sub_f32 v5, 0, v5")
        e("v_cvt_pk_bf16_f32 v6, v5, v5")
        e("v_lshlrev_b32 v6, 16, v6")
        e("v_sub_f32 v6, v5, v6")
        e("v_cvt_pk_bf16_f32 v6, v5, v6")
        e(f"v_cndmask_b32 v{Q2}, v{Q2}, v6, s[32:33]")
        e("s_nop 1")
    e(qk(0, 0)); e(qk(0, 1))
    e("s_nop 15")
    set_fold(S[0])
    fold_from_v5()
    e(qk(0, 0)); e(qk(0, 1))
    e("s_mov_b32 s39, 0")
    if DO_STAMP: e("s_mov_b32 s94, 0")
    e("s_nop 7")
    def pv(t, h):
        p = t & 1
        return f"v_mfma_f32_32x32x16_bf16 {vr(O,16)}, {vr(V(p,h),4)}, {vr(P+4*h,4)}, {vr(O,16)}"
    def grp(s, q):
        for i in range(4):
            e(f"v_exp_f32 v{s+4*q+i}, v{s+4*q+i}")
        e(f"v_cvt_pk_bf16_f32 v{P+2*q}, v{s+4*q}, v{s+4*q+1}")
        e(f"v_cvt_pk_bf16_f32 v{P+2*q+1}, v{s+4*q+2}, v{s+4*q+3}")
    stamp(e, 2)
    if "prio" in os.environ.get("VAR", ""):
        e("s_cmp_ge_u32 s20, 4")
        e("s_cbranch_scc0 K2_NP")
        e("s_setprio 1")
        e.label("K2_NP")
    if "late" in os.environ.get("VAR", ""):
        for r in range(12, 16): e(f"v_mov_b32 v{S[1]+r}, 0")
    e.l.append(".p2align 6")
    e.label("K2_LOOP")
    VAR = os.environ.get("VAR", "")
    def ex(s, q):
        for i in range(4):
            e(f"v_exp_f32 v{s+4*q+i}, v{s+4*q+i}")
    def cv(s, q):
        e(f"v_cvt_pk_bf16_f32 v{P+2*q}, v{s+4*q}, v{s+4*q+1}")
        e(f"v_cvt_pk_bf16_f32 v{P+2*q+1}, v{s+4*q+2}, v{s+4*q+3}")
    for i in range(4):
        s = S[i & 1]; sp = S[(i+1) & 1]
        def upd():
            e("v_mov_b32 v8, v10"); e("v_mov_b32 v9, v11")
            e("v_add_u32 v10, s38, v3"); e("v_add_u32 v11, s38, v4")
            e("s_add_u32 s38, s38, 14336")
            e(f"s_cmp_ge_u32 s38, {RING}")
            e(f"s_cselect_b32 s3, {RING}, 0")
            e("s_sub_u32 s38, s38, s3")
            e("s_add_u32 s39, s39, 1")
        def head():
            if "tog" in VAR: e(f"s_setprio {(3 - ((i+2)%4))}")
            if i == 0:
                e("s_waitcnt vmcnt(2) lgkmcnt(0)")
                e("s_mov_b64 exec, 1")
                e("ds_add_u32 v14, v15")
                e("s_mov_b64 exec, -1")
            elif i == 1:
                e("s_waitcnt lgkmcnt(0)")
                e("ds_read_b32 v7, v14")
            elif i == 2:
                e.label("K2_CHK")
                e("s_waitcnt lgkmcnt(0)")
                e("v_readfirstlane_b32 s3, v7")
                e("s_cmp_ge_u32 s3, s40")
                e("s_cbranch_scc0 K2_SLOW")
                e("s_add_u32 s40, s40, 8")
            else:
                e("s_waitcnt lgkmcnt(0)")
        if "late" in VAR:
            head()
            for ins in rdK(i+2): e(ins if "nords" not in VAR else "s_nop 0")
            ex(s, 0)
            cv(sp, 3)
            e(qk(i+1, 0)) if False else None
            if i == 2 and "nobar" not in VAR: emit_dma("d")
            else: e("s_nop 0")
            e(pv(i+1, 1))
            for ins in rdV(i+1): e(ins if ("nords" not in VAR and "norv" not in VAR) else "s_nop 0")
            ex(s, 1); cv(s, 0)
            e(qk(i+1, 0))
            if i == 3: upd()
            ex(s, 2); cv(s, 1)
            e(qk(i+1, 1))
            ex(s, 3); cv(s, 2)
            e(pv(i, 0))
        else:
            head()
            for ins in rdK(i+2): e(ins)
            e(pv(i+1, 1))
            for ins in rdV(i+1): e(ins)
            if i == 2 and "nobar" not in VAR:
                emit_dma("d")
            grp(s, 0)
            e(qk(i+1, 0))
            grp(s, 1)
            e(qk(i+1, 1))
            if i == 3: upd()
            grp(s, 2)
            e(pv(i, 0))
            grp(s, 3)
    e("s_cmp_lt_u32 s39, 16")
    e("s_cbranch_scc1 K2_LOOP")
    stamp(e, 3)
    if "late" in VAR: cv(S[1], 3)
    e("s_nop 1")
    e(pv(63, 1))
    e("s_nop 15")
    e(f"v_max3_f32 v5, |v{O}|, |v{O+1}|, |v{O+2}|")
    for i in range(3, 11, 2):
        e(f"v_max3_f32 v5, v5, |v{O+i}|, |v{O+i+1}|")
    e(f"v_max_f32 v5, v5, |v{O+11}|")
    e("s_mov_b32 s3, 0x7b800000")
    e("v_cmp_nlt_f32 vcc, v5, s3") if False else None
    e("v_mov_b32 v7, s3")
    e("v_cmp_nlt_f32 s[34:35], v5, v7")
    e(f"v_mov_b32 v5, v{O+8}")
    e(f"v_mov_b32 v6, v{O+8}")
    e("s_nop 1")
    e("v_permlane32_swap_b32 v5, v6")
    e("v_mov_b32 v7, 0x53800000")
    e("s_nop 0")
    e("v_cmp_nlt_f32 vcc, v6, v7")
    e("s_nop 1")
    e("s_or_b64 vcc, vcc, s[34:35]")
    e("s_cbranch_vccnz K2_FALLBACK")
    e.label("K2_NORM")
    e("v_rcp_f32 v6, v6")
    e("s_nop 0")
    e("v_mul_f32 v6, v6, v13")
    for i in range(12):
        e(f"v_mul_f32 v{O+i}, v{O+i}, v6")
    for i in range(6):
        e(f"v_cvt_pk_bf16_f32 v{P+i}, v{O+2*i}, v{O+2*i+1}")
    e("s_mul_i32 s3, s21, 40")
    e("s_add_u32 s24, s3, s23")
    e("s_lshl_b32 s24, s24, 10")
    e(f"s_add_u32 s24, s24, {OBUF}")
    e(f"buffer_store_dwordx4 {vr(P,4)}, v3, s[28:31], s24 offen sc1")
    e("s_add_u32 s3, s3, 32")
    e("s_lshl_b32 s3, s3, 10")
    e("s_lshl_b32 s25, s23, 8")
    e("s_add_u32 s3, s3, s25")
    e(f"s_add_u32 s3, s3, {OBUF}")
    e("s_mov_b32 exec_hi, 0")
    e(f"buffer_store_dwordx2 {vr(P+4,2)}, v4, s[28:31], s3 offen sc1")
    e("s_lshl_b32 s62, s21, 2")
    e("s_add_u32 s62, s62, s22")
    e("s_lshl_b32 s62, s62, 7")
    e(f"s_add_u32 s62, s62, {FLAG}")
    e("v_mov_b32 v6, s77")
    e("v_mov_b32 v7, 0")
    e("s_waitcnt vmcnt(0)")
    e("s_mov_b64 exec, 1")
    e("ds_add_rtn_u32 v5, v14, v15 offset:4")
    e("s_waitcnt lgkmcnt(0)")
    e("v_readfirstlane_b32 s3, v5")
    e("s_cmp_lg_u32 s3, 7")
    e("s_cbranch_scc1 K2_NF")
    e("buffer_store_dword v6, v7, s[28:31], s62 offen sc1")
    e.label("K2_NF")
    stamp(e, 4)
    stamp_flush(e, 7, 1, "s79", 5)
    e("s_endpgm")
    e.label("K2_SLOW")
    if DO_STAMP: e("s_add_u32 s94, s94, 1")
    e("s_sleep 1")
    e("ds_read_b32 v7, v14")
    e("s_branch K2_CHK")
    e.label("K2_FALLBACK")
    e(f"v_cndmask_b32 v{Q2}, v{Q2}, 0, s[32:33]")
    e("v_mov_b32 v12, 0xff800000")
    e(f"s_mov_b32 s3, {KVBUF}")
    e.label("K2_FB1")
    e(f"buffer_load_dwordx4 {vr(K1(0),4)}, v3, s[28:31], s3 offen sc1")
    e(f"buffer_load_dwordx2 {vr(K2(0),2)}, v4, s[28:31], s3 offen offset:1024 sc1")
    e("s_waitcnt vmcnt(0)")
    e(qk(0, 0)); e(qk(0, 1))
    e("s_nop 15")
    set_fold(S[0])
    e("v_max_f32 v12, v12, v5")
    e(f"s_add_u32 s3, s3, {KV_TILE}")
    e(f"s_cmp_lt_u32 s3, {KVBUF + 64*KV_TILE}")
    e("s_cbranch_scc1 K2_FB1")
    e("v_mov_b32 v5, v12")
    fold_from_v5()
    for i in range(16):
        e(f"v_mov_b32 v{O+i}, 0")
    e(f"s_mov_b32 s3, {KVBUF}")
    e.label("K2_FB2")
    e(f"buffer_load_dwordx4 {vr(K1(0),4)}, v3, s[28:31], s3 offen sc1")
    e(f"buffer_load_dwordx2 {vr(K2(0),2)}, v4, s[28:31], s3 offen offset:1024 sc1")
    e(f"buffer_load_dwordx4 {vr(V(0,0),4)}, v3, s[28:31], s3 offen offset:1536 sc1")
    e(f"buffer_load_dwordx4 {vr(V(0,1),4)}, v3, s[28:31], s3 offen offset:2560 sc1")
    e("s_waitcnt vmcnt(0)")
    e(qk(0, 0)); e(qk(0, 1))
    e("s_nop 15")
    for q in range(4): grp(S[0], q)
    e("s_nop 1")
    e(pv(2, 0)); e(pv(2, 1))
    e(f"s_add_u32 s3, s3, {KV_TILE}")
    e(f"s_cmp_lt_u32 s3, {KVBUF + 64*KV_TILE}")
    e("s_cbranch_scc1 K2_FB2")
    e("s_nop 15")
    e(f"v_mov_b32 v5, v{O+8}")
    e(f"v_mov_b32 v6, v{O+8}")
    e("s_nop 1")
    e("v_permlane32_swap_b32 v5, v6")
    e("s_nop 1")
    e("s_branch K2_NORM")
    e.label("K2_GEMM")
    import os
    if os.environ.get("NOGEMM"): e("s_endpgm")
    NS = 5
    srd(e, 32, 4, 1966080)
    srd(e, 36, 8, 819200)
    srd(e, 40, 12, 2621440)
    srd(e, 44, 14, 256)
    e("s_sub_u32 s20, s20, 8")
    e("v_mov_b32 v13, 0")
    e("s_cmp_lg_u32 s20, 0")
    e("s_cbranch_scc1 K2_G0")
    e("s_lshl_b32 s62, s76, 7")
    e(f"s_add_u32 s62, s62, {FLAG1}")
    e("v_mov_b32 v14, s77")
    e("s_mov_b64 exec, 1")
    e("buffer_store_dword v14, v13, s[28:31], s62 offen sc1")
    e("s_mov_b64 exec, -1")
    e.label("K2_G0")
    e("s_mul_i32 s3, s20, 3")
    e("v_add_u32 v1, s3, v0")
    e("v_cmp_eq_u32 vcc, 3, v0")
    e("s_nop 1")
    e("v_cndmask_b32 v1, v1, 15, vcc")
    e("s_lshr_b32 s3, s21, 2")
    e("s_lshl_b32 s3, s3, 4")
    e("v_add_u32 v1, s3, v1")
    e("v_lshlrev_b32 v1, 7, v1")
    e(f"s_mov_b32 s3, {FLAG1}")
    e("s_mov_b32 s63, 0")
    e("s_barrier")
    e("s_barrier")
    e("s_barrier")
    e("s_mov_b64 exec, 15")
    e.label("K2_GL")
    e("buffer_load_dword v2, v1, s[28:31], s3 offen sc1")
    e("s_waitcnt vmcnt(0)")
    e("v_cmp_ne_u32 vcc, s77, v2")
    e("s_nop 1")
    e("s_cbranch_vccz K2_GD")
    e("s_sleep 4")
    e("s_add_u32 s63, s63, 1")
    e("s_cmp_lt_u32 s63, 0x100000")
    e("s_cbranch_scc1 K2_GL")
    e.label("K2_GD")
    e("s_mov_b64 exec, -1")
    if os.environ.get("GP"): e(f"s_setprio {os.environ['GP']}")
    e(f"s_mul_i32 s58, s20, {NS*5120}")
    e(f"s_add_u32 s58, s58, {RING}")
    e("s_mov_b32 s59, 1280")
    gemm_addr_setup(e, "s58", type2=True)
    e("v_and_b32 v13, 31, v0")
    e("v_lshlrev_b32 v13, 2, v13")
    e("s_lshl_b32 s3, s21, 7")
    e(f"s_add_u32 s3, s3, {GBUF}")
    e("buffer_load_dword v160, v13, s[28:31], s3 offen sc1")
    e("s_mul_i32 s60, s20, 491520")
    e("s_mul_i32 s3, s22, 320")
    e("s_add_u32 s60, s60, s3")
    e("s_mul_i32 s61, s21, 96")
    e("s_mul_i32 s3, s20, 24")
    e("s_add_u32 s61, s61, s3")
    e("s_lshl_b32 s61, s61, 10")
    e(f"s_add_u32 s61, s61, {HBUF}")
    ks = [(0, k*20480, k*1024) for k in range(24)]
    nb = splitk_gemm(e, "K2", ks, NS, 32, 28, "s58", barrier_every=None, barrier_count=0)
    stamp(e, 1)
    e("s_mul_i32 s60, s22, 320")
    e("s_mul_i32 s3, s20, 204800")
    e("s_add_u32 s60, s60, s3")
    wk = [(0, k*20*1280) for k in range(8)] + [(1, (k*80+16)*1280) for k in range(2)]
    def wslab(k):
        vs, wo_ = wk[k]
        e(f"s_add_u32 s62, s60, {wo_}")
        for i in range(5):
            e(f"s_add_u32 m0, s58, {(k % NS)*5120 + i*1024}")
            e("s_nop 0")
            e(f"buffer_load_dwordx4 v{1+vs*5+i}, s[36:39], s62 offen lds")
    for k in range(NS): wslab(k)
    for k in range(NS, 10):
        vs, wo_ = wk[k]
        e(f"s_add_u32 s62, s60, {wo_}")
        for i in range(5):
            e(f"buffer_load_dwordx4 v[40:43], v{1+vs*5+i}, s[36:39], s62 offen")
    e("v_sub_f32 v160, 1.0, v160")
    e("s_nop 7")
    for i in range(80):
        e(f"v_mul_f32 v{80+i}, v{80+i}, v160")
    def rdw(k):
        base = 16 if k % 2 == 0 else 60
        slab = (k % NS) * 5120
        for nt in range(5):
            for uu in range(2):
                e(f"ds_read_b64_tr_b16 {vr(base+nt*4+uu*2,2)}, v11 offset:{slab + uu*2560 + nt*64}")
    e("s_waitcnt vmcnt(0)")
    rdw(0)
    e(f"v_mov_b32 v13, {CNT}")
    e("s_cmp_lg_u32 s20, s22")
    e("s_cbranch_scc1 K2_GW2")
    e.label("K2_GW")
    e("s_sleep 2")
    e("ds_read_b32 v14, v13 offset:4")
    e("s_waitcnt lgkmcnt(0)")
    e("v_readfirstlane_b32 s3, v14")
    e("s_cmp_ge_u32 s3, 8")
    e("s_cbranch_scc0 K2_GW")
    e.label("K2_GW2")
    stamp(e, 2)
    e("v_mov_b32 v13, 0")
    e.label("K2_POLL0")
    e("s_lshl_b32 s62, s21, 2")
    e("s_add_u32 s62, s62, s20")
    e("s_lshl_b32 s62, s62, 7")
    e(f"s_add_u32 s62, s62, {FLAG}")
    e("s_mov_b32 s63, 0")
    e("s_cmp_eq_u32 s20, s22")
    e("s_cbranch_scc1 K2_GO")
    e.label("K2_POLL")
    e("buffer_load_dword v14, v13, s[28:31], s62 offen sc1")
    e("s_waitcnt vmcnt(0)")
    e("v_readfirstlane_b32 s3, v14")
    e("s_cmp_eq_u32 s3, s77")
    e("s_cbranch_scc1 K2_GO")
    e("s_sleep 3")
    e("s_add_u32 s63, s63, 1")
    e("s_cmp_lt_u32 s63, 0x100000")
    e("s_cbranch_scc1 K2_POLL")
    e.label("K2_GO")
    stamp(e, 3)
    e("s_mul_i32 s61, s21, 40")
    e("s_lshl_b32 s61, s61, 10")
    e(f"s_add_u32 s61, s61, {OBUF}")
    e("s_lshl_b32 s3, s20, 11")
    e("s_add_u32 s63, s61, s3")
    e("s_add_u32 s63, s63, 32768")
    e("s_lshl_b32 s3, s20, 13")
    e("s_add_u32 s61, s61, s3")
    e("s_add_u32 s56, s61, 4096")
    XO = lambda k: 40 + (k % 5) * 4
    WS_ = lambda k: 16 if k % 2 == 0 else 60
    def xld(k):
        if k < 8: e(f"buffer_load_dwordx4 {vr(XO(k),4)}, v12, s[28:31], {'s61' if k < 4 else 's56'} offen offset:{(k%4)*1024} sc1")
        else:
            e(f"buffer_load_dwordx2 {vr(XO(k),2)}, v36, s[28:31], s63 offen offset:{(k-8)*1024} sc1")
            e(f"buffer_load_dwordx2 {vr(XO(k)+2,2)}, v36, s[28:31], s63 offen offset:{(k-8)*1024+256} sc1")
    e("v_and_b32 v36, 31, v0")
    e("v_lshlrev_b32 v36, 3, v36")
    e("v_lshrrev_b32 v37, 5, v0")
    e("v_lshl_add_u32 v36, v37, 9, v36")
    for k in range(5): xld(k)
    gsz = lambda g_: 5 + (2 if g_ >= 8 else 1)
    for k in range(10):
        last = min(9, k + 4)
        if k + 1 < 10:
            if k + 1 >= NS:
                e(f"s_waitcnt vmcnt({sum(gsz(g_) for g_ in range(k+2, last+1)) + gsz(k+1) - 5})")
            rdw(k + 1)
        if k == 0:
            e("s_waitcnt vmcnt(0)")
            stamp(e, 7)
        elif k >= 5: e(f"s_waitcnt vmcnt({sum(gsz(g_) for g_ in range(k+1, 10))})")
        e(f"s_waitcnt lgkmcnt({10 if k + 1 < 10 else 0})")
        for nt in range(5):
            e(f"v_mfma_f32_32x32x16_bf16 {vr(80+nt*16,16)}, {vr(WS_(k)+nt*4,4)}, {vr(XO(k),4)}, {vr(80+nt*16,16)}")
        if k + NS < 10:
            wslab(k + NS); xld(k + 5)
    stamp(e, 8)
    reduce_write(e, "s58")
    stamp(e, 9)
    e("s_mul_i32 s57, s20, 5120")
    e(f"s_add_u32 s57, s57, {RING}")
    reduce_read(e, NS*5120, "s57")
    for i in range(10):
        e(f"v_cvt_pk_bf16_f32 v{100+i}, v{80+2*i}, v{80+2*i+1}")
    e("v_and_b32 v13, 31, v0")
    e("v_mul_u32_u24 v13, 0x500, v13")
    e("v_lshrrev_b32 v14, 5, v0")
    e("v_lshl_add_u32 v13, v14, 3, v13")
    e("s_mul_i32 s3, s21, 40960")
    e("s_mul_i32 s62, s22, 320")
    e("s_add_u32 s3, s3, s62")
    e("s_mul_i32 s62, s20, 80")
    e("s_add_u32 s3, s3, s62")
    for q in range(5):
        e(f"buffer_store_dwordx2 {vr(100+2*q,2)}, v13, s[40:43], s3 offen offset:{q*16}")
    stamp(e, 4)
    stamp_flush(e, 5, 1, "s79", 13)
    e.label("K2_END")
    e("s_endpgm")
    return name, 168, RING + 4*NS*5120 + 64, 256, 768

def gen_k3(e):
    name = "k3_kernel"
    kernel_head(e, name)
    e("s_cmp_ge_u32 s2, 256")
    e("s_cbranch_scc1 K3_END")
    e("s_load_dwordx2 s[4:5], s[0:1], 32")
    e("s_load_dwordx2 s[6:7], s[0:1], 96")
    e("s_load_dwordx2 s[8:9], s[0:1], 80")
    e("v_lshrrev_b32 v1, 6, v0")
    e("v_and_b32 v0, 63, v0")
    e("s_nop 0")
    e("v_readfirstlane_b32 s20, v1")
    e("s_lshr_b32 s21, s2, 2")
    e("s_and_b32 s22, s2, 3")
    e("s_waitcnt lgkmcnt(0)")
    srd(e, 28, 6, WS_END)
    srd(e, 32, 4, 819200)
    srd(e, 36, 8, 2621440)
    stamp(e, 0)
    NS = 7
    e(f"s_mul_i32 s58, s20, {NS*5120}")
    e("s_mov_b32 s59, 1280")
    gemm_addr_setup(e, "s58", type2=True)
    e("s_mul_i32 s3, s2, 20480")
    e("s_mul_i32 s62, s20, 5120")
    e("s_add_u32 s3, s3, s62")
    e(f"s_add_u32 s3, s3, {BBUF}")
    e("s_add_u32 s62, s3, 4096")
    for q in range(5):
        if q < 4:
            e(f"buffer_load_dwordx4 {vr(160+q*4,4)}, v12, s[28:31], s3 offen offset:{q*1024}")
        else:
            e(f"buffer_load_dwordx4 {vr(160+q*4,4)}, v12, s[28:31], s62 offen")
    e("v_and_b32 v13, 31, v0")
    e("v_lshlrev_b32 v13, 2, v13")
    e("s_lshl_b32 s3, s21, 7")
    e(f"s_add_u32 s3, s3, {GBUF}")
    e("buffer_load_dword v180, v13, s[28:31], s3 offen")
    e("s_mul_i32 s60, s22, 320")
    e("s_mul_i32 s3, s20, 204800")
    e("s_add_u32 s60, s60, s3")
    e("s_mul_i32 s61, s21, 40")
    e("s_lshl_b32 s61, s61, 10")
    e(f"s_add_u32 s61, s61, {OBUF}")
    e("s_lshl_b32 s3, s20, 13")
    e("s_add_u32 s61, s61, s3")
    e("s_mul_i32 s3, s20, 6144")
    e("s_sub_u32 s56, 32768, s3")
    ks = [(0, k*20*1280, k*1024) for k in range(8)]
    ks += [(1, (k*80+16)*1280, None) for k in range(2)]
    ks2 = []
    for (a, b, c) in ks:
        ks2.append((a, b, c))
    e("s_add_u32 s55, s56, 1024")
    ks2[8] = (1, ks[8][1], "s56"); ks2[9] = (1, ks[9][1], "s55")
    stamp(e, 1)
    splitk_gemm(e, "K3", ks2, NS, 32, 28, "s58")
    stamp(e, 2)
    reduce_write(e, "s58")
    stamp(e, 3)
    e("s_mul_i32 s57, s20, 5120")
    reduce_read(e, NS*5120, "s57", wait="vmcnt(0) lgkmcnt(0)")
    e("v_sub_f32 v181, 1.0, v180")
    for i in range(20):
        e(f"v_mul_f32 v{160+i}, v181, v{160+i}")
        e(f"v_fma_f32 v{80+i}, v180, v{80+i}, v{160+i}")
    for i in range(10):
        e(f"v_cvt_pk_bf16_f32 v{100+i}, v{80+2*i}, v{80+2*i+1}")
    e("v_and_b32 v13, 31, v0")
    e("v_mul_u32_u24 v13, 0x500, v13")
    e("v_lshrrev_b32 v14, 5, v0")
    e("v_lshl_add_u32 v13, v14, 3, v13")
    e("s_mul_i32 s3, s21, 40960")
    e("s_mul_i32 s62, s22, 320")
    e("s_add_u32 s3, s3, s62")
    e("s_mul_i32 s62, s20, 80")
    e("s_add_u32 s3, s3, s62")
    for q in range(5):
        e(f"buffer_store_dwordx2 {vr(100+2*q,2)}, v13, s[36:39], s3 offen offset:{q*16}")
    stamp(e, 4)
    stamp_flush(e, 5, 2, "s20", 13)
    e.label("K3_END")
    e("s_endpgm")
    return name, 184, 4*NS*5120, 256, 256
```

```python
from common import *
from k23 import CNT
import math
QSCALE = math.log2(math.e) / math.sqrt(20.0)
import struct
def f2u(f): return struct.unpack('<I', struct.pack('<f', f))[0]

def gen_k1(e):
    name = "gated_mix__grouped_kv_mqa__glu_gated_reglu__prompt_kernel"
    kernel_head(e, name)
    e("s_cmp_ge_u32 s2, 256")
    e("s_cbranch_scc1 K2_END")
    e("s_load_dwordx4 s[4:7], s[0:1], 0")
    e("s_load_dwordx4 s[8:11], s[0:1], 16")
    e("s_load_dwordx4 s[12:15], s[0:1], 48")
    e("s_load_dwordx2 s[16:17], s[0:1], 72")
    e("s_load_dwordx2 s[18:19], s[0:1], 96")
    e("s_load_dwordx2 s[60:61], s[0:1], 32")
    e("s_load_dwordx2 s[62:63], s[0:1], 64")
    e("s_load_dwordx2 s[64:65], s[0:1], 88")
    e("s_load_dwordx2 s[66:67], s[0:1], 80")
    e("v_lshrrev_b32 v1, 6, v0")
    e("v_and_b32 v0, 63, v0")
    e("s_nop 0")
    e("v_readfirstlane_b32 s20, v1")
    e("s_nop 3")
    e("s_mov_b32 s79, s20")
    e("s_and_b32 s3, s2, 7")
    e("s_lshr_b32 s21, s2, 3")
    e("s_and_b32 s22, s3, 1")
    e("s_lshl_b32 s22, s22, 3")
    e("s_and_b32 s23, s21, 7")
    e("s_add_u32 s22, s22, s23")
    e("s_lshr_b32 s23, s3, 1")
    e("s_lshl_b32 s23, s23, 2")
    e("s_lshr_b32 s21, s21, 3")
    e("s_add_u32 s23, s23, s21")
    e("s_waitcnt lgkmcnt(0)")
    srd(e, 24, 4, 2621440)
    srd(e, 28, 18, WS_END)
    stamp(e, 0)
    e("s_cmp_eq_u32 s23, 15")
    e("s_cbranch_scc1 K1_ROLE_C")
    e("s_cmp_ge_u32 s23, 12")
    e("s_cbranch_scc1 K1_SETUP_B")
    e("s_lshl_b32 s21, s23, 8")
    e("s_sub_u32 s3, 1966080, s21")
    srd(e, 32, 12, "s3", add="s21")
    srd(e, 36, 14, "s3", add="s21")
    e("s_mov_b32 s40, 3072")
    e("s_branch K1_GEMM")
    e.label("K1_SETUP_B")
    e("s_sub_u32 s21, s23, 12")
    e("s_lshl_b32 s21, s21, 9")
    e("s_sub_u32 s3, 819200, s21")
    srd(e, 32, 6, "s3", add="s21")
    e("s_add_u32 s21, s21, 256")
    e("s_sub_u32 s3, 819200, s21")
    srd(e, 36, 6, "s3", add="s21")
    e("s_mov_b32 s40, 1280")
    e.label("K1_GEMM")
    e("s_mov_b32 s56, 1")
    e("s_cmp_ge_u32 s20, 8")
    e("s_cbranch_scc1 K1_HELP")
    e("s_lshl_b32 s41, s40, 2")
    e("s_lshl_b32 s44, s40, 6")
    e("s_lshl_b32 s45, s40, 3")
    e("s_mul_i32 s45, s45, s20")
    e("s_mul_i32 s46, s22, 163840")
    e("s_lshl_b32 s47, s20, 10")
    e("s_lshl_b32 s48, s20, 11")
    e("s_add_u32 s48, s48, 16384")
    e("s_lshr_b32 s49, s20, 2")
    e("s_and_b32 s50, s20, 3")
    e("s_and_b32 s51, s20, 1")
    e("v_lshrrev_b32 v3, 3, v0")
    e("s_lshl_b32 s3, s20, 3")
    e("v_add_u32 v3, s3, v3")
    e("v_mul_u32_u24 v3, 0x500, v3")
    e("v_lshrrev_b32 v4, 4, v0")
    e("s_lshl_b32 s3, s51, 2")
    e("v_add_u32 v4, s3, v4")
    e("v_and_b32 v4, 7, v4")
    e("v_and_b32 v5, 7, v0")
    e("v_xor_b32 v4, v4, v5")
    e("v_lshl_add_u32 v2, v4, 4, v3")
    e("v_lshrrev_b32 v4, 4, v0")
    e("v_mul_lo_u32 v3, v4, s40")
    e("v_lshlrev_b32 v4, 2, v4")
    e("v_and_b32 v5, 15, v0")
    e("v_xor_b32 v4, v4, v5")
    e("v_lshl_add_u32 v1, v4, 4, v3")
    e("s_mov_b32 s52, 0")
    def dma():
        g = []
        if os.environ.get("LOADER"): return g
        for m in range(2):
            g.append([f"s_add_u32 s53, s52, s47",
                      f"s_add_u32 m0, s53, {m*8192}",
                      f"s_add_u32 s3, s46, {m*81920}",
                      f"buffer_load_dwordx4 v2, s[24:27], s3 offen lds"])
        for ee in range(2):
            for u in range(2):
                g.append([f"s_add_u32 s53, s52, s48",
                          f"s_add_u32 m0, s53, {u*16384 + ee*1024}",
                          (f"s_add_u32 s3, s45, s41" if ee else "s_mov_b32 s3, s45"),
                          f"buffer_load_dwordx4 v1, s[{32+4*u}:{35+4*u}], s3 offen lds"])
        if g: g[-1] += ["s_add_u32 s45, s45, s44", "s_add_u32 s46, s46, 128",
                  "s_add_u32 s52, s52, 49152", "s_cmp_ge_u32 s52, 147456", "s_cselect_b32 s3, 147456, 0", "s_sub_u32 s52, s52, s3"]
        return g
    for st in range(2):
        for grp in dma():
            for ins in grp: e(ins)
        if st < 1 and not os.environ.get("LOADER"): e("s_barrier")
    if os.environ.get("LOADER"):
        e("v_lshrrev_b32 v3, 3, v0"); e("v_mul_u32_u24 v3, 0x500, v3"); e("v_and_b32 v4, 7, v0"); e("v_lshl_add_u32 v3, v4, 4, v3")
        e("s_and_b32 s3, s23, 3"); e("s_lshl_b32 s3, s3, 5"); e("s_lshl_b32 s53, s50, 3"); e("s_add_u32 s3, s3, s53")
        e("s_mul_i32 s3, s3, 1280"); e("s_add_u32 s3, s3, s46"); e("s_lshl_b32 s53, s49, 7"); e("s_add_u32 s3, s3, s53")
        e("v_lshrrev_b32 v4, 4, v0"); e("v_mul_lo_u32 v4, v4, s40"); e("v_and_b32 v5, 15, v0"); e("v_lshl_add_u32 v4, v5, 4, v4")
        e("s_and_b32 s53, s22, 7"); e("s_lshl_b32 s53, s53, 3"); e("s_lshl_b32 s55, s51, 2"); e("s_add_u32 s53, s53, s55")
        e("s_lshl_b32 s55, s49, 6"); e("s_add_u32 s53, s53, s55"); e("s_mul_i32 s53, s53, s40")
        e("s_lshl_b32 s55, s40, 7")
        e("s_bitcmp1_b32 s20, 1")
        for r in range(4): e(f"s_cselect_b32 s{72+r}, s{36+r}, s{32+r}")
        if os.environ.get("PF2"): e("s_barrier")
        NUP = int(os.environ.get("NUP", "5"))
        e(f"s_add_u32 s57, s3, {NUP*256}")
        e("v_mov_b32 v25, v3"); e("v_mov_b32 v26, v4"); e("s_mov_b32 s58, s55")
        for j in range(0 if os.environ.get('NOPF') else NUP):
            e(f"buffer_load_dwordx4 v[160:163], v3, s[24:27], s3 offen offset:{j*256}")
            e(f"buffer_load_dwordx4 v[164:167], v4, s[72:75], s53 offen")
            e("s_add_u32 s53, s53, s55")
        if not os.environ.get("PF2"): e("s_barrier")
    e("v_and_b32 v3, 31, v0")
    e("s_lshl_b32 s3, s49, 6")
    e("v_add_u32 v3, s3, v3")
    e("v_lshrrev_b32 v4, 1, v3")
    e("v_and_b32 v4, 7, v4")
    e("v_lshrrev_b32 v5, 5, v0")
    e("v_lshlrev_b32 v3, 7, v3")
    for ks in range(4):
        e(f"v_or_b32 v24, {ks*2}, v5")
        e("v_xor_b32 v24, v24, v4")
        e(f"v_lshl_add_u32 v{6+ks}, v24, 4, v3")
        e(f"v_mov_b32 v{11+ks}, v{6+ks}")
    e("v_bfe_u32 v3, v0, 2, 2")
    e("v_lshl_add_u32 v4, v5, 3, v3")
    e("v_lshlrev_b32 v4, 8, v4")
    e("v_bfe_u32 v24, v0, 4, 1")
    e("v_lshl_add_u32 v4, v24, 5, v4")
    e("v_and_b32 v24, 3, v0")
    e("v_lshl_add_u32 v4, v24, 3, v4")
    e("v_xor_b32 v24, s50, v3")
    e("v_lshl_add_u32 v10, v24, 6, v4")
    e("v_mov_b32 v15, v10")
    e("v_add_u32 v16, 49152, v6")
    e("v_add_u32 v17, 49152, v10")
    e("s_mov_b32 s54, 49152")
    ACC = lambda u, rt: 96 + (u*2+rt)*16
    XF = lambda p, rt: 32 + p*16 + rt*4
    WF = lambda p, u: 32 + p*16 + 8 + u*4
    for i in range(64): e(f"v_mov_b32 v{96+i}, 0")
    def reads(ks, nxt=False):
        p = ks & 1
        vx = 16 if nxt else 11 + ks
        vw = 17 if nxt else 15
        g = []
        for rt in range(2):
            g.append([f"ds_read_b128 {vr(XF(p,rt),4)}, v{vx} offset:{rt*4096}"])
        for u in range(2):
            for uu in range(2):
                g.append([f"ds_read_b64_tr_b16 {vr(WF(p,u)+uu*2,2)}, v{vw} offset:{16384+u*16384+(ks*16+uu*4)*256}"])
        return g
    stamp(e, 1)
    if not os.environ.get("LOADER"): e("s_waitcnt vmcnt(6)")
    e("s_barrier")
    stamp(e, 2)
    for grp in reads(0):
        for ins in grp: e(ins)
    for grp in dma():
        for ins in grp: e(ins)
    def stage(with_dma, first_dma_part):
        d = dma() if with_dma else []
        for ks in range(4):
            p = ks & 1
            if ks == 3:
                e(f"s_waitcnt vmcnt({6 if with_dma else 0}) lgkmcnt(0)" if not os.environ.get("LOADER") else "s_waitcnt lgkmcnt(0)")
                e("s_barrier")
                others = reads(0, nxt=True)
                others += d[0:2]
            else:
                e("s_waitcnt lgkmcnt(0)")
                others = reads(ks+1)
            mf = []
            for rt in range(2):
                for u in range(2):
                    a = ACC(u, rt)
                    mf.append(f"v_mfma_f32_32x32x16_bf16 {vr(a,16)}, {vr(WF(p,u),4)}, {vr(XF(p,rt),4)}, {vr(a,16)}")
            interleave(e, mf, others)
            if ks == 0 and with_dma and os.environ.get("LOADER") and int(os.environ.get("NUP", "5")) < 5:
                e(f"s_cmp_lt_u32 s55, {5 - int(os.environ['NUP'])}")
                e("s_cbranch_scc0 K1_NPF")
                e("buffer_load_dwordx4 v[160:163], v25, s[24:27], s57 offen")
                e("buffer_load_dwordx4 v[164:167], v26, s[72:75], s53 offen")
                e("s_add_u32 s53, s53, s58")
                e("s_add_u32 s57, s57, 256")
                e.label("K1_NPF")
            if ks == 3:
                for grp in d[2:]:
                    for ins in grp: e(ins)
        for ks in range(4):
            e(f"v_add_u32 v{11+ks}, s54, v{6+ks}")
        e("v_mov_b32 v15, v17")
        e("s_add_u32 s54, s54, 49152"); e("s_cmp_ge_u32 s54, 147456"); e("s_cselect_b32 s3, 147456, 0"); e("s_sub_u32 s54, s54, s3")
        e("v_add_u32 v16, s54, v6")
        e("v_add_u32 v17, s54, v10")
    e("s_mov_b32 s55, 0")
    e.l.append(".p2align 6")
    e.label("K1_L1")
    stage(True, 0)
    e("s_add_u32 s55, s55, 1")
    e("s_cmp_lt_u32 s55, 7")
    e("s_cbranch_scc1 K1_L1")
    e.label("K1_L2")
    stage(False, 0)
    e("s_add_u32 s55, s55, 1")
    e("s_cmp_lt_u32 s55, 10")
    e("s_cbranch_scc1 K1_L2")
    stamp(e, 3)
    e("s_nop 15")
    e("s_cmp_ge_u32 s23, 12")
    e("s_cbranch_scc1 K1_EPI_B")
    e("s_lshl_b32 s3, s22, 2")
    e("s_lshl_b32 s21, s49, 1")
    e("s_add_u32 s3, s3, s21")
    e("s_mul_i32 s3, s3, 96")
    e("s_lshl_b32 s21, s23, 3")
    e("s_add_u32 s3, s3, s21")
    e("s_lshl_b32 s21, s50, 1")
    e("s_add_u32 s3, s3, s21")
    e("s_lshl_b32 s3, s3, 10")
    e(f"s_add_u32 s3, s3, {HBUF}")
    e(f"s_add_u32 s21, s3, {96*1024}")
    e("v_lshlrev_b32 v1, 4, v0")
    for rt in range(2):
        g = ACC(0, rt); u_ = ACC(1, rt)
        for i in range(16):
            e(f"v_max_f32 v{g+i}, 0, v{g+i}")
            e(f"v_mul_f32 v{g+i}, v{g+i}, v{u_+i}")
        d = 64 + rt*8
        for i in range(8):
            e(f"v_cvt_pk_bf16_f32 v{d+i}, v{g+2*i}, v{g+2*i+1}")
        for t in range(2):
            e(f"buffer_store_dwordx4 {vr(d+4*t,4)}, v1, s[28:31], {'s3' if rt==0 else 's21'} offen offset:{t*1024} sc1")
    stamp(e, 4)
    stamp_flush(e, 5, 0, "s20", 2)
    e("s_mov_b64 exec, -1")
    e("s_branch P1_DONE")
    e.label("K1_EPI_B")
    e("s_sub_u32 s3, s23, 12")
    e("s_lshl_b32 s3, s3, 6")
    e("s_lshl_b32 s21, s50, 3")
    e("s_add_u32 s3, s3, s21")
    e("s_lshl_b32 s3, s3, 14")
    e("s_lshl_b32 s21, s22, 7")
    e("s_lshl_b32 s51, s49, 6")
    e("s_add_u32 s21, s21, s51")
    e("s_lshl_b32 s21, s21, 3")
    e("s_add_u32 s3, s3, s21")
    e("v_and_b32 v1, 31, v0")
    e("v_lshlrev_b32 v1, 3, v1")
    e("v_lshrrev_b32 v2, 5, v0")
    e("v_lshl_add_u32 v1, v2, 14, v1")
    e(f"s_mov_b32 s51, 0x{f2u(QSCALE):08x}")
    for u in range(2):
        if u == 1:
            e("s_cmp_eq_u32 s23, 14")
            e("s_cbranch_scc1 P1_DONE")
        for rt in range(2):
            a = ACC(u, rt)
            for i in range(16):
                e(f"v_mul_f32 v{a+i}, s51, v{a+i}")
            d = 64 + (u*2+rt)*8
            for i in range(8):
                e(f"v_cvt_pk_bf16_f32 v{d+i}, v{a+2*i}, v{a+2*i+1}")
            for g in range(4):
                e(f"s_add_u32 s21, s3, {(u*32+2*g)*16384}")
                e(f"buffer_store_dwordx2 {vr(d+2*g,2)}, v1, s[28:31], s21 offen offset:{rt*256} sc1")
    e("s_branch P1_DONE")

    e.label("K1_ROLE_C")
    e("s_mov_b32 s56, 0")
    e("s_cmp_ge_u32 s20, 8")
    e("s_cbranch_scc1 K1_HELP")
    srd(e, 32, 8, 25600)
    srd(e, 36, 10, 25600)
    srd(e, 40, 16, 1280)
    e("s_and_b32 s3, s20, 3")
    e("s_lshl_b32 s21, s22, 2")
    e("s_add_u32 s21, s21, s3")
    e("s_lshl_b32 s44, s20, 6")
    e("v_add_u32 v3, s44, v0")
    e("v_lshlrev_b32 v4, 2, v3")
    for i in range(13):
        e(f"buffer_load_dword v{8+i}, v4, s[32:35], 0 offen offset:{(i%2)*2048}")
        e(f"buffer_load_dword v{33+i}, v4, s[36:39], 0 offen offset:{(i%2)*2048}")
        if i % 2 == 1: e("v_add_u32 v4, 4096, v4")
    e("v_lshlrev_b32 v4, 1, v3")
    for i in range(2):
        e(f"buffer_load_ushort v{58+i}, v4, s[40:43], 0 offen offset:{i*1024}")
    e("s_and_b32 s51, s20, 1")
    e("v_lshrrev_b32 v5, 3, v0")
    e("s_lshl_b32 s3, s20, 3")
    e("v_add_u32 v5, s3, v5")
    e("v_mul_u32_u24 v5, 0x500, v5")
    e("v_lshrrev_b32 v6, 4, v0")
    e("s_lshl_b32 s3, s51, 2")
    e("v_add_u32 v6, s3, v6")
    e("v_and_b32 v6, 7, v6")
    e("v_and_b32 v7, 7, v0")
    e("v_xor_b32 v6, v6, v7")
    e("v_lshl_add_u32 v62, v6, 4, v5")
    e("s_mul_i32 s46, s22, 163840")
    e("s_lshl_b32 s47, s20, 10")
    def cdma(kb):
        for m in range(2):
            e(f"s_add_u32 m0, s47, {81920 + (kb%4)*16384 + m*8192}")
            e(f"s_add_u32 s3, s46, {m*81920 + kb*128}")
            e("buffer_load_dwordx4 v62, s[24:27], s3 offen lds")
    for kb in range(3): cdma(kb)
    e("v_mov_b32 v144, 0"); e("v_mov_b32 v145, 0"); e("v_mov_b32 v146, 0"); e("v_mov_b32 v147, 0")
    e("v_lshlrev_b32 v4, 4, v3")
    for i in range(8):
        e(f"ds_write_b128 v4, v[144:147] offset:{i*8192}")
    e("v_add_u32 v5, 65536, v4")
    for i in range(2):
        e(f"ds_write_b128 v5, v[144:147] offset:{i*8192}")
    e("s_waitcnt lgkmcnt(0)")
    e("s_barrier")
    e("s_mov_b32 s3, 0xCCCCCCCD")
    e("s_waitcnt vmcnt(6)")
    for i in range(13):
        e(f"v_add_u32 v4, {512*i}, v3")
        e("v_mul_hi_u32 v5, v4, s3")
        e("v_lshrrev_b32 v5, 3, v5")
        e("v_mul_u32_u24 v6, 10, v5")
        e("v_sub_u32 v6, v4, v6")
        e("v_lshlrev_b32 v5, 6, v5")
        e("v_lshl_add_u32 v5, v6, 2, v5")
        if i == 12:
            e("v_cmp_gt_u32 vcc, 256, v3")
            e("s_and_saveexec_b64 s[44:45], vcc")
        e(f"ds_write_b32 v5, v{8+i}")
        e(f"ds_write_b32 v5, v{33+i} offset:40960")
        if i == 12:
            e("s_mov_b64 exec, s[44:45]")
    e("v_lshlrev_b32 v4, 6, v3")
    e("ds_write_b16 v4, v58 offset:44")
    e("v_cmp_gt_u32 vcc, 128, v3")
    e("s_and_saveexec_b64 s[44:45], vcc")
    e(f"ds_write_b16 v4, v59 offset:{44+32768}")
    e("s_mov_b64 exec, s[44:45]")
    e("s_waitcnt lgkmcnt(0)")
    e("s_barrier")
    e("v_bfe_u32 v3, v0, 2, 2")
    e("v_lshrrev_b32 v5, 5, v0")
    e("v_lshl_add_u32 v4, v5, 3, v3")
    e("v_lshlrev_b32 v4, 6, v4")
    e("v_bfe_u32 v6, v0, 4, 1")
    e("v_lshl_add_u32 v4, v6, 5, v4")
    e("v_and_b32 v6, 3, v0")
    e("v_lshl_add_u32 v4, v6, 3, v4")
    e(f"s_mul_i32 s48, s21, {KV_TILE}")
    e(f"s_add_u32 s48, s48, {KVBUF}")
    e("v_lshlrev_b32 v1, 4, v0")
    e("v_lshlrev_b32 v2, 3, v0")
    e("v_mov_b32 v60, 0x3f803f80")
    e("v_mov_b32 v61, 0")
    KA = 144
    e("v_and_b32 v5, 31, v0")
    e("s_and_b32 s44, s20, 3")
    e("s_lshl_b32 s44, s44, 5")
    e("v_add_u32 v5, s44, v5")
    e("v_lshrrev_b32 v6, 1, v5")
    e("v_and_b32 v6, 7, v6")
    e("v_lshrrev_b32 v7, 5, v0")
    e("v_lshlrev_b32 v5, 7, v5")
    e("v_add_u32 v5, 81920, v5")
    for ks in range(4):
        e(f"v_or_b32 v24, {ks*2}, v7")
        e("v_xor_b32 v24, v24, v6")
        e(f"v_lshl_add_u32 v{64+ks}, v24, 4, v5")
    e("s_cmp_ge_u32 s20, 4")
    e("s_cbranch_scc1 K1_C_V")
    def body(isV):
        for kb in range(10):
            e(f"s_waitcnt vmcnt({2*min(2, 9-kb)})")
            e("s_barrier")
            if kb + 3 < 10: cdma(kb+3)
            for ks in range(4):
                k = kb*4 + ks
                e(f"ds_read_b128 {vr(72+ks*4,4)}, v{64+ks} offset:{(kb%4)*16384}")
                e(f"ds_read_b64_tr_b16 {vr(8+ks*4,2)}, v4 offset:{k*1024}")
                e(f"ds_read_b64_tr_b16 {vr(10+ks*4,2)}, v4 offset:{k*1024+256}")
            for ks in range(4):
                e(f"s_waitcnt lgkmcnt({9-3*ks})")
                ck = "0" if (kb == 0 and ks == 0) else vr(KA, 16)
                if isV: e(f"v_mfma_f32_32x32x16_bf16 {vr(KA,16)}, {vr(72+ks*4,4)}, {vr(8+ks*4,4)}, {ck}")
                else:   e(f"v_mfma_f32_32x32x16_bf16 {vr(KA,16)}, {vr(8+ks*4,4)}, {vr(72+ks*4,4)}, {ck}")
        e("s_nop 15")
    body(False)
    for i in range(6):
        e(f"v_cvt_pk_bf16_f32 v{8+i}, v{KA+2*i}, v{KA+2*i+1}")
    e(f"v_mul_f32 v20, 0xbfb8aa3b, v{KA+10}")
    e("v_exp_f32 v20, v20")
    e("s_nop 0")
    e("v_add_f32 v20, 1.0, v20")
    e("v_rcp_f32 v20, v20")
    e("v_cmp_le_u32 vcc, 32, v0")
    e("s_nop 1")
    e("v_cndmask_b32 v12, v12, v60, vcc")
    e("v_cndmask_b32 v13, v13, v61, vcc")
    e("buffer_store_dwordx4 v[8:11], v1, s[28:31], s48 offen sc1")
    e("buffer_store_dwordx2 v[12:13], v2, s[28:31], s48 offen offset:1024 sc1")
    e("s_lshl_b32 s44, s21, 7")
    e(f"s_add_u32 s44, s44, {GBUF - 128}")
    e("v_lshlrev_b32 v23, 2, v0")
    e("s_and_saveexec_b64 s[46:47], vcc")
    e("buffer_store_dword v20, v23, s[28:31], s44 offen sc1")
    e("s_mov_b64 exec, -1")
    e("s_branch P1_DONE")
    e.label("K1_C_V")
    e("v_add_u32 v4, 40960, v4")
    body(True)
    e("v_and_b32 v23, 31, v0")
    e("v_cmp_eq_u32 vcc, 20, v23")
    for i in range(8):
        e(f"v_cvt_pk_bf16_f32 v{24+i}, v{KA+2*i}, v{KA+2*i+1}")
    for i in range(8):
        e(f"v_cndmask_b32 v{24+i}, v{24+i}, v60, vcc")
    e("buffer_store_dwordx4 v[24:27], v1, s[28:31], s48 offen offset:1536 sc1")
    e("buffer_store_dwordx4 v[28:31], v1, s[28:31], s48 offen offset:2560 sc1")
    stamp(e, 4)
    stamp_flush(e, 5, 0, "s20", 2)
    e("s_mov_b64 exec, -1")
    e("s_branch P1_DONE")
    e.label("K1_HELP")
    e("s_sub_u32 s20, s20, 8")
    srd(e, 48, 60, 819200)
    srd(e, 52, 62, 1966080)
    e("s_lshl_b32 s3, s2, 2")
    e("s_add_u32 s3, s3, s20")
    e("s_lshl_b32 s3, s3, 10")
    e("s_add_u32 s44, s3, 0x100000")
    e("s_add_u32 s45, s3, 0x200000")
    e("v_lshlrev_b32 v1, 4, v0")
    srd(e, 68, 64, 256)
    e("v_mov_b32 v2, 0")
    e("s_or_b32 s46, s2, s20")
    e("s_cmp_lg_u32 s46, 0")
    e("s_cbranch_scc1 K1_T0")
    e("s_memrealtime s[46:47]")
    e("s_waitcnt lgkmcnt(0)")
    e("s_or_b32 s46, s46, 1")
    e("v_mov_b32 v3, s46")
    e("s_mov_b64 exec, 1")
    e("buffer_store_dword v3, v2, s[68:71], 0 offen sc1")
    e("s_mov_b64 exec, -1")
    e.label("K1_T0")
    if os.environ.get("LOADER"):
        e("s_cmp_eq_u32 s56, 0")
        e("s_cbranch_scc1 K1_HC")
        e("s_lshl_b32 s41, s40, 2"); e("s_lshl_b32 s42, s40, 3"); e("s_add_u32 s43, s41, s42")
        e("s_lshl_b32 s58, s40, 6")
        e("s_lshl_b32 s59, s40, 4"); e("s_mul_i32 s59, s59, s20")
        e("s_mul_i32 s46, s22, 163840")
        e("s_lshl_b32 s47, s20, 10"); e("s_lshl_b32 s72, s20, 12"); e("s_add_u32 s72, s72, 16384")
        e("s_and_b32 s73, s20, 1")
        e("v_lshrrev_b32 v13, 3, v0"); e("s_lshl_b32 s74, s20, 3"); e("v_add_u32 v13, s74, v13"); e("v_mul_u32_u24 v13, 0x500, v13")
        e("v_lshrrev_b32 v14, 4, v0"); e("s_lshl_b32 s74, s73, 2"); e("v_add_u32 v14, s74, v14"); e("v_and_b32 v14, 7, v14")
        e("v_and_b32 v15, 7, v0"); e("v_xor_b32 v14, v14, v15"); e("v_lshl_add_u32 v16, v14, 4, v13")
        e("v_lshrrev_b32 v14, 4, v0"); e("v_mul_lo_u32 v13, v14, s40"); e("v_lshlrev_b32 v14, 2, v14")
        e("v_and_b32 v15, 15, v0"); e("v_xor_b32 v14, v14, v15"); e("v_lshl_add_u32 v17, v14, 4, v13")
        def ld(kb):
            base = (kb % 3) * 49152
            for m in range(4):
                e(f"s_add_u32 m0, s47, {base + m*4096}")
                e(f"s_add_u32 s74, s46, {m*40960 + kb*128}")
                e("buffer_load_dwordx4 v16, s[24:27], s74 offen lds")
            for ee in range(4):
                for u in range(2):
                    e(f"s_add_u32 m0, s72, {base + u*16384 + ee*1024}")
                    e(f"s_add_u32 s74, s59, s{40+ee}" if ee else "s_mov_b32 s74, s59")
                    e(f"buffer_load_dwordx4 v17, s[{32+4*u}:{35+4*u}], s74 offen lds")
            e("s_add_u32 s59, s59, s58")

        if os.environ.get("PF2"):
            ld(0); e("s_barrier"); e("s_waitcnt vmcnt(0)"); e("s_barrier"); ld(1); ld(2)
        else:
            e("s_barrier"); ld(0); ld(1); e("s_waitcnt vmcnt(12)"); e("s_barrier"); ld(2)
        for kb in range(8):
            e(f"s_waitcnt vmcnt({(15 if kb in (2, 3) else 12) if kb + 2 <= 9 else 0})")
            e("s_barrier")
            if kb + 3 <= 9: ld(kb + 3)
            if kb == 1:
                e("buffer_load_dwordx4 v[4:7], v1, s[52:55], s3 offen")
                e("buffer_load_dwordx4 v[8:11], v1, s[52:55], s44 offen")
                e("buffer_load_dwordx4 v[20:23], v1, s[48:51], s3 offen")
        e("s_waitcnt vmcnt(0)")
        e("s_branch K1_HD")
        e.label("K1_HC")
    srd(e, 32, 12, 1966080)
    srd(e, 36, 14, 1966080)
    srd(e, 40, 6, 819200)
    e("s_barrier")
    e("buffer_load_dwordx4 v[4:7], v1, s[24:27], s3 offen")
    e("buffer_load_dwordx4 v[4:7], v1, s[32:35], s3 offen")
    e("buffer_load_dwordx4 v[4:7], v1, s[36:39], s3 offen")
    e("buffer_load_dwordx4 v[4:7], v1, s[24:27], s44 offen")
    e("buffer_load_dwordx4 v[4:7], v1, s[24:27], s45 offen")
    e("buffer_load_dwordx4 v[4:7], v1, s[40:43], s3 offen")
    e("buffer_load_dwordx4 v[4:7], v1, s[32:35], s44 offen")
    e("buffer_load_dwordx4 v[4:7], v1, s[36:39], s44 offen")
    for i in range(6): e("s_barrier")
    e("buffer_load_dwordx4 v[4:7], v1, s[52:55], s3 offen")
    e("buffer_load_dwordx4 v[8:11], v1, s[52:55], s44 offen")
    e("buffer_load_dwordx4 v[12:15], v1, s[48:51], s3 offen")
    for i in range(3): e("s_barrier")
    e.label("K1_HD")
    e("s_cmp_lg_u32 s20, 0")
    e("s_cbranch_scc1 K1_T5")
    e("s_mov_b32 s47, 0")
    e.label("K1_T4")
    e("buffer_load_dword v3, v2, s[68:71], 0 offen sc1")
    e("s_waitcnt vmcnt(0)")
    e("v_readfirstlane_b32 s46, v3")
    e("s_add_u32 s47, s47, 1")
    e("s_cmp_ge_u32 s47, 0x100000")
    e("s_cbranch_scc1 K1_T6")
    e("s_cmp_eq_u32 s46, 0")
    e("s_cbranch_scc1 K1_T4")
    e.label("K1_T6")
    e(f"v_mov_b32 v2, {CNT}")
    e("ds_write_b32 v2, v3 offset:8")
    e("s_waitcnt lgkmcnt(0)")
    e.label("K1_T5")
    e("s_and_b32 s47, s2, 7"); e("s_lshl_b32 s47, s47, 3"); e("s_lshr_b32 s74, s2, 5"); e("s_add_u32 s47, s47, s74")
    e("v_lshl_add_u32 v5, v0, 4, 15")
    e("s_lshr_b32 s47, s47, 2"); e("s_lshl_b32 s47, s47, 4"); e("s_sub_u32 s47, s47, 4")
    e("v_add_u32 v6, s47, v0")
    e("v_cmp_gt_u32 vcc, 16, v0")
    e("s_nop 1")
    e("v_cndmask_b32 v5, v6, v5, vcc")
    e("v_lshlrev_b32 v5, 7, v5")
    e(f"v_mov_b32 v2, {CNT}")
    for i in range(2): e("s_barrier")
    e("s_cmp_lg_u32 s20, 0")
    e("s_cbranch_scc1 P1_DONE")
    e(f"s_mov_b32 s47, {FLAG1}")
    e("s_mov_b64 exec, 0x7ffff")
    e("v_mov_b32 v7, 1")
    for it in range(2):
        e("buffer_load_dword v6, v5, s[28:31], s47 offen sc1")
        e("s_waitcnt vmcnt(0)")
        e("v_cmp_ne_u32 vcc, s46, v6")
        e("s_nop 1")
        e("s_cbranch_vccz K1_RDY")
    e("v_mov_b32 v7, 0")
    e.label("K1_RDY")
    e("s_mov_b64 exec, 1")
    e("ds_write_b32 v2, v7 offset:12")
    e("s_mov_b64 exec, -1")
    e("s_waitcnt lgkmcnt(0)")
    e.label("P1_DONE")
    e("s_waitcnt vmcnt(0)")
    e("s_barrier")
    e("s_lshl_b32 s76, s22, 4")
    e("s_add_u32 s76, s76, s23")
    return name, 168, 147456, 256, 768
```

```python
from common import *

RING = 4 * 14336
CNT = RING + 4*5*5120
def div20(e, vdst_q, vdst_r, vsrc, stmp):
    e(f"s_mov_b32 {stmp}, 0xCCCCCCCD")
    e(f"v_mul_hi_u32 v{vdst_q}, v{vsrc}, {stmp}")
    e(f"v_lshrrev_b32 v{vdst_q}, 4, v{vdst_q}")
    e(f"v_mul_u32_u24 v{vdst_r}, 20, v{vdst_q}")
    e(f"v_sub_u32 v{vdst_r}, v{vsrc}, v{vdst_r}")

def splitk_gemm(e, pfx, ksteps, nslab, srdW, srdWS, s_slab, barrier_every=None, barrier_count=0):
    n = len(ksteps)
    XR = lambda k: 40 + (k % nslab) * 4
    def issue(k):
        vs, wo, xo = ksteps[k]
        slab = (k % nslab) * 5120
        e(f"s_add_u32 s62, s60, {wo}")
        for i in range(5):
            e(f"s_add_u32 m0, {s_slab}, {slab + i*1024}")
            e("s_nop 0")
            e(f"buffer_load_dwordx4 v{1+vs*5+i}, {sr(srdW,4)}, s62 offen lds")
        e(f"s_add_u32 s63, s61, {xo}")
        e(f"buffer_load_dwordx4 {vr(XR(k),4)}, v12, {sr(srdWS,4)}, s63 offen sc1")
    pre = min(nslab - 1, n)
    for k in range(pre):
        issue(k)
    nb = 0
    for k in range(n):
        if barrier_every and k % barrier_every == 0 and nb < barrier_count:
            e("s_barrier"); nb += 1
        issued = min(n, k + nslab - 1)
        e(f"s_waitcnt vmcnt({(issued - k - 1) * 6})")
        slab = (k % nslab) * 5120
        for nt in range(5):
            for uu in range(2):
                e(f"ds_read_b64_tr_b16 {vr(16+nt*4+uu*2,2)}, v11 offset:{slab + uu*2560 + nt*64}")
        if k + nslab - 1 < n:
            issue(k + nslab - 1)
        for nt in range(5):
            e(f"s_waitcnt lgkmcnt({8 - 2*nt})")
            cc = "0" if k == 0 else vr(80+nt*16, 16)
            e(f"v_mfma_f32_32x32x16_bf16 {vr(80+nt*16,16)}, {vr(16+nt*4,4)}, {vr(XR(k),4)}, {cc}")
    return nb

def gemm_addr_setup(e, s_slab, type2=False):
    for i in range(5):
        e(f"v_add_u32 v13, {i*64}, v0")
        div20(e, 14, 15, 13, "s62")
        e("v_lshlrev_b32 v15, 4, v15")
        e(f"v_mad_u32_u24 v{1+i}, v14, s59, v15")
        if type2:
            e("v_bfe_u32 v13, v14, 2, 1")
            e("v_lshrrev_b32 v36, 3, v14")
            e("v_lshl_add_u32 v13, v13, 1, v36")
            e("v_mul_u32_u24 v13, 20, v13")
            e("v_and_b32 v36, 3, v14")
            e("v_add_u32 v13, v13, v36")
            e(f"v_mad_u32_u24 v{6+i}, v13, s59, v15")
    e("v_bfe_u32 v13, v0, 2, 2")
    e("v_lshrrev_b32 v14, 5, v0")
    e("v_lshl_add_u32 v13, v14, 2, v13")
    e("v_mul_u32_u24 v13, 320, v13")
    e("v_bfe_u32 v14, v0, 4, 1")
    e("v_lshl_add_u32 v13, v14, 5, v13")
    e("v_and_b32 v14, 3, v0")
    e("v_lshl_add_u32 v13, v14, 3, v13")
    e(f"v_add_u32 v11, {s_slab}, v13")
    e("v_lshlrev_b32 v12, 4, v0")

def reduce_write(e, s_slab):
    e("s_nop 15")
    e(f"v_add_u32 v13, {s_slab}, v12")
    for q in range(20):
        e(f"ds_write_b128 v13, {vr(80+q*4,4)} offset:{q*1024}")
    e("s_waitcnt lgkmcnt(0)")
    e("s_barrier")

def reduce_read(e, area_stride, s_base, wait="lgkmcnt(0)"):
    e(f"v_add_u32 v13, {s_base}, v12")
    e(f"v_add_u32 v14, {2*area_stride}, v13")
    for p in range(4):
        for q in range(5):
            e(f"ds_read_b128 {vr(80+(p*5+q)*4,4)}, v{13 + p//2} offset:{(p%2)*area_stride + q*1024}")
    e(f"s_waitcnt {wait}")
    for p in range(1, 4):
        for i in range(20):
            e(f"v_add_f32 v{80+i}, v{80+i}, v{80+p*20+i}")

def gen_k2(e):
    name = "k2"
    e("s_mov_b64 s[4:5], s[62:63]")
    e("s_mov_b64 s[6:7], s[18:19]")
    e("s_mov_b64 s[8:9], s[60:61]")
    e("s_mov_b64 s[12:13], s[66:67]")
    e("s_mov_b64 s[14:15], s[64:65]")
    e("s_mov_b32 s20, s79")
    e(f"v_mov_b32 v14, {CNT}")
    e("ds_read_b64 v[2:3], v14 offset:8")
    e("s_and_b32 s21, s2, 7")
    e("s_lshl_b32 s21, s21, 3")
    e("s_lshr_b32 s22, s2, 5")
    e("s_add_u32 s21, s21, s22")
    e("s_bfe_u32 s22, s2, 0x20003")
    e("s_waitcnt lgkmcnt(0)")
    srd(e, 28, 6, WS_END)
    e("v_readfirstlane_b32 s77, v2")
    e("v_readfirstlane_b32 s75, v3")
    stamp(e, 0)
    e("s_cmp_ge_u32 s20, 8")
    e("s_cbranch_scc1 K2_GEMM")
    def poll(tag, mask):
        e(f"s_mov_b32 s3, {FLAG1}")
        e("s_mov_b32 s63, 0")
        e(f"s_mov_b64 exec, {mask}")
        e.label(f"K2_PL{tag}")
        e("buffer_load_dword v112, v113, s[28:31], s3 offen sc1")
        e("s_waitcnt vmcnt(0)")
        e("v_cmp_ne_u32 vcc, s77, v112")
        e("s_nop 1")
        e(f"s_cbranch_vccz K2_PD{tag}")
        e("s_sleep 1")
        e("s_add_u32 s63, s63, 1")
        e("s_cmp_lt_u32 s63, 0x100000")
        e(f"s_cbranch_scc1 K2_PL{tag}")
        e.label(f"K2_PD{tag}")
        e("s_mov_b64 exec, -1")
    e("v_lshl_add_u32 v113, v0, 4, 15")
    e("s_lshr_b32 s3, s21, 2")
    e("s_lshl_b32 s3, s3, 4")
    e("s_sub_u32 s3, s3, 4")
    e("v_add_u32 v112, s3, v0")
    e("v_cmp_gt_u32 vcc, 16, v0")
    e("s_nop 1")
    e("v_cndmask_b32 v113, v112, v113, vcc")
    e("v_lshlrev_b32 v113, 7, v113")
    e("s_cmp_eq_u32 s75, 1")
    e("s_cbranch_scc1 K2_PX2")
    e("s_cmp_lg_u32 s20, 7")
    e("s_cbranch_scc1 K2_PX")
    poll("a", "0xffff")
    e.label("K2_PX")
    e("s_barrier")
    e.label("K2_PX2")
    import os
    if os.environ.get("NOATTN"): e("s_endpgm")
    S = [16, 32]; O = 48; P = 64; Q1 = 72; Q2 = 76
    K1 = lambda p: 80 + p*8
    K2 = lambda p: 84 + p*8
    V = lambda p, t: 96 + p*8 + t*4
    e("s_lshl_b32 s23, s22, 3")
    e("s_add_u32 s23, s23, s20")
    e("s_mul_i32 s3, s23, 81920")
    e("s_lshl_b32 s24, s21, 8")
    e("s_add_u32 s3, s3, s24")
    e("v_and_b32 v1, 31, v0")
    e("v_lshlrev_b32 v1, 3, v1")
    e("v_lshrrev_b32 v2, 5, v0")
    e("v_lshl_add_u32 v2, v2, 14, v1")
    e("s_add_u32 s24, s3, 32768")
    e("s_add_u32 s25, s3, 65536")
    e("s_mov_b32 s41, s3"); e("s_mov_b32 s42, s24"); e("s_mov_b32 s43, s25")
    e("v_lshlrev_b32 v3, 4, v0")
    e("v_lshlrev_b32 v4, 3, v0")
    e("s_lshl_b32 s26, s20, 11")
    e(f"s_add_u32 s27, s26, {KVBUF}")
    def emit_dma(tag):
        e("s_cmp_eq_u32 s20, 7")
        e(f"s_cbranch_scc1 K2_SK{tag}")
        e("s_mov_b32 m0, s36")
        e("s_add_u32 s3, s37, 1024")
        e("buffer_load_dwordx4 v3, s[28:31], s37 offen sc1 lds")
        e("s_add_u32 m0, s36, 1024")
        e("s_nop 0")
        e("buffer_load_dwordx4 v3, s[28:31], s3 offen sc1 lds")
        e.label(f"K2_SK{tag}")
        e("s_add_u32 s37, s37, 14336")
        e("s_add_u32 s36, s36, 14336")
        e(f"s_cmp_ge_u32 s36, {RING}")
        e(f"s_cselect_b32 s3, {RING}, 0")
        e("s_sub_u32 s36, s36, s3")
    e("s_mov_b32 s36, s26")
    e("s_mov_b32 s37, s27")
    emit_dma("a"); emit_dma("b"); emit_dma("c")
    e("s_cmp_eq_u32 s75, 1")
    e("s_cbranch_scc1 K2_PY2")
    e("s_cmp_lg_u32 s20, 7")
    e("s_cbranch_scc1 K2_PY")
    poll("b", "0x70000")
    e.label("K2_PY")
    e("s_barrier")
    e.label("K2_PY2")
    e(f"buffer_load_dwordx2 {vr(Q1,2)}, v2, s[28:31], s41 offen sc1")
    e(f"buffer_load_dwordx2 {vr(Q1+2,2)}, v2, s[28:31], s42 offen sc1")
    e(f"buffer_load_dwordx2 {vr(Q2,2)}, v1, s[28:31], s43 offen sc1")
    e("v_lshrrev_b32 v13, 1, v1")
    e("s_lshl_b32 s24, s21, 7")
    e(f"s_add_u32 s24, s24, {GBUF}")
    e("buffer_load_dword v13, v13, s[28:31], s24 offen sc1")
    for r in (K2(0)+2, K2(0)+3, K2(1)+2, K2(1)+3, Q2+2, Q2+3, P+4, P+5, P+6, P+7, V(1,1), V(1,1)+1, V(1,1)+2, V(1,1)+3):
        e(f"v_mov_b32 v{r}, 0")
    for i in range(16):
        e(f"v_mov_b32 v{O+i}, 0")
    e("v_cmp_le_u32 s[32:33], 32, v0")
    e("v_mov_b32 v8, v3"); e("v_mov_b32 v9, v4")
    e("v_add_u32 v10, 14336, v3"); e("v_add_u32 v11, 14336, v4")
    e("s_mov_b32 s38, 28672")
    e(f"v_mov_b32 v14, {CNT}")
    e("v_mov_b32 v15, 1")
    e("v_mov_b32 v6, 0"); e("v_mov_b32 v7, 0")
    e("ds_write_b64 v14, v[6:7]")
    e("s_mov_b32 s40, 8")
    e("s_waitcnt lgkmcnt(0)")
    e("s_waitcnt vmcnt(0)")
    e("s_barrier")
    stamp(e, 1)
    e(f"v_cndmask_b32 v{Q2}, v{Q2}, 0, s[32:33]")
    e(f"v_cndmask_b32 v{Q2+1}, v{Q2+1}, 0, s[32:33]")
    def rdK(t):
        p = t & 1; a16 = 8 if t < 4 else 10; off = (t % 4) * KV_TILE
        return [f"ds_read_b128 {vr(K1(p),4)}, v{a16} offset:{off}",
                f"ds_read_b64 {vr(K2(p),2)}, v{a16+1} offset:{off+1024}"]
    def rdV(t):
        p = t & 1; a16 = 8 if t < 4 else 10; off = (t % 4) * KV_TILE
        return [f"ds_read_b128 {vr(V(p,0),4)}, v{a16} offset:{off+1536}",
                f"ds_read_b128 {vr(V(p,1),4)}, v{a16} offset:{off+2560}"]
    for ins in rdK(0) + rdK(1) + rdV(0): e(ins)
    e("s_waitcnt lgkmcnt(0)")
    def qk(t, which):
        p = t & 1; s = S[t & 1]
        if which == 0:
            return f"v_mfma_f32_32x32x16_bf16 {vr(s,16)}, {vr(K1(p),4)}, {vr(Q1,4)}, 0"
        return f"v_mfma_f32_32x32x8_bf16 {vr(s,16)}, {vr(K2(p),2)}, {vr(Q2,2)}, {vr(s,16)}"
    def set_fold(src16, running=None):
        e(f"v_max3_f32 v5, v{src16}, v{src16+1}, v{src16+2}")
        for i in range(3, 15, 2):
            e(f"v_max3_f32 v5, v5, v{src16+i}, v{src16+i+1}")
        e(f"v_max_f32 v5, v5, v{src16+15}")
    def fold_from_v5():
        e("v_mov_b32 v6, v5")
        e("s_nop 1")
        e("v_permlane32_swap_b32 v5, v6")
        e("s_nop 1")
        e("v_max_f32 v5, v5, v6")
        e("v_sub_f32 v5, 0, v5")
        e("v_cvt_pk_bf16_f32 v6, v5, v5")
        e("v_lshlrev_b32 v6, 16, v6")
        e("v_sub_f32 v6, v5, v6")
        e("v_cvt_pk_bf16_f32 v6, v5, v6")
        e(f"v_cndmask_b32 v{Q2}, v{Q2}, v6, s[32:33]")
        e("s_nop 1")
    e(qk(0, 0)); e(qk(0, 1))
    e("s_nop 15")
    set_fold(S[0])
    fold_from_v5()
    e(qk(0, 0)); e(qk(0, 1))
    e("s_mov_b32 s39, 0")
    if DO_STAMP: e("s_mov_b32 s94, 0")
    e("s_nop 7")
    def pv(t, h):
        p = t & 1
        return f"v_mfma_f32_32x32x16_bf16 {vr(O,16)}, {vr(V(p,h),4)}, {vr(P+4*h,4)}, {vr(O,16)}"
    def grp(s, q):
        for i in range(4):
            e(f"v_exp_f32 v{s+4*q+i}, v{s+4*q+i}")
        e(f"v_cvt_pk_bf16_f32 v{P+2*q}, v{s+4*q}, v{s+4*q+1}")
        e(f"v_cvt_pk_bf16_f32 v{P+2*q+1}, v{s+4*q+2}, v{s+4*q+3}")
    stamp(e, 2)
    if "prio" in os.environ.get("VAR", ""):
        e("s_cmp_ge_u32 s20, 4")
        e("s_cbranch_scc0 K2_NP")
        e("s_setprio 1")
        e.label("K2_NP")
    if "late" in os.environ.get("VAR", ""):
        for r in range(12, 16): e(f"v_mov_b32 v{S[1]+r}, 0")
    if "pair" in os.environ.get("VAR", ""):
        for r in (P, P+1, P+2, P+3, V(1,0), V(1,0)+1, V(1,0)+2, V(1,0)+3): e(f"v_mov_b32 v{r}, 0")
    e.l.append(".p2align 6")
    e.label("K2_LOOP")
    VAR = os.environ.get("VAR", "")
    def ex(s, q):
        for i in range(4):
            e(f"v_exp_f32 v{s+4*q+i}, v{s+4*q+i}")
    def cv(s, q):
        e(f"v_cvt_pk_bf16_f32 v{P+2*q}, v{s+4*q}, v{s+4*q+1}")
        e(f"v_cvt_pk_bf16_f32 v{P+2*q+1}, v{s+4*q+2}, v{s+4*q+3}")
    for i in range(4):
        s = S[i & 1]; sp = S[(i+1) & 1]
        def upd():
            e("v_mov_b32 v8, v10"); e("v_mov_b32 v9, v11")
            e("v_add_u32 v10, s38, v3"); e("v_add_u32 v11, s38, v4")
            e("s_add_u32 s38, s38, 14336")
            e(f"s_cmp_ge_u32 s38, {RING}")
            e(f"s_cselect_b32 s3, {RING}, 0")
            e("s_sub_u32 s38, s38, s3")
            e("s_add_u32 s39, s39, 1")
        def head():
            if "tog" in VAR: e(f"s_setprio {(3 - ((i+2)%4))}")
            if i == 0:
                e("s_waitcnt vmcnt(2) lgkmcnt(0)")
                e("s_mov_b64 exec, 1")
                e("ds_add_u32 v14, v15")
                e("s_mov_b64 exec, -1")
            elif i == 1:
                e("s_waitcnt lgkmcnt(0)")
                e("ds_read_b32 v7, v14")
            elif i == 2:
                e.label("K2_CHK")
                e("s_waitcnt lgkmcnt(0)")
                e("v_readfirstlane_b32 s3, v7")
                e("s_cmp_ge_u32 s3, s40")
                e("s_cbranch_scc0 K2_SLOW")
                e("s_add_u32 s40, s40, 8")
            else:
                e("s_waitcnt lgkmcnt(0)")
                e("s_nop 0")
        if "pair" in VAR:
            head()
            for ins in rdK(i+2): e(ins)
            e("s_nop 1")
            ex(s, 0)
            cv(sp, 3)
            if i == 2: emit_dma("d")
            else: e("s_nop 0")
            e(pv(i+1, 0))
            e(pv(i+1, 1))
            for ins in rdV(i+1): e(ins)
            ex(s, 1); cv(s, 0)
            if i == 3: upd()
            ex(s, 2); cv(s, 1)
            e(qk(i+1, 0))
            e(qk(i+1, 1))
            ex(s, 3); cv(s, 2)
        elif "late" in VAR:
            head()
            for ins in rdK(i+2): e(ins if "nords" not in VAR else "s_nop 0")
            ex(s, 0)
            cv(sp, 3)
            e(qk(i+1, 0)) if False else None
            if i == 2 and "nobar" not in VAR: emit_dma("d")
            else: e("s_nop 1")
            e(pv(i+1, 1))
            for ins in rdV(i+1): e(ins if ("nords" not in VAR and "norv" not in VAR) else "s_nop 0")
            ex(s, 1); cv(s, 0)
            e(qk(i+1, 0))
            if i == 3: upd()
            ex(s, 2); cv(s, 1)
            e(qk(i+1, 1))
            ex(s, 3); cv(s, 2)
            e(pv(i, 0))
        else:
            head()
            for ins in rdK(i+2): e(ins)
            e(pv(i+1, 1))
            for ins in rdV(i+1): e(ins)
            if i == 2 and "nobar" not in VAR:
                emit_dma("d")
            grp(s, 0)
            e(qk(i+1, 0))
            grp(s, 1)
            e(qk(i+1, 1))
            if i == 3: upd()
            grp(s, 2)
            e(pv(i, 0))
            grp(s, 3)
    e("s_cmp_lt_u32 s39, 16")
    e("s_cbranch_scc1 K2_LOOP")
    stamp(e, 3)
    if "late" in VAR: cv(S[1], 3)
    e("s_nop 1")
    if "pair" in VAR: e(pv(63, 0))
    e(pv(63, 1))
    e("s_nop 15")
    e(f"v_max3_f32 v5, |v{O}|, |v{O+1}|, |v{O+2}|")
    for i in range(3, 11, 2):
        e(f"v_max3_f32 v5, v5, |v{O+i}|, |v{O+i+1}|")
    e(f"v_max_f32 v5, v5, |v{O+11}|")
    e("s_mov_b32 s3, 0x7b800000")
    e("v_cmp_nlt_f32 vcc, v5, s3") if False else None
    e("v_mov_b32 v7, s3")
    e("v_cmp_nlt_f32 s[34:35], v5, v7")
    e(f"v_mov_b32 v5, v{O+8}")
    e(f"v_mov_b32 v6, v{O+8}")
    e("s_nop 1")
    e("v_permlane32_swap_b32 v5, v6")
    e("v_mov_b32 v7, 0x53800000")
    e("s_nop 0")
    e("v_cmp_nlt_f32 vcc, v6, v7")
    e("s_nop 1")
    e("s_or_b64 vcc, vcc, s[34:35]")
    e("s_cbranch_vccnz K2_FALLBACK")
    e.label("K2_NORM")
    e("v_rcp_f32 v6, v6")
    e("s_nop 0")
    e("v_mul_f32 v6, v6, v13")
    for i in range(12):
        e(f"v_mul_f32 v{O+i}, v{O+i}, v6")
    for i in range(6):
        e(f"v_cvt_pk_bf16_f32 v{P+i}, v{O+2*i}, v{O+2*i+1}")
    e("s_mul_i32 s3, s21, 40")
    e("s_add_u32 s24, s3, s23")
    e("s_lshl_b32 s24, s24, 10")
    e(f"s_add_u32 s24, s24, {OBUF}")
    e(f"buffer_store_dwordx4 {vr(P,4)}, v3, s[28:31], s24 offen sc1")
    e("s_add_u32 s3, s3, 32")
    e("s_lshl_b32 s3, s3, 10")
    e("s_lshl_b32 s25, s23, 8")
    e("s_add_u32 s3, s3, s25")
    e(f"s_add_u32 s3, s3, {OBUF}")
    e("s_mov_b32 exec_hi, 0")
    e(f"buffer_store_dwordx2 {vr(P+4,2)}, v4, s[28:31], s3 offen sc1")
    e("s_lshl_b32 s62, s21, 2")
    e("s_add_u32 s62, s62, s22")
    e("s_lshl_b32 s62, s62, 7")
    e(f"s_add_u32 s62, s62, {FLAG}")
    e("v_mov_b32 v6, s77")
    e("v_mov_b32 v7, 0")
    e("s_waitcnt vmcnt(0)")
    e("s_mov_b64 exec, 1")
    e("ds_add_rtn_u32 v5, v14, v15 offset:4")
    e("s_waitcnt lgkmcnt(0)")
    e("v_readfirstlane_b32 s3, v5")
    e("s_cmp_lg_u32 s3, 7")
    e("s_cbranch_scc1 K2_NF")
    e("buffer_store_dword v6, v7, s[28:31], s62 offen sc1")
    e.label("K2_NF")
    stamp(e, 4)
    stamp_flush(e, 7, 1, "s79", 5)
    e("s_endpgm")
    e.label("K2_SLOW")
    if DO_STAMP: e("s_add_u32 s94, s94, 1")
    e("s_sleep 1")
    e("ds_read_b32 v7, v14")
    e("s_branch K2_CHK")
    e.label("K2_FALLBACK")
    e(f"v_cndmask_b32 v{Q2}, v{Q2}, 0, s[32:33]")
    e("v_mov_b32 v12, 0xff800000")
    e(f"s_mov_b32 s3, {KVBUF}")
    e.label("K2_FB1")
    e(f"buffer_load_dwordx4 {vr(K1(0),4)}, v3, s[28:31], s3 offen sc1")
    e(f"buffer_load_dwordx2 {vr(K2(0),2)}, v4, s[28:31], s3 offen offset:1024 sc1")
    e("s_waitcnt vmcnt(0)")
    e(qk(0, 0)); e(qk(0, 1))
    e("s_nop 15")
    set_fold(S[0])
    e("v_max_f32 v12, v12, v5")
    e(f"s_add_u32 s3, s3, {KV_TILE}")
    e(f"s_cmp_lt_u32 s3, {KVBUF + 64*KV_TILE}")
    e("s_cbranch_scc1 K2_FB1")
    e("v_mov_b32 v5, v12")
    fold_from_v5()
    for i in range(16):
        e(f"v_mov_b32 v{O+i}, 0")
    e(f"s_mov_b32 s3, {KVBUF}")
    e.label("K2_FB2")
    e(f"buffer_load_dwordx4 {vr(K1(0),4)}, v3, s[28:31], s3 offen sc1")
    e(f"buffer_load_dwordx2 {vr(K2(0),2)}, v4, s[28:31], s3 offen offset:1024 sc1")
    e(f"buffer_load_dwordx4 {vr(V(0,0),4)}, v3, s[28:31], s3 offen offset:1536 sc1")
    e(f"buffer_load_dwordx4 {vr(V(0,1),4)}, v3, s[28:31], s3 offen offset:2560 sc1")
    e("s_waitcnt vmcnt(0)")
    e(qk(0, 0)); e(qk(0, 1))
    e("s_nop 15")
    for q in range(4): grp(S[0], q)
    e("s_nop 1")
    e(pv(2, 0)); e(pv(2, 1))
    e(f"s_add_u32 s3, s3, {KV_TILE}")
    e(f"s_cmp_lt_u32 s3, {KVBUF + 64*KV_TILE}")
    e("s_cbranch_scc1 K2_FB2")
    e("s_nop 15")
    e(f"v_mov_b32 v5, v{O+8}")
    e(f"v_mov_b32 v6, v{O+8}")
    e("s_nop 1")
    e("v_permlane32_swap_b32 v5, v6")
    e("s_nop 1")
    e("s_branch K2_NORM")
    e.label("K2_GEMM")
    import os
    if os.environ.get("NOGEMM"): e("s_endpgm")
    NS = 5
    srd(e, 32, 4, 1966080)
    srd(e, 36, 8, 819200)
    srd(e, 40, 12, 2621440)
    srd(e, 44, 14, 256)
    e("s_sub_u32 s20, s20, 8")
    e("v_mov_b32 v13, 0")
    e("s_cmp_lg_u32 s20, 0")
    e("s_cbranch_scc1 K2_G0")
    e("s_lshl_b32 s62, s76, 7")
    e(f"s_add_u32 s62, s62, {FLAG1}")
    e("v_mov_b32 v14, s77")
    e("s_mov_b64 exec, 1")
    e("buffer_store_dword v14, v13, s[28:31], s62 offen sc1")
    e("s_mov_b64 exec, -1")
    e.label("K2_G0")
    e("s_mul_i32 s3, s20, 3")
    e("v_add_u32 v1, s3, v0")
    e("v_cmp_eq_u32 vcc, 3, v0")
    e("s_nop 1")
    e("v_cndmask_b32 v1, v1, 15, vcc")
    e("s_lshr_b32 s3, s21, 2")
    e("s_lshl_b32 s3, s3, 4")
    e("v_add_u32 v1, s3, v1")
    e("v_lshlrev_b32 v1, 7, v1")
    e(f"s_mov_b32 s3, {FLAG1}")
    e("s_mov_b32 s63, 0")
    e("s_cmp_eq_u32 s75, 1")
    e("s_cbranch_scc1 K2_G1")
    e("s_barrier")
    e("s_barrier")
    e.label("K2_G1")
    e("s_barrier")
    e("s_mov_b64 exec, 15")
    e.label("K2_GL")
    e("buffer_load_dword v2, v1, s[28:31], s3 offen sc1")
    e("s_waitcnt vmcnt(0)")
    e("v_cmp_ne_u32 vcc, s77, v2")
    e("s_nop 1")
    e("s_cbranch_vccz K2_GD")
    e("s_sleep 4")
    e("s_add_u32 s63, s63, 1")
    e("s_cmp_lt_u32 s63, 0x100000")
    e("s_cbranch_scc1 K2_GL")
    e.label("K2_GD")
    e("s_mov_b64 exec, -1")
    if os.environ.get("GP"): e(f"s_setprio {os.environ['GP']}")
    e(f"s_mul_i32 s58, s20, {NS*5120}")
    e(f"s_add_u32 s58, s58, {RING}")
    e("s_mov_b32 s59, 1280")
    gemm_addr_setup(e, "s58", type2=True)
    e("v_and_b32 v13, 31, v0")
    e("v_lshlrev_b32 v13, 2, v13")
    e("s_lshl_b32 s3, s21, 7")
    e(f"s_add_u32 s3, s3, {GBUF}")
    e("buffer_load_dword v160, v13, s[28:31], s3 offen sc1")
    e("s_mul_i32 s60, s20, 491520")
    e("s_mul_i32 s3, s22, 320")
    e("s_add_u32 s60, s60, s3")
    e("s_mul_i32 s61, s21, 96")
    e("s_mul_i32 s3, s20, 24")
    e("s_add_u32 s61, s61, s3")
    e("s_lshl_b32 s61, s61, 10")
    e(f"s_add_u32 s61, s61, {HBUF}")
    ks = [(0, k*20480, k*1024) for k in range(24)]
    nb = splitk_gemm(e, "K2", ks, NS, 32, 28, "s58", barrier_every=None, barrier_count=0)
    stamp(e, 1)
    e("s_setprio 3")
    e("s_mul_i32 s60, s22, 320")
    e("s_mul_i32 s3, s20, 204800")
    e("s_add_u32 s60, s60, s3")
    wk = [(0, k*20*1280) for k in range(8)] + [(1, (k*80+16)*1280) for k in range(2)]
    def wslab(k):
        vs, wo_ = wk[k]
        e(f"s_add_u32 s62, s60, {wo_}")
        for i in range(5):
            e(f"s_add_u32 m0, s58, {(k % NS)*5120 + i*1024}")
            e("s_nop 0")
            e(f"buffer_load_dwordx4 v{1+vs*5+i}, s[36:39], s62 offen lds")
    for k in range(NS): wslab(k)
    for k in range(NS, 10):
        vs, wo_ = wk[k]
        e(f"s_add_u32 s62, s60, {wo_}")
        for i in range(5):
            e(f"buffer_load_dwordx4 v[40:43], v{1+vs*5+i}, s[36:39], s62 offen")
    e("v_sub_f32 v160, 1.0, v160")
    e("s_nop 7")
    for i in range(80):
        e(f"v_mul_f32 v{80+i}, v{80+i}, v160")
    def rdw(k):
        base = 16 if k % 2 == 0 else 60
        slab = (k % NS) * 5120
        for nt in range(5):
            for uu in range(2):
                e(f"ds_read_b64_tr_b16 {vr(base+nt*4+uu*2,2)}, v11 offset:{slab + uu*2560 + nt*64}")
    e("s_setprio 0")
    e("s_waitcnt vmcnt(0)")
    rdw(0)
    e(f"v_mov_b32 v13, {CNT}")
    e("s_cmp_eq_u32 s20, s22")
    e("s_cselect_b32 s74, 8, 1")
    e.label("K2_GW")
    e("s_sleep 2")
    e("ds_read_b32 v14, v13 offset:4")
    e("s_waitcnt lgkmcnt(0)")
    e("v_readfirstlane_b32 s3, v14")
    e("s_cmp_ge_u32 s3, s74")
    e("s_cbranch_scc0 K2_GW")
    e.label("K2_GW2")
    stamp(e, 2)
    e("v_mov_b32 v13, 0")
    e.label("K2_POLL0")
    e("s_lshl_b32 s62, s21, 2")
    e("s_add_u32 s62, s62, s20")
    e("s_lshl_b32 s62, s62, 7")
    e(f"s_add_u32 s62, s62, {FLAG}")
    e("s_mov_b32 s63, 0")
    e("s_cmp_eq_u32 s20, s22")
    e("s_cbranch_scc1 K2_GO")
    e.label("K2_POLL")
    e("buffer_load_dword v14, v13, s[28:31], s62 offen sc1")
    e("s_waitcnt vmcnt(0)")
    e("v_readfirstlane_b32 s3, v14")
    e("s_cmp_eq_u32 s3, s77")
    e("s_cbranch_scc1 K2_GO")
    e("s_sleep 3")
    e("s_add_u32 s63, s63, 1")
    e("s_cmp_lt_u32 s63, 0x100000")
    e("s_cbranch_scc1 K2_POLL")
    e.label("K2_GO")
    e("s_setprio 3")
    stamp(e, 3)
    e("s_mul_i32 s61, s21, 40")
    e("s_lshl_b32 s61, s61, 10")
    e(f"s_add_u32 s61, s61, {OBUF}")
    e("s_lshl_b32 s3, s20, 11")
    e("s_add_u32 s63, s61, s3")
    e("s_add_u32 s63, s63, 32768")
    e("s_lshl_b32 s3, s20, 13")
    e("s_add_u32 s61, s61, s3")
    e("s_add_u32 s56, s61, 4096")
    XO = lambda k: 40 + (k % 5) * 4
    WS_ = lambda k: 16 if k % 2 == 0 else 60
    def xld(k):
        if k < 8: e(f"buffer_load_dwordx4 {vr(XO(k),4)}, v12, s[28:31], {'s61' if k < 4 else 's56'} offen offset:{(k%4)*1024} sc1")
        else:
            e(f"buffer_load_dwordx2 {vr(XO(k),2)}, v36, s[28:31], s63 offen offset:{(k-8)*1024} sc1")
            e(f"buffer_load_dwordx2 {vr(XO(k)+2,2)}, v36, s[28:31], s63 offen offset:{(k-8)*1024+256} sc1")
    e("v_and_b32 v36, 31, v0")
    e("v_lshlrev_b32 v36, 3, v36")
    e("v_lshrrev_b32 v37, 5, v0")
    e("v_lshl_add_u32 v36, v37, 9, v36")
    for k in range(5): xld(k)
    gsz = lambda g_: 5 + (2 if g_ >= 8 else 1)
    for k in range(10):
        last = min(9, k + 4)
        if k + 1 < 10:
            if k + 1 >= NS:
                e(f"s_waitcnt vmcnt({sum(gsz(g_) for g_ in range(k+2, last+1)) + gsz(k+1) - 5})")
            rdw(k + 1)
        if k == 0:
            e("s_waitcnt vmcnt(0)")
            stamp(e, 7)
        elif k >= 5: e(f"s_waitcnt vmcnt({sum(gsz(g_) for g_ in range(k+1, 10))})")
        e(f"s_waitcnt lgkmcnt({10 if k + 1 < 10 else 0})")
        for nt in range(5):
            e(f"v_mfma_f32_32x32x16_bf16 {vr(80+nt*16,16)}, {vr(WS_(k)+nt*4,4)}, {vr(XO(k),4)}, {vr(80+nt*16,16)}")
        if k + NS < 10:
            wslab(k + NS); xld(k + 5)
    stamp(e, 8)
    reduce_write(e, "s58")
    stamp(e, 9)
    e("s_mul_i32 s57, s20, 5120")
    e(f"s_add_u32 s57, s57, {RING}")
    reduce_read(e, NS*5120, "s57")
    for i in range(10):
        e(f"v_cvt_pk_bf16_f32 v{100+i}, v{80+2*i}, v{80+2*i+1}")
    e("v_and_b32 v13, 31, v0")
    e("v_mul_u32_u24 v13, 0x500, v13")
    e("v_lshrrev_b32 v14, 5, v0")
    e("v_lshl_add_u32 v13, v14, 3, v13")
    e("s_mul_i32 s3, s21, 40960")
    e("s_mul_i32 s62, s22, 320")
    e("s_add_u32 s3, s3, s62")
    e("s_mul_i32 s62, s20, 80")
    e("s_add_u32 s3, s3, s62")
    for q in range(5):
        e(f"buffer_store_dwordx2 {vr(100+2*q,2)}, v13, s[40:43], s3 offen offset:{q*16}")
    stamp(e, 4)
    stamp_flush(e, 5, 1, "s79", 13)
    e.label("K2_END")
    e("s_endpgm")
    return name, 168, RING + 4*NS*5120 + 64, 256, 768

def gen_k3(e):
    name = "k3_kernel"
    kernel_head(e, name)
    e("s_cmp_ge_u32 s2, 256")
    e("s_cbranch_scc1 K3_END")
    e("s_load_dwordx2 s[4:5], s[0:1], 32")
    e("s_load_dwordx2 s[6:7], s[0:1], 96")
    e("s_load_dwordx2 s[8:9], s[0:1], 80")
    e("v_lshrrev_b32 v1, 6, v0")
    e("v_and_b32 v0, 63, v0")
    e("s_nop 0")
    e("v_readfirstlane_b32 s20, v1")
    e("s_lshr_b32 s21, s2, 2")
    e("s_and_b32 s22, s2, 3")
    e("s_waitcnt lgkmcnt(0)")
    srd(e, 28, 6, WS_END)
    srd(e, 32, 4, 819200)
    srd(e, 36, 8, 2621440)
    stamp(e, 0)
    NS = 7
    e(f"s_mul_i32 s58, s20, {NS*5120}")
    e("s_mov_b32 s59, 1280")
    gemm_addr_setup(e, "s58", type2=True)
    e("s_mul_i32 s3, s2, 20480")
    e("s_mul_i32 s62, s20, 5120")
    e("s_add_u32 s3, s3, s62")
    e(f"s_add_u32 s3, s3, {BBUF}")
    e("s_add_u32 s62, s3, 4096")
    for q in range(5):
        if q < 4:
            e(f"buffer_load_dwordx4 {vr(160+q*4,4)}, v12, s[28:31], s3 offen offset:{q*1024}")
        else:
            e(f"buffer_load_dwordx4 {vr(160+q*4,4)}, v12, s[28:31], s62 offen")
    e("v_and_b32 v13, 31, v0")
    e("v_lshlrev_b32 v13, 2, v13")
    e("s_lshl_b32 s3, s21, 7")
    e(f"s_add_u32 s3, s3, {GBUF}")
    e("buffer_load_dword v180, v13, s[28:31], s3 offen")
    e("s_mul_i32 s60, s22, 320")
    e("s_mul_i32 s3, s20, 204800")
    e("s_add_u32 s60, s60, s3")
    e("s_mul_i32 s61, s21, 40")
    e("s_lshl_b32 s61, s61, 10")
    e(f"s_add_u32 s61, s61, {OBUF}")
    e("s_lshl_b32 s3, s20, 13")
    e("s_add_u32 s61, s61, s3")
    e("s_mul_i32 s3, s20, 6144")
    e("s_sub_u32 s56, 32768, s3")
    ks = [(0, k*20*1280, k*1024) for k in range(8)]
    ks += [(1, (k*80+16)*1280, None) for k in range(2)]
    ks2 = []
    for (a, b, c) in ks:
        ks2.append((a, b, c))
    e("s_add_u32 s55, s56, 1024")
    ks2[8] = (1, ks[8][1], "s56"); ks2[9] = (1, ks[9][1], "s55")
    stamp(e, 1)
    splitk_gemm(e, "K3", ks2, NS, 32, 28, "s58")
    stamp(e, 2)
    reduce_write(e, "s58")
    stamp(e, 3)
    e("s_mul_i32 s57, s20, 5120")
    reduce_read(e, NS*5120, "s57", wait="vmcnt(0) lgkmcnt(0)")
    e("v_sub_f32 v181, 1.0, v180")
    for i in range(20):
        e(f"v_mul_f32 v{160+i}, v181, v{160+i}")
        e(f"v_fma_f32 v{80+i}, v180, v{80+i}, v{160+i}")
    for i in range(10):
        e(f"v_cvt_pk_bf16_f32 v{100+i}, v{80+2*i}, v{80+2*i+1}")
    e("v_and_b32 v13, 31, v0")
    e("v_mul_u32_u24 v13, 0x500, v13")
    e("v_lshrrev_b32 v14, 5, v0")
    e("v_lshl_add_u32 v13, v14, 3, v13")
    e("s_mul_i32 s3, s21, 40960")
    e("s_mul_i32 s62, s22, 320")
    e("s_add_u32 s3, s3, s62")
    e("s_mul_i32 s62, s20, 80")
    e("s_add_u32 s3, s3, s62")
    for q in range(5):
        e(f"buffer_store_dwordx2 {vr(100+2*q,2)}, v13, s[36:39], s3 offen offset:{q*16}")
    stamp(e, 4)
    stamp_flush(e, 5, 2, "s20", 13)
    e.label("K3_END")
    e("s_endpgm")
    return name, 184, 4*NS*5120, 256, 256
```

```python
from common import *
from k23 import CNT
import math
QSCALE = math.log2(math.e) / math.sqrt(20.0)
import struct
def f2u(f): return struct.unpack('<I', struct.pack('<f', f))[0]

def gen_k1(e):
    name = "gated_mix__grouped_kv_mqa__glu_gated_reglu__prompt_kernel"
    kernel_head(e, name)
    e("s_cmp_ge_u32 s2, 256")
    e("s_cbranch_scc1 K2_END")
    e("s_load_dwordx4 s[4:7], s[0:1], 0")
    e("s_load_dwordx4 s[8:11], s[0:1], 16")
    e("s_load_dwordx4 s[12:15], s[0:1], 48")
    e("s_load_dwordx2 s[16:17], s[0:1], 72")
    e("s_load_dwordx2 s[18:19], s[0:1], 96")
    e("s_load_dwordx2 s[60:61], s[0:1], 32")
    e("s_load_dwordx2 s[62:63], s[0:1], 64")
    e("s_load_dwordx2 s[64:65], s[0:1], 88")
    e("s_load_dwordx2 s[66:67], s[0:1], 80")
    e("v_lshrrev_b32 v1, 6, v0")
    e("v_and_b32 v0, 63, v0")
    e("s_nop 0")
    e("v_readfirstlane_b32 s20, v1")
    e("s_nop 3")
    e("s_mov_b32 s79, s20")
    e("s_and_b32 s3, s2, 7")
    e("s_lshr_b32 s21, s2, 3")
    e("s_and_b32 s22, s3, 1")
    e("s_lshl_b32 s22, s22, 3")
    e("s_and_b32 s23, s21, 7")
    e("s_add_u32 s22, s22, s23")
    e("s_lshr_b32 s23, s3, 1")
    e("s_lshl_b32 s23, s23, 2")
    e("s_lshr_b32 s21, s21, 3")
    e("s_add_u32 s23, s23, s21")
    e("s_waitcnt lgkmcnt(0)")
    srd(e, 24, 4, 2621440)
    srd(e, 28, 18, WS_END)
    stamp(e, 0)
    e("s_cmp_eq_u32 s23, 15")
    e("s_cbranch_scc1 K1_ROLE_C")
    e("s_cmp_ge_u32 s23, 12")
    e("s_cbranch_scc1 K1_SETUP_B")
    e("s_lshl_b32 s21, s23, 8")
    e("s_sub_u32 s3, 1966080, s21")
    srd(e, 32, 12, "s3", add="s21")
    srd(e, 36, 14, "s3", add="s21")
    e("s_mov_b32 s40, 3072")
    e("s_branch K1_GEMM")
    e.label("K1_SETUP_B")
    e("s_sub_u32 s21, s23, 12")
    e("s_lshl_b32 s21, s21, 9")
    e("s_sub_u32 s3, 819200, s21")
    srd(e, 32, 6, "s3", add="s21")
    e("s_add_u32 s21, s21, 256")
    e("s_sub_u32 s3, 819200, s21")
    srd(e, 36, 6, "s3", add="s21")
    e("s_mov_b32 s40, 1280")
    e.label("K1_GEMM")
    e("s_mov_b32 s56, 1")
    e("s_cmp_ge_u32 s20, 8")
    e("s_cbranch_scc1 K1_HELP")
    e("s_lshl_b32 s41, s40, 2")
    e("s_lshl_b32 s44, s40, 6")
    e("s_lshl_b32 s45, s40, 3")
    e("s_mul_i32 s45, s45, s20")
    e("s_mul_i32 s46, s22, 163840")
    e("s_lshl_b32 s47, s20, 10")
    e("s_lshl_b32 s48, s20, 11")
    e("s_add_u32 s48, s48, 16384")
    e("s_lshr_b32 s49, s20, 2")
    e("s_and_b32 s50, s20, 3")
    e("s_and_b32 s51, s20, 1")
    e("v_lshrrev_b32 v3, 3, v0")
    e("s_lshl_b32 s3, s20, 3")
    e("v_add_u32 v3, s3, v3")
    e("v_mul_u32_u24 v3, 0x500, v3")
    e("v_lshrrev_b32 v4, 4, v0")
    e("s_lshl_b32 s3, s51, 2")
    e("v_add_u32 v4, s3, v4")
    e("v_and_b32 v4, 7, v4")
    e("v_and_b32 v5, 7, v0")
    e("v_xor_b32 v4, v4, v5")
    e("v_lshl_add_u32 v2, v4, 4, v3")
    e("v_lshrrev_b32 v4, 4, v0")
    e("v_mul_lo_u32 v3, v4, s40")
    e("v_lshlrev_b32 v4, 2, v4")
    e("v_and_b32 v5, 15, v0")
    e("v_xor_b32 v4, v4, v5")
    e("v_lshl_add_u32 v1, v4, 4, v3")
    e("s_mov_b32 s52, 0")
    def dma():
        g = []
        if os.environ.get("LOADER"): return g
        for m in range(2):
            g.append([f"s_add_u32 s53, s52, s47",
                      f"s_add_u32 m0, s53, {m*8192}",
                      f"s_add_u32 s3, s46, {m*81920}",
                      f"buffer_load_dwordx4 v2, s[24:27], s3 offen lds"])
        for ee in range(2):
            for u in range(2):
                g.append([f"s_add_u32 s53, s52, s48",
                          f"s_add_u32 m0, s53, {u*16384 + ee*1024}",
                          (f"s_add_u32 s3, s45, s41" if ee else "s_mov_b32 s3, s45"),
                          f"buffer_load_dwordx4 v1, s[{32+4*u}:{35+4*u}], s3 offen lds"])
        if g: g[-1] += ["s_add_u32 s45, s45, s44", "s_add_u32 s46, s46, 128",
                  "s_add_u32 s52, s52, 49152", "s_cmp_ge_u32 s52, 147456", "s_cselect_b32 s3, 147456, 0", "s_sub_u32 s52, s52, s3"]
        return g
    for st in range(2):
        for grp in dma():
            for ins in grp: e(ins)
        if st < 1 and not os.environ.get("LOADER"): e("s_barrier")
    if os.environ.get("LOADER"):
        e("v_lshrrev_b32 v3, 3, v0"); e("v_mul_u32_u24 v3, 0x500, v3"); e("v_and_b32 v4, 7, v0"); e("v_lshl_add_u32 v3, v4, 4, v3")
        e("s_and_b32 s3, s23, 3"); e("s_lshl_b32 s3, s3, 5"); e("s_lshl_b32 s53, s50, 3"); e("s_add_u32 s3, s3, s53")
        e("s_mul_i32 s3, s3, 1280"); e("s_add_u32 s3, s3, s46"); e("s_lshl_b32 s53, s49, 7"); e("s_add_u32 s3, s3, s53")
        e("v_lshrrev_b32 v4, 4, v0"); e("v_mul_lo_u32 v4, v4, s40"); e("v_and_b32 v5, 15, v0"); e("v_lshl_add_u32 v4, v5, 4, v4")
        e("s_and_b32 s53, s22, 7"); e("s_lshl_b32 s53, s53, 3"); e("s_lshl_b32 s55, s51, 2"); e("s_add_u32 s53, s53, s55")
        e("s_lshl_b32 s55, s49, 6"); e("s_add_u32 s53, s53, s55"); e("s_mul_i32 s53, s53, s40")
        e("s_lshl_b32 s55, s40, 7")
        e("s_bitcmp1_b32 s20, 1")
        for r in range(4): e(f"s_cselect_b32 s{72+r}, s{36+r}, s{32+r}")
        if os.environ.get("PF2"): e("s_barrier")
        NUP = int(os.environ.get("NUP", "5"))
        e(f"s_add_u32 s57, s3, {NUP*256}")
        e("v_mov_b32 v25, v3"); e("v_mov_b32 v26, v4"); e("s_mov_b32 s58, s55"); e("s_mov_b32 s59, 0")
        for j in range(0 if os.environ.get('NOPF') else NUP):
            e(f"buffer_load_dwordx4 v[160:163], v3, s[24:27], s3 offen offset:{j*256}")
            e(f"buffer_load_dwordx4 v[164:167], v4, s[72:75], s53 offen")
            e("s_add_u32 s53, s53, s55")
        if not os.environ.get("PF2"): e("s_barrier")
    e("v_and_b32 v3, 31, v0")
    e("s_lshl_b32 s3, s49, 6")
    e("v_add_u32 v3, s3, v3")
    e("v_lshrrev_b32 v4, 1, v3")
    e("v_and_b32 v4, 7, v4")
    e("v_lshrrev_b32 v5, 5, v0")
    e("v_lshlrev_b32 v3, 7, v3")
    for ks in range(4):
        e(f"v_or_b32 v24, {ks*2}, v5")
        e("v_xor_b32 v24, v24, v4")
        e(f"v_lshl_add_u32 v{6+ks}, v24, 4, v3")
        e(f"v_mov_b32 v{11+ks}, v{6+ks}")
    e("v_bfe_u32 v3, v0, 2, 2")
    e("v_lshl_add_u32 v4, v5, 3, v3")
    e("v_lshlrev_b32 v4, 8, v4")
    e("v_bfe_u32 v24, v0, 4, 1")
    e("v_lshl_add_u32 v4, v24, 5, v4")
    e("v_and_b32 v24, 3, v0")
    e("v_lshl_add_u32 v4, v24, 3, v4")
    e("v_xor_b32 v24, s50, v3")
    e("v_lshl_add_u32 v10, v24, 6, v4")
    e("v_mov_b32 v15, v10")
    e("v_add_u32 v16, 49152, v6")
    e("v_add_u32 v17, 49152, v10")
    e("s_mov_b32 s54, 49152")
    ACC = lambda u, rt: 96 + (u*2+rt)*16
    XF = lambda p, rt: 32 + p*16 + rt*4
    WF = lambda p, u: 32 + p*16 + 8 + u*4
    for i in range(64): e(f"v_mov_b32 v{96+i}, 0")
    def reads(ks, nxt=False):
        p = ks & 1
        vx = 16 if nxt else 11 + ks
        vw = 17 if nxt else 15
        g = []
        for rt in range(2):
            g.append([f"ds_read_b128 {vr(XF(p,rt),4)}, v{vx} offset:{rt*4096}"])
        for u in range(2):
            for uu in range(2):
                g.append([f"ds_read_b64_tr_b16 {vr(WF(p,u)+uu*2,2)}, v{vw} offset:{16384+u*16384+(ks*16+uu*4)*256}"])
        return g
    stamp(e, 1)
    if not os.environ.get("LOADER"): e("s_waitcnt vmcnt(6)")
    e("s_barrier")
    stamp(e, 2)
    for grp in reads(0):
        for ins in grp: e(ins)
    for grp in dma():
        for ins in grp: e(ins)
    def stage(with_dma, first_dma_part):
        d = dma() if with_dma else []
        for ks in range(4):
            p = ks & 1
            if ks == 3:
                e(f"s_waitcnt vmcnt({6 if with_dma else 0}) lgkmcnt(0)" if not os.environ.get("LOADER") else "s_waitcnt lgkmcnt(0)")
                if not os.environ.get("BARN"): e("s_barrier")
                others = reads(0, nxt=True)
                others += d[0:2]
            else:
                e("s_waitcnt lgkmcnt(0)")
                others = reads(ks+1)
            mf = []
            for rt in range(2):
                for u in range(2):
                    a = ACC(u, rt)
                    mf.append(f"v_mfma_f32_32x32x16_bf16 {vr(a,16)}, {vr(WF(p,u),4)}, {vr(XF(p,rt),4)}, {vr(a,16)}")
            if ks == 3 and os.environ.get("BARN"):
                nb_ = int(os.environ["BARN"])
                for m_ in mf[:nb_]: e(m_)
                e("s_barrier")
                if nb_ < 4: interleave(e, mf[nb_:], others)
                else:
                    for grp in others:
                        for ins in grp: e(ins)
            else:
                interleave(e, mf, others)
            PFR = int(os.environ.get("PFR", "1"))
            if ks in ((0,), (0, 2), (0, 1, 2), (0, 1, 2, 3))[PFR-1] and with_dma and os.environ.get("LOADER") and int(os.environ.get("NUP", "5")) < 5:
                e(f"s_cmp_lt_u32 s59, {5 - int(os.environ['NUP'])}")
                e(f"s_cbranch_scc0 K1_NPF{ks}")
                e("buffer_load_dwordx4 v[160:163], v25, s[24:27], s57 offen")
                e("buffer_load_dwordx4 v[164:167], v26, s[72:75], s53 offen")
                e("s_add_u32 s53, s53, s58")
                e("s_add_u32 s57, s57, 256")
                e("s_add_u32 s59, s59, 1")
                e.label(f"K1_NPF{ks}")
            if ks == 3:
                for grp in d[2:]:
                    for ins in grp: e(ins)
        for ks in range(4):
            e(f"v_add_u32 v{11+ks}, s54, v{6+ks}")
        e("v_mov_b32 v15, v17")
        e("s_add_u32 s54, s54, 49152"); e("s_cmp_ge_u32 s54, 147456"); e("s_cselect_b32 s3, 147456, 0"); e("s_sub_u32 s54, s54, s3")
        e("v_add_u32 v16, s54, v6")
        e("v_add_u32 v17, s54, v10")
    e("s_mov_b32 s55, 0")
    e.l.append(".p2align 6")
    e.label("K1_L1")
    stage(True, 0)
    e("s_add_u32 s55, s55, 1")
    e("s_cmp_lt_u32 s55, 7")
    e("s_cbranch_scc1 K1_L1")
    e.label("K1_L2")
    stage(False, 0)
    e("s_add_u32 s55, s55, 1")
    e("s_cmp_lt_u32 s55, 10")
    e("s_cbranch_scc1 K1_L2")
    stamp(e, 3)
    e("s_nop 15")
    e("s_cmp_ge_u32 s23, 12")
    e("s_cbranch_scc1 K1_EPI_B")
    e("s_lshl_b32 s3, s22, 2")
    e("s_lshl_b32 s21, s49, 1")
    e("s_add_u32 s3, s3, s21")
    e("s_mul_i32 s3, s3, 96")
    e("s_lshl_b32 s21, s23, 3")
    e("s_add_u32 s3, s3, s21")
    e("s_lshl_b32 s21, s50, 1")
    e("s_add_u32 s3, s3, s21")
    e("s_lshl_b32 s3, s3, 10")
    e(f"s_add_u32 s3, s3, {HBUF}")
    e(f"s_add_u32 s21, s3, {96*1024}")
    e("v_lshlrev_b32 v1, 4, v0")
    for rt in range(2):
        g = ACC(0, rt); u_ = ACC(1, rt)
        for i in range(16):
            e(f"v_max_f32 v{g+i}, 0, v{g+i}")
            e(f"v_mul_f32 v{g+i}, v{g+i}, v{u_+i}")
        d = 64 + rt*8
        for i in range(8):
            e(f"v_cvt_pk_bf16_f32 v{d+i}, v{g+2*i}, v{g+2*i+1}")
        for t in range(2):
            e(f"buffer_store_dwordx4 {vr(d+4*t,4)}, v1, s[28:31], {'s3' if rt==0 else 's21'} offen offset:{t*1024} sc1")
    stamp(e, 4)
    stamp_flush(e, 5, 0, "s20", 2)
    e("s_mov_b64 exec, -1")
    e("s_branch P1_DONE")
    e.label("K1_EPI_B")
    e("s_sub_u32 s3, s23, 12")
    e("s_lshl_b32 s3, s3, 6")
    e("s_lshl_b32 s21, s50, 3")
    e("s_add_u32 s3, s3, s21")
    e("s_lshl_b32 s3, s3, 14")
    e("s_lshl_b32 s21, s22, 7")
    e("s_lshl_b32 s51, s49, 6")
    e("s_add_u32 s21, s21, s51")
    e("s_lshl_b32 s21, s21, 3")
    e("s_add_u32 s3, s3, s21")
    e("v_and_b32 v1, 31, v0")
    e("v_lshlrev_b32 v1, 3, v1")
    e("v_lshrrev_b32 v2, 5, v0")
    e("v_lshl_add_u32 v1, v2, 14, v1")
    e(f"s_mov_b32 s51, 0x{f2u(QSCALE):08x}")
    for u in range(2):
        if u == 1:
            e("s_cmp_eq_u32 s23, 14")
            e("s_cbranch_scc1 P1_DONE")
        for rt in range(2):
            a = ACC(u, rt)
            for i in range(16):
                e(f"v_mul_f32 v{a+i}, s51, v{a+i}")
            d = 64 + (u*2+rt)*8
            for i in range(8):
                e(f"v_cvt_pk_bf16_f32 v{d+i}, v{a+2*i}, v{a+2*i+1}")
            for g in range(4):
                e(f"s_add_u32 s21, s3, {(u*32+2*g)*16384}")
                e(f"buffer_store_dwordx2 {vr(d+2*g,2)}, v1, s[28:31], s21 offen offset:{rt*256} sc1")
    e("s_branch P1_DONE")

    e.label("K1_ROLE_C")
    e("s_mov_b32 s56, 0")
    e("s_cmp_ge_u32 s20, 8")
    e("s_cbranch_scc1 K1_HELP")
    srd(e, 32, 8, 25600)
    srd(e, 36, 10, 25600)
    srd(e, 40, 16, 1280)
    e("s_and_b32 s3, s20, 3")
    e("s_lshl_b32 s21, s22, 2")
    e("s_add_u32 s21, s21, s3")
    e("s_lshl_b32 s44, s20, 6")
    e("v_add_u32 v3, s44, v0")
    e("v_lshlrev_b32 v4, 2, v3")
    for i in range(13):
        e(f"buffer_load_dword v{8+i}, v4, s[32:35], 0 offen offset:{(i%2)*2048}")
        e(f"buffer_load_dword v{33+i}, v4, s[36:39], 0 offen offset:{(i%2)*2048}")
        if i % 2 == 1: e("v_add_u32 v4, 4096, v4")
    e("v_lshlrev_b32 v4, 1, v3")
    for i in range(2):
        e(f"buffer_load_ushort v{58+i}, v4, s[40:43], 0 offen offset:{i*1024}")
    e("s_and_b32 s51, s20, 1")
    e("v_lshrrev_b32 v5, 3, v0")
    e("s_lshl_b32 s3, s20, 3")
    e("v_add_u32 v5, s3, v5")
    e("v_mul_u32_u24 v5, 0x500, v5")
    e("v_lshrrev_b32 v6, 4, v0")
    e("s_lshl_b32 s3, s51, 2")
    e("v_add_u32 v6, s3, v6")
    e("v_and_b32 v6, 7, v6")
    e("v_and_b32 v7, 7, v0")
    e("v_xor_b32 v6, v6, v7")
    e("v_lshl_add_u32 v62, v6, 4, v5")
    e("s_mul_i32 s46, s22, 163840")
    e("s_lshl_b32 s47, s20, 10")
    def cdma(kb):
        for m in range(2):
            e(f"s_add_u32 m0, s47, {81920 + (kb%4)*16384 + m*8192}")
            e(f"s_add_u32 s3, s46, {m*81920 + kb*128}")
            e("buffer_load_dwordx4 v62, s[24:27], s3 offen lds")
    for kb in range(3): cdma(kb)
    e("v_mov_b32 v144, 0"); e("v_mov_b32 v145, 0"); e("v_mov_b32 v146, 0"); e("v_mov_b32 v147, 0")
    e("v_lshlrev_b32 v4, 4, v3")
    for i in range(8):
        e(f"ds_write_b128 v4, v[144:147] offset:{i*8192}")
    e("v_add_u32 v5, 65536, v4")
    for i in range(2):
        e(f"ds_write_b128 v5, v[144:147] offset:{i*8192}")
    e("s_waitcnt lgkmcnt(0)")
    e("s_barrier")
    e("s_mov_b32 s3, 0xCCCCCCCD")
    e("s_waitcnt vmcnt(6)")
    for i in range(13):
        e(f"v_add_u32 v4, {512*i}, v3")
        e("v_mul_hi_u32 v5, v4, s3")
        e("v_lshrrev_b32 v5, 3, v5")
        e("v_mul_u32_u24 v6, 10, v5")
        e("v_sub_u32 v6, v4, v6")
        e("v_lshlrev_b32 v5, 6, v5")
        e("v_lshl_add_u32 v5, v6, 2, v5")
        if i == 12:
            e("v_cmp_gt_u32 vcc, 256, v3")
            e("s_and_saveexec_b64 s[44:45], vcc")
        e(f"ds_write_b32 v5, v{8+i}")
        e(f"ds_write_b32 v5, v{33+i} offset:40960")
        if i == 12:
            e("s_mov_b64 exec, s[44:45]")
    e("v_lshlrev_b32 v4, 6, v3")
    e("ds_write_b16 v4, v58 offset:44")
    e("v_cmp_gt_u32 vcc, 128, v3")
    e("s_and_saveexec_b64 s[44:45], vcc")
    e(f"ds_write_b16 v4, v59 offset:{44+32768}")
    e("s_mov_b64 exec, s[44:45]")
    e("s_waitcnt lgkmcnt(0)")
    e("s_barrier")
    e("v_bfe_u32 v3, v0, 2, 2")
    e("v_lshrrev_b32 v5, 5, v0")
    e("v_lshl_add_u32 v4, v5, 3, v3")
    e("v_lshlrev_b32 v4, 6, v4")
    e("v_bfe_u32 v6, v0, 4, 1")
    e("v_lshl_add_u32 v4, v6, 5, v4")
    e("v_and_b32 v6, 3, v0")
    e("v_lshl_add_u32 v4, v6, 3, v4")
    e(f"s_mul_i32 s48, s21, {KV_TILE}")
    e(f"s_add_u32 s48, s48, {KVBUF}")
    e("v_lshlrev_b32 v1, 4, v0")
    e("v_lshlrev_b32 v2, 3, v0")
    e("v_mov_b32 v60, 0x3f803f80")
    e("v_mov_b32 v61, 0")
    KA = 144
    e("v_and_b32 v5, 31, v0")
    e("s_and_b32 s44, s20, 3")
    e("s_lshl_b32 s44, s44, 5")
    e("v_add_u32 v5, s44, v5")
    e("v_lshrrev_b32 v6, 1, v5")
    e("v_and_b32 v6, 7, v6")
    e("v_lshrrev_b32 v7, 5, v0")
    e("v_lshlrev_b32 v5, 7, v5")
    e("v_add_u32 v5, 81920, v5")
    for ks in range(4):
        e(f"v_or_b32 v24, {ks*2}, v7")
        e("v_xor_b32 v24, v24, v6")
        e(f"v_lshl_add_u32 v{64+ks}, v24, 4, v5")
    e("s_cmp_ge_u32 s20, 4")
    e("s_cbranch_scc1 K1_C_V")
    def body(isV):
        for kb in range(10):
            e(f"s_waitcnt vmcnt({2*min(2, 9-kb)})")
            e("s_barrier")
            if kb + 3 < 10: cdma(kb+3)
            for ks in range(4):
                k = kb*4 + ks
                e(f"ds_read_b128 {vr(72+ks*4,4)}, v{64+ks} offset:{(kb%4)*16384}")
                e(f"ds_read_b64_tr_b16 {vr(8+ks*4,2)}, v4 offset:{k*1024}")
                e(f"ds_read_b64_tr_b16 {vr(10+ks*4,2)}, v4 offset:{k*1024+256}")
            for ks in range(4):
                e(f"s_waitcnt lgkmcnt({9-3*ks})")
                ck = "0" if (kb == 0 and ks == 0) else vr(KA, 16)
                if isV: e(f"v_mfma_f32_32x32x16_bf16 {vr(KA,16)}, {vr(72+ks*4,4)}, {vr(8+ks*4,4)}, {ck}")
                else:   e(f"v_mfma_f32_32x32x16_bf16 {vr(KA,16)}, {vr(8+ks*4,4)}, {vr(72+ks*4,4)}, {ck}")
        e("s_nop 15")
    body(False)
    for i in range(6):
        e(f"v_cvt_pk_bf16_f32 v{8+i}, v{KA+2*i}, v{KA+2*i+1}")
    e(f"v_mul_f32 v20, 0xbfb8aa3b, v{KA+10}")
    e("v_exp_f32 v20, v20")
    e("s_nop 0")
    e("v_add_f32 v20, 1.0, v20")
    e("v_rcp_f32 v20, v20")
    e("v_cmp_le_u32 vcc, 32, v0")
    e("s_nop 1")
    e("v_cndmask_b32 v12, v12, v60, vcc")
    e("v_cndmask_b32 v13, v13, v61, vcc")
    e("buffer_store_dwordx4 v[8:11], v1, s[28:31], s48 offen sc1")
    e("buffer_store_dwordx2 v[12:13], v2, s[28:31], s48 offen offset:1024 sc1")
    e("s_lshl_b32 s44, s21, 7")
    e(f"s_add_u32 s44, s44, {GBUF - 128}")
    e("v_lshlrev_b32 v23, 2, v0")
    e("s_and_saveexec_b64 s[46:47], vcc")
    e("buffer_store_dword v20, v23, s[28:31], s44 offen sc1")
    e("s_mov_b64 exec, -1")
    e("s_branch P1_DONE")
    e.label("K1_C_V")
    e("v_add_u32 v4, 40960, v4")
    body(True)
    e("v_and_b32 v23, 31, v0")
    e("v_cmp_eq_u32 vcc, 20, v23")
    for i in range(8):
        e(f"v_cvt_pk_bf16_f32 v{24+i}, v{KA+2*i}, v{KA+2*i+1}")
    for i in range(8):
        e(f"v_cndmask_b32 v{24+i}, v{24+i}, v60, vcc")
    e("buffer_store_dwordx4 v[24:27], v1, s[28:31], s48 offen offset:1536 sc1")
    e("buffer_store_dwordx4 v[28:31], v1, s[28:31], s48 offen offset:2560 sc1")
    stamp(e, 4)
    stamp_flush(e, 5, 0, "s20", 2)
    e("s_mov_b64 exec, -1")
    e("s_branch P1_DONE")
    e.label("K1_HELP")
    e("s_sub_u32 s20, s20, 8")
    srd(e, 48, 60, 819200)
    srd(e, 52, 62, 1966080)
    e("s_lshl_b32 s3, s2, 2")
    e("s_add_u32 s3, s3, s20")
    e("s_lshl_b32 s3, s3, 10")
    e("s_add_u32 s44, s3, 0x100000")
    e("s_add_u32 s45, s3, 0x200000")
    e("v_lshlrev_b32 v1, 4, v0")
    srd(e, 68, 64, 256)
    e("v_mov_b32 v2, 0")
    e("s_or_b32 s46, s2, s20")
    e("s_cmp_lg_u32 s46, 0")
    e("s_cbranch_scc1 K1_T0")
    e("s_memrealtime s[46:47]")
    e("s_waitcnt lgkmcnt(0)")
    e("s_or_b32 s46, s46, 1")
    e("v_mov_b32 v3, s46")
    e("s_mov_b64 exec, 1")
    e("buffer_store_dword v3, v2, s[68:71], 0 offen sc1")
    e("s_mov_b64 exec, -1")
    e.label("K1_T0")
    if os.environ.get("LOADER"):
        e("s_cmp_eq_u32 s56, 0")
        e("s_cbranch_scc1 K1_HC")
        e("s_lshl_b32 s41, s40, 2"); e("s_lshl_b32 s42, s40, 3"); e("s_add_u32 s43, s41, s42")
        e("s_lshl_b32 s58, s40, 6")
        e("s_lshl_b32 s59, s40, 4"); e("s_mul_i32 s59, s59, s20")
        e("s_mul_i32 s46, s22, 163840")
        e("s_lshl_b32 s47, s20, 10"); e("s_lshl_b32 s72, s20, 12"); e("s_add_u32 s72, s72, 16384")
        e("s_and_b32 s73, s20, 1")
        e("v_lshrrev_b32 v13, 3, v0"); e("s_lshl_b32 s74, s20, 3"); e("v_add_u32 v13, s74, v13"); e("v_mul_u32_u24 v13, 0x500, v13")
        e("v_lshrrev_b32 v14, 4, v0"); e("s_lshl_b32 s74, s73, 2"); e("v_add_u32 v14, s74, v14"); e("v_and_b32 v14, 7, v14")
        e("v_and_b32 v15, 7, v0"); e("v_xor_b32 v14, v14, v15"); e("v_lshl_add_u32 v16, v14, 4, v13")
        e("v_lshrrev_b32 v14, 4, v0"); e("v_mul_lo_u32 v13, v14, s40"); e("v_lshlrev_b32 v14, 2, v14")
        e("v_and_b32 v15, 15, v0"); e("v_xor_b32 v14, v14, v15"); e("v_lshl_add_u32 v17, v14, 4, v13")
        def ld(kb):
            base = (kb % 3) * 49152
            for m in range(4):
                e(f"s_add_u32 m0, s47, {base + m*4096}")
                e(f"s_add_u32 s74, s46, {m*40960 + kb*128}")
                e("buffer_load_dwordx4 v16, s[24:27], s74 offen lds")
            for ee in range(4):
                for u in range(2):
                    e(f"s_add_u32 m0, s72, {base + u*16384 + ee*1024}")
                    e(f"s_add_u32 s74, s59, s{40+ee}" if ee else "s_mov_b32 s74, s59")
                    e(f"buffer_load_dwordx4 v17, s[{32+4*u}:{35+4*u}], s74 offen lds")
            e("s_add_u32 s59, s59, s58")

        if os.environ.get("PF2"):
            ld(0); e("s_barrier"); e("s_waitcnt vmcnt(0)"); e("s_barrier"); ld(1); ld(2)
        else:
            e("s_barrier"); ld(0); ld(1); e("s_waitcnt vmcnt(12)"); e("s_barrier"); ld(2)
        for kb in range(8):
            SWK = int(os.environ.get("SWK", "1"))
            e(f"s_waitcnt vmcnt({(15 if kb in (SWK+1, SWK+2) and SWK >= 0 else 12) if kb + 2 <= 9 else 0})")
            e("s_barrier")
            if kb + 3 <= 9: ld(kb + 3)
            if kb == SWK:
                e("buffer_load_dwordx4 v[4:7], v1, s[52:55], s3 offen")
                e("buffer_load_dwordx4 v[8:11], v1, s[52:55], s44 offen")
                e("buffer_load_dwordx4 v[20:23], v1, s[48:51], s3 offen")
        e("s_waitcnt vmcnt(0)")
        e("s_branch K1_HD")
        e.label("K1_HC")
    srd(e, 32, 12, 1966080)
    srd(e, 36, 14, 1966080)
    srd(e, 40, 6, 819200)
    e("s_barrier")
    e("buffer_load_dwordx4 v[4:7], v1, s[24:27], s3 offen")
    e("buffer_load_dwordx4 v[4:7], v1, s[32:35], s3 offen")
    e("buffer_load_dwordx4 v[4:7], v1, s[36:39], s3 offen")
    e("buffer_load_dwordx4 v[4:7], v1, s[24:27], s44 offen")
    e("buffer_load_dwordx4 v[4:7], v1, s[24:27], s45 offen")
    e("buffer_load_dwordx4 v[4:7], v1, s[40:43], s3 offen")
    e("buffer_load_dwordx4 v[4:7], v1, s[32:35], s44 offen")
    e("buffer_load_dwordx4 v[4:7], v1, s[36:39], s44 offen")
    for i in range(6): e("s_barrier")
    e("buffer_load_dwordx4 v[4:7], v1, s[52:55], s3 offen")
    e("buffer_load_dwordx4 v[8:11], v1, s[52:55], s44 offen")
    e("buffer_load_dwordx4 v[12:15], v1, s[48:51], s3 offen")
    for i in range(3): e("s_barrier")
    e.label("K1_HD")
    e("s_cmp_lg_u32 s20, 0")
    e("s_cbranch_scc1 K1_T5")
    e("s_mov_b32 s47, 0")
    e.label("K1_T4")
    e("buffer_load_dword v3, v2, s[68:71], 0 offen sc1")
    e("s_waitcnt vmcnt(0)")
    e("v_readfirstlane_b32 s46, v3")
    e("s_add_u32 s47, s47, 1")
    e("s_cmp_ge_u32 s47, 0x100000")
    e("s_cbranch_scc1 K1_T6")
    e("s_cmp_eq_u32 s46, 0")
    e("s_cbranch_scc1 K1_T4")
    e.label("K1_T6")
    e(f"v_mov_b32 v2, {CNT}")
    e("ds_write_b32 v2, v3 offset:8")
    e("s_waitcnt lgkmcnt(0)")
    e.label("K1_T5")
    e("s_and_b32 s47, s2, 7"); e("s_lshl_b32 s47, s47, 3"); e("s_lshr_b32 s74, s2, 5"); e("s_add_u32 s47, s47, s74")
    e("v_lshl_add_u32 v5, v0, 4, 15")
    e("s_lshr_b32 s47, s47, 2"); e("s_lshl_b32 s47, s47, 4"); e("s_sub_u32 s47, s47, 4")
    e("v_add_u32 v6, s47, v0")
    e("v_cmp_gt_u32 vcc, 16, v0")
    e("s_nop 1")
    e("v_cndmask_b32 v5, v6, v5, vcc")
    e("v_lshlrev_b32 v5, 7, v5")
    e(f"v_mov_b32 v2, {CNT}")
    for i in range(2): e("s_barrier")
    e("s_cmp_lg_u32 s20, 0")
    e("s_cbranch_scc1 P1_DONE")
    e(f"s_mov_b32 s47, {FLAG1}")
    e("s_mov_b64 exec, 0x7ffff")
    e("v_mov_b32 v7, 1")
    for it in range(2):
        e("buffer_load_dword v6, v5, s[28:31], s47 offen sc1")
        e("s_waitcnt vmcnt(0)")
        e("v_cmp_ne_u32 vcc, s46, v6")
        e("s_nop 1")
        e("s_cbranch_vccz K1_RDY")
    e("v_mov_b32 v7, 0")
    e.label("K1_RDY")
    e("s_mov_b64 exec, 1")
    e("ds_write_b32 v2, v7 offset:12")
    e("s_mov_b64 exec, -1")
    e("s_waitcnt lgkmcnt(0)")
    e.label("P1_DONE")
    e("s_waitcnt vmcnt(0)")
    e("s_barrier")
    e("s_lshl_b32 s76, s22, 4")
    e("s_add_u32 s76, s76, s23")
    return name, 168, 147456, 256, 768
```
